```python
import torch

def _softmax(x, axis=-1):
    return torch.softmax(x, dim=axis)
def _gelu(x):
    return torch.nn.functional.gelu(x, approximate="tanh")
def _silu(x):
    return torch.nn.functional.silu(x)
def _sigmoid(x):
    return torch.sigmoid(x)
def _layernorm(x, axis=-1, eps=1e-5):
    m = x.mean(dim=axis, keepdim=True)
    v = x.var(dim=axis, keepdim=True, unbiased=False)
    return (x - m) / torch.sqrt(v + eps)
def _scatter_add(tgt, idx, src, axis=0):
    return tgt.clone().index_add_(axis, idx, src)
def _segment_sum(src, seg, n):
    out = torch.zeros((n,) + src.shape[1:], dtype=src.dtype)
    return out.index_add_(0, seg, src)
def _pad(x, pw):
    flat = tuple(v for pair in reversed(pw) for v in pair)
    return torch.nn.functional.pad(x, flat)

kernel_name = 'recurrent_scan__mha_block_cached__dense_activation_squared_relu__decode'

def setup_inputs():

    _w = (lambda a: (lambda t: t.to(torch.bfloat16) if t.is_floating_point() else t)(torch.as_tensor(a)))
    def _A_setup():
        B, Sq, D = 2, 1, 640
        H, Sk, Dh = 32, 8192, 128
        return {
            "x": _w((lambda *s: torch.randn(*s, dtype=torch.bfloat16) * 0.05)(B, Sq, D)),
            "k_cache": _w((lambda *s: torch.randn(*s, dtype=torch.bfloat16) * 0.8)(B, H, Sk, Dh)),
            "v_cache": _w((lambda *s: torch.randn(*s, dtype=torch.bfloat16) * 0.2)(B, H, Sk, Dh)),
            "wq": _w((lambda *s: torch.randn(*s, dtype=torch.bfloat16) * 0.8)(D, H * Dh) * (D ** -0.5)),
            "wo": _w((lambda *s: torch.randn(*s, dtype=torch.bfloat16) * 0.2)(H * Dh, D) * ((H * Dh) ** -0.5)),
        }
    _A_in = _A_setup()

    def _B_setup():
        B, S, D, F = 2, 1, 640, 1728
        return {
            "x": _w((lambda *s: torch.randn(*s, dtype=torch.bfloat16) * 0.05)(B, S, D)),
            "w1": _w((lambda *s: torch.randn(*s, dtype=torch.bfloat16) * 0.1)(D, F)),
            "b1": _w((lambda *s: torch.randn(*s, dtype=torch.bfloat16) * 0.1)(F)),
            "w2": _w((lambda *s: torch.randn(*s, dtype=torch.bfloat16) * 0.1)(F, D)),
            "b2": _w((lambda *s: torch.randn(*s, dtype=torch.bfloat16) * 0.1)(D)),
        }
    _B_in = _B_setup()

    return {
        "A_x": _A_in["x"],
        "A_k_cache": _A_in["k_cache"],
        "A_v_cache": _A_in["v_cache"],
        "A_wq": _A_in["wq"],
        "A_wo": _A_in["wo"],
        "B_x": _B_in["x"],
        "B_w1": _B_in["w1"],
        "B_b1": _B_in["b1"],
        "B_w2": _B_in["w2"],
        "B_b2": _B_in["b2"],
    }

def reference(A_x, A_k_cache, A_v_cache, A_wq, A_wo, B_x, B_w1, B_b1, B_w2, B_b2):
    def _A_ref(x, k_cache, v_cache, wq, wo):
        B, Sq, D = x.shape
        H, Dh = 32, 128
        q = (lambda x, *d: x.permute(*d))((x @ wq).reshape(B, Sq, H, Dh), 0, 2, 1, 3)
        scores = torch.einsum("bhqd,bhkd->bhqk", q, k_cache) * (Dh ** -0.5)
        p = _softmax(scores, axis=-1)
        o = torch.einsum("bhqk,bhkd->bhqd", p, v_cache)
        return (lambda x, *d: x.permute(*d))(o, 0, 2, 1, 3).reshape(B, Sq, H * Dh) @ wo

    def _B_ref(x, w1, b1, w2, b2):
        h = torch.einsum("bsd,df->bsf", x, w1) + b1
        zero = torch.zeros_like(h)
        r = torch.where(h > zero, h, zero)
        h = r * r
        out = torch.einsum("bsf,fd->bsd", h, w2) + b2
        return out

    x = A_x
    xn = _layernorm(x, axis=-1)
    s = _A_ref(xn, A_k_cache, A_v_cache, A_wq, A_wo)
    g = _silu(_B_ref(xn, B_w1, B_b1, B_w2, B_b2))
    return x + s * g
```

```python
import re

TRANS = ('v_exp_f32', 'v_log_f32', 'v_rcp_f32', 'v_rsq_f32', 'v_sqrt_f32', 'v_sin_f32', 'v_cos_f32')

def regs_of(tok):
    tok = tok.strip()
    tok = tok.lstrip('-')
    m = re.fullmatch(r'abs\((.*)\)', tok)
    if m: tok = m.group(1)
    m = re.fullmatch(r'\|(.*)\|', tok)
    if m: tok = m.group(1)
    m = re.fullmatch(r'([vs])(\d+)', tok)
    if m: return [(m.group(1), int(m.group(2)))]
    m = re.fullmatch(r'([vs])\[(\d+):(\d+)\]', tok)
    if m: return [(m.group(1), i) for i in range(int(m.group(2)), int(m.group(3)) + 1)]
    if tok == 'vcc': return [('s', 106), ('s', 107)]
    if tok == 'exec': return [('s', 126), ('s', 127)]
    return []

class Ins:
    def __init__(self, text):
        self.text = text
        t = text.split(';')[0].strip()
        self.label = t.endswith(':')
        self.directive = t.startswith('.') or t == ''
        self.w = set(); self.r = set(); self.srcC = set(); self.srcAB = set(); self.sdata = set()
        self.kind = 'other'
        self.states = 1
        if self.label or self.directive:
            self.states = 0; self.op = ''
            return
        parts = t.split(None, 1)
        self.op = op = parts[0]
        rest = parts[1] if len(parts) > 1 else ''
        ops = []; depth = 0; cur = ''
        for ch in rest:
            if ch in '[(': depth += 1
            if ch in '])': depth -= 1
            if ch == ',' and depth == 0:
                ops.append(cur.strip()); cur = ''
            else: cur += ch
        if cur.strip(): ops.append(cur.strip())
        if ops:
            lastparts = ops[-1].split()
            self.mods = lastparts[1:]
            ops[-1] = lastparts[0]
        else: self.mods = []
        self.ops = ops
        base = op.replace('_e32', '').replace('_e64', '')
        self.dpp = base.endswith('_dpp')
        base = base.replace('_dpp', '')
        self.base = base
        if base == 's_nop':
            self.states = int(ops[0], 0) + 1; self.kind = 'salu'; return
        if base.startswith('v_mfma'):
            self.kind = 'mfma'
            self.w = set(regs_of(ops[0])); self.srcAB = set(regs_of(ops[1]) + regs_of(ops[2])); self.srcC = set(regs_of(ops[3]))
            self.r = self.srcAB | self.srcC
            self.passes = 4 if '16x16x32' in base else (8 if '32x32x16' in base else 2)
            return
        if base.startswith('v_'):
            self.kind = 'valu'
            if base.startswith('v_cmp'):
                self.w = set(regs_of(ops[0])); src = ops[1:]
            elif base in ('v_readlane_b32', 'v_readfirstlane_b32'):
                self.w = set(regs_of(ops[0])); src = ops[1:]
            elif base.startswith('v_permlane') and 'swap' in base:
                self.w = set(regs_of(ops[0]) + regs_of(ops[1])); src = ops[0:2]
            elif base in ('v_add_co_u32', 'v_addc_co_u32', 'v_sub_co_u32'):
                self.w = set(regs_of(ops[0]) + regs_of(ops[1])); src = ops[2:]
            else:
                self.w = set(regs_of(ops[0])); src = ops[1:]
            for s in src: self.r |= set(regs_of(s))
            if base in ('v_fmac_f32', 'v_dot2c_f32_bf16') or self.dpp:
                self.r |= set(regs_of(ops[0]))
            self.dppsrc = set(regs_of(ops[1])) if self.dpp else set()
            self.trans = base in TRANS
            self.dot = base.startswith('v_dot')
            if self.dot:
                if base == 'v_dot2c_f32_bf16':
                    self.srcC = set(regs_of(ops[0])); self.srcAB = set(regs_of(ops[1]) + regs_of(ops[2]))
                else:
                    self.srcC = set(regs_of(ops[3])); self.srcAB = set(regs_of(ops[1]) + regs_of(ops[2]))
            return
        if base.startswith('buffer_') or base.startswith('global_'):
            self.kind = 'vmem'
            if 'load' in base:
                self.w = set(regs_of(ops[0]))
                for s in ops[1:]: self.r |= set(regs_of(s))
            else:
                for s in ops: self.r |= set(regs_of(s))
                if base.endswith('x4') or base.endswith('x3'):
                    self.sdata = set(regs_of(ops[0]))
                if 'atomic' in base and 'sc0' in self.mods:
                    self.w = set(regs_of(ops[0]))
            return
        if base.startswith('ds_'):
            self.kind = 'ds'
            if 'read' in base or 'bpermute' in base or 'swizzle' in base:
                self.w = set(regs_of(ops[0]))
                for s in ops[1:]: self.r |= set(regs_of(s))
            else:
                for s in ops: self.r |= set(regs_of(s))
            return
        if base.startswith('s_'):
            self.kind = 'salu'
            return

def need(p, c):
    n = 0
    pv = {x for x in p.w if x[0] == 'v'}
    ps = {x for x in p.w if x[0] == 's'}
    if p.kind == 'valu':
        if c.kind == 'valu':
            if c.dpp and (pv & c.dppsrc): n = max(n, 2)
            if c.base in ('v_readlane_b32', 'v_readfirstlane_b32') and (pv & set(regs_of(c.ops[1]))): n = max(n, 1)
            if c.base.startswith('v_permlane') and (pv & c.r): n = max(n, 2)
            if p.trans and not c.trans and (pv & c.r): n = max(n, 1)
            if ps & c.r:
                n = max(n, 2)
                if c.base in ('v_readlane_b32', 'v_writelane_b32') and (ps & set(regs_of(c.ops[2]))): n = max(n, 4)
            if p.dot:
                if c.dot and c.base == p.base:
                    if pv & c.srcAB: n = max(n, 3)
                elif pv & (c.r | c.w): n = max(n, 3)
        if c.kind == 'mfma':
            if pv & c.r: n = max(n, 3 if p.dot else 2)
        if c.kind == 'vmem':
            if ps & c.r: n = max(n, 5)
            if p.dot and (pv & c.r): n = max(n, 3)
            if p.trans and (pv & c.r): n = max(n, 1)
        if c.kind == 'ds':
            if p.dot and (pv & c.r): n = max(n, 3)
            if p.trans and (pv & c.r): n = max(n, 1)
    if p.kind == 'mfma':
        tab = {2: (2, 4, 5, 5, 1), 4: (0, 6, 8, 8, 3), 8: (0, 10, 12, 12, 7)}[p.passes]
        if c.kind == 'mfma':
            if pv & c.srcC:
                n = max(n, tab[0] if (c.srcC == pv and c.passes == p.passes) else tab[1])
            if pv & c.srcAB: n = max(n, tab[2])
            if (pv & c.w) and not (c.srcC == pv): n = max(n, tab[1])
        elif c.kind in ('valu', 'vmem', 'ds'):
            if pv & (c.r | c.w): n = max(n, tab[3])
            if c.kind == 'valu' and (p.srcC & c.w): n = max(n, tab[4])
    if p.kind == 'vmem' and p.sdata:
        if c.kind == 'valu' and (p.sdata & c.w): n = max(n, 2)
        elif c.kind in ('vmem', 'ds', 'mfma') and (p.sdata & c.w): n = max(n, 1)
    return n

class Asm:
    def __init__(self):
        self.L = []
    def __call__(self, text):
        for line in text.split('\n'):
            self.L.append(line.strip())
    def extend(self, lines):
        for l in lines: self(l)
    def finalize(self):
        out = []
        hist = []
        npad = 0
        for line in self.L:
            ins = Ins(line)
            if ins.label or ins.directive:
                out.append(line); continue
            dist = 0; pad = 0
            for p in reversed(hist[-24:]):
                nd = need(p, ins)
                if nd > dist: pad = max(pad, nd - dist)
                dist += p.states
                if dist >= 20: break
            if pad:
                nop = Ins(f's_nop {pad-1}')
                out.append(f'    s_nop {pad-1}'); hist.append(nop); npad += 1
            out.append('    ' + line); hist.append(ins)
        return '\n'.join(out) + '\n'
```

```python
import sys, struct, argparse
from asmlib import Asm
NAME = 'recurrent_scan__mha_block_cached__dense_activation_squared_relu__decode'

def f2u(x): return struct.unpack('<I', struct.pack('<f', x))[0]

HEADER = open('cdna_kernels/' + NAME + '.s.ref').read().split('; Override launch')[0]

L_XN, L_QP, L_O, L_Y, L_G, L_X, L_F, L_TOTAL = 0, 4096, 8192, 12288, 22528, 22784, 23040, 24576
W_ML, W_H, W_G, W_Y, W_SIZE = 0, 0x10000, 0x20000, 0x100000, 0x200000

def gen(D=5, D0=3, D0n=24, Dh=5, Dg=2, stamps=False, mimic=False, kvflags='nt', wflags='nt', sleep=16):
    a = Asm()
    A = a
    SPIN = 0x20000
    nst = [0]
    def stamp(i):
        if stamps: A(f's_memrealtime s[{76+2*i}:{77+2*i}]')
    def write_stamps(role):
        if not stamps: return
        n = nst[0]; nst[0] += 1
        A('s_waitcnt lgkmcnt(0)')
        A('s_cmp_lg_u32 s38, 0'); A(f's_cbranch_scc1 L_nostamp{n}')
        A('s_mov_b64 exec, -1')
        A('s_add_u32 s92, s32, 0x10000000'); A('s_addc_u32 s93, s33, 0'); A('s_mov_b32 s94, 0x100000'); A('s_mov_b32 s95, 0x20000')
        A('s_lshl_b32 s39, s2, 7'); A(f's_add_u32 s39, s39, {role*64}')
        A('v_and_b32 v2, 63, v0'); A('v_lshlrev_b32 v2, 24, v2')
        if role == 1:
            A('s_getreg_b32 s90, hwreg(HW_REG_XCC_ID)'); A('s_mov_b32 s91, 0')
        for q in range(4):
            for r in range(4): A(f'v_mov_b32 v{4+r}, s{76+4*q+r}')
            A(f'buffer_store_dwordx4 v[4:7], v2, s[92:95], s39 offen offset:{16*q}')
            A('s_waitcnt vmcnt(0)')
        A(f'L_nostamp{n}:')

    def bf16r(dst, src):
        A(f'v_cvt_pk_bf16_f32 v{dst}, v{src}, v{src}')
        A(f'v_lshlrev_b32 v{dst}, 16, v{dst}')

    def row_reduce(op, r, t):
        A(f'{op}_dpp v{t}, v{r}, v{r} row_ror:8 row_mask:0xf bank_mask:0xf')
        A(f'{op}_dpp v{r}, v{t}, v{t} row_ror:4 row_mask:0xf bank_mask:0xf')
        A(f'{op}_dpp v{t}, v{r}, v{r} row_ror:2 row_mask:0xf bank_mask:0xf')
        A(f'{op}_dpp v{r}, v{t}, v{t} row_ror:1 row_mask:0xf bank_mask:0xf')

    def col_reduce(x, t0, t1):
        A(f'v_add_f32_dpp v{t0}, v{x}, v{x} row_ror:8 row_mask:0xf bank_mask:0xf')
        A(f'v_add_f32_dpp v{t1}, v{x+2}, v{x+2} row_ror:8 row_mask:0xf bank_mask:0xf')
        A(f'v_add_f32_dpp v{t0}, v{x+1}, v{x+1} row_ror:8 row_mask:0xf bank_mask:0xc')
        A(f'v_add_f32_dpp v{t1}, v{x+3}, v{x+3} row_ror:8 row_mask:0xf bank_mask:0xc')
        A(f'v_permlane16_swap_b32 v{t0}, v{t1}')
        A(f'v_add_f32 v{t0}, v{t0}, v{t1}')
        A(f'v_mov_b32 v{t1}, v{t0}')
        A(f'v_permlane32_swap_b32 v{t0}, v{t1}')
        A(f'v_add_f32 v{t0}, v{t0}, v{t1}')

    A(f'{NAME}_kernel:')
    A('s_cmp_ge_u32 s2, 256'); A('s_cbranch_scc1 L_end')
    A('s_load_dwordx16 s[8:23], s[0:1], 0')
    A('s_load_dwordx8 s[24:31], s[0:1], 64')
    A('s_load_dwordx2 s[32:33], s[0:1], 96')
    if stamps:
        for i in range(76, 92): A(f's_mov_b32 s{i}, 0')
    stamp(0)
    A('v_lshrrev_b32 v2, 6, v0')
    A('v_and_b32 v1, 63, v0')
    A('v_readfirstlane_b32 s3, v2')
    A('s_and_b32 s34, s2, 7'); A('s_lshl_b32 s34, s34, 2'); A('s_lshr_b32 s35, s2, 6'); A('s_add_u32 s34, s34, s35')
    A('s_bfe_u32 s36, s2, 0x10005')
    A('s_bfe_u32 s37, s2, 0x20003')
    A('s_lshl_b32 s35, s36, 5'); A('s_add_u32 s35, s35, s34')
    A('s_and_b32 s38, s3, 3')
    A(f's_mov_b32 s50, {W_SIZE}'); A('s_mov_b32 s51, 0x20000'); A('s_mov_b32 s43, 0x20000')
    A('s_cmp_ge_u32 s3, 4'); A('s_cbranch_scc1 L_helper')

    Q, MASK, ACC, A0, A1 = 4, 8, 12, 16, 20
    P0, T01, T23, U, U2, M, Lr, MN, E1, E2, PP, VLDS, LANE = 24, 28, 29, 30, 31, 32, 33, 34, 35, 36, 37, 38, 39
    S, RING = 40, 72
    A('s_lshl_b32 s56, s35, 21'); A('s_lshl_b32 s57, s37, 19'); A('s_add_u32 s56, s56, s57')
    A('s_lshl_b32 s57, s38, 12'); A('s_add_u32 s56, s56, s57')
    A('s_sub_u32 s42, 0x80000, s57')
    A(f'v_mov_b32 v{LANE}, v1')
    A('v_lshlrev_b32 v1, 4, v1')
    A('s_and_b32 s58, s2, 31'); A('s_lshl_b32 s58, s58, 14')
    A('s_waitcnt lgkmcnt(0)')
    A('s_add_u32 s40, s10, s56'); A('s_addc_u32 s41, s11, 0')
    def issue(j, wait):
        i = j & 3
        if i == 0:
            A('s_mov_b32 s57, s58'); A('s_add_u32 s58, s58, 0x4000'); A('s_and_b32 s58, s58, 0x7ffff')
        if wait is not None: A(f's_waitcnt vmcnt({wait})')
        r = RING + 4 * j
        A(f'buffer_load_dwordx4 v[{r}:{r+3}], v1, s[40:43], s57 offen offset:{i*1024} {kvflags}')
    for j in range(32):
        d = D0 if j < D0n else D
        issue(j, None if j < d else d - 1)
        if j == D0 - 1:
            A('s_add_u32 s44, s12, s56'); A('s_addc_u32 s45, s13, 0')
            A('s_mov_b32 s48, s32'); A('s_mov_b32 s49, s33')
            A(f'v_and_b32 v2, 15, v{LANE}')
            A(f'v_lshrrev_b32 v3, 4, v{LANE}')
            A('v_and_b32 v16, 1, v2'); A('v_lshlrev_b32 v16, 4, v16'); A('v_mov_b32 v17, 0xffff'); A('v_lshlrev_b32 v16, v16, v17')
            A('v_lshrrev_b32 v17, 1, v2')
            for r in range(4):
                A(f'v_cmp_eq_u32 vcc, {r}, v17'); A(f'v_cndmask_b32 v{MASK+r}, 0, v16, vcc')
            A('v_lshrrev_b32 v16, 1, v3'); A('v_lshlrev_b32 v16, 9, v16'); A('v_and_b32 v17, 1, v3'); A('v_lshl_add_u32 v16, v17, 4, v16')
            A('v_lshl_add_u32 v16, v2, 5, v16')
            A('s_lshl_b32 s39, s38, 10'); A(f's_add_u32 s39, s39, {L_O}')
            A(f'v_add_u32 v{VLDS}, s39, v16')
            A('s_lshl_b32 s39, s36, 9'); A(f's_add_u32 s39, s39, {L_QP}')
            A('v_lshlrev_b32 v2, 5, v2'); A('v_add_u32 v2, s39, v2')
            A(f'v_mov_b32 v{M}, 0xff7fffff'); A(f'v_mov_b32 v{Lr}, 0')
            for r in range(4): A(f'v_mov_b32 v{ACC+r}, 0')
            A(f's_mov_b32 s61, {f2u(1.4426950408889634 * 128 ** -0.5):#x}')
            A(f's_mov_b32 s62, {f2u(128 ** -0.5):#x}'); A(f's_mov_b32 s63, {f2u(1.4426950408889634):#x}')
    stamp(1)
    A('s_barrier')
    stamp(2)
    for k in range(4):
        A(f'ds_read_b128 v[{S+8*k}:{S+8*k+3}], v2 offset:{k*1024}')
        A(f'ds_read_b128 v[{S+8*k+4}:{S+8*k+7}], v2 offset:{k*1024+16}')
    A('s_waitcnt lgkmcnt(0)')
    for j in range(8):
        A(f'v_add_f32 v{S+j}, v{S+j}, v{S+8+j}')
        A(f'v_add_f32 v{S+16+j}, v{S+16+j}, v{S+24+j}')
    for j in range(8):
        A(f'v_add_f32 v{S+j}, v{S+j}, v{S+16+j}')
    for r in range(4):
        A(f'v_cvt_pk_bf16_f32 v{Q+r}, v{S+2*r}, v{S+2*r+1}')
    A('s_mov_b32 s59, 0')
    A('L_kloop:')
    A('s_cmp_eq_u32 s59, 3')
    A('s_cselect_b32 s40, s44, s40'); A('s_cselect_b32 s41, s45, s41')
    for t in range(8):
        R = lambda i: RING + 4 * (4 * t + i)
        for i in range(4): A(f'v_dot2_f32_bf16 v{P0+i}, v{R(i)}, v{Q}, 0')
        for r in range(1, 4):
            for i in range(4): A(f'v_dot2c_f32_bf16 v{P0+i}, v{R(i)+r}, v{Q+r}')
        issue(4 * t + 0, D - 1)
        A(f'v_add_f32_dpp v{T01}, v{P0}, v{P0} row_ror:8 row_mask:0xf bank_mask:0xf')
        A(f'v_add_f32_dpp v{T23}, v{P0+2}, v{P0+2} row_ror:8 row_mask:0xf bank_mask:0xf')
        A(f'v_add_f32_dpp v{T01}, v{P0+1}, v{P0+1} row_ror:8 row_mask:0xf bank_mask:0xc')
        A(f'v_add_f32_dpp v{T23}, v{P0+3}, v{P0+3} row_ror:8 row_mask:0xf bank_mask:0xc')
        A(f'v_mov_b32 v{S+t}, v{S+8+t}')
        A(f'v_add_f32_dpp v{U}, v{T01}, v{T01} row_half_mirror row_mask:0xf bank_mask:0xf')
        A(f'v_add_f32_dpp v{U}, v{T23}, v{T23} row_half_mirror row_mask:0xf bank_mask:0xa')
        A(f'v_mov_b32 v{S+8+t}, v{S+16+t}')
        A(f'v_mov_b32 v{S+16+t}, v{S+24+t}')
        A(f'v_add_f32_dpp v{U2}, v{U}, v{U} quad_perm:[1,0,3,2] row_mask:0xf bank_mask:0xf')
        issue(4 * t + 1, D - 1)
        A(f'v_add_f32_dpp v{U}, v{U2}, v{U2} quad_perm:[2,3,0,1] row_mask:0xf bank_mask:0xf')
        if mimic:
            bf16r(U, U)
            A(f'v_mul_f32 v{U}, s62, v{U}')
            bf16r(U, U)
            A(f'v_mul_f32 v{S+24+t}, s63, v{U}')
        else:
            A(f'v_mul_f32 v{S+24+t}, s61, v{U}')
        A(f'v_max_f32 v{MN}, v{M}, v{S+24+t}')
        A(f'v_sub_f32 v{E1}, v{M}, v{MN}')
        A(f'v_sub_f32 v{E2}, v{S+24+t}, v{MN}')
        A(f'v_exp_f32 v{E1}, v{E1}')
        A(f'v_exp_f32 v{E2}, v{E2}')
        A(f'v_mov_b32 v{M}, v{MN}')
        A(f'v_fma_f32 v{Lr}, v{Lr}, v{E1}, v{E2}')
        issue(4 * t + 2, D - 1)
        issue(4 * t + 3, D - 1)
    A('s_add_u32 s59, s59, 1'); A('s_cmp_lt_u32 s59, 4'); A('s_cbranch_scc1 L_kloop')
    stamp(3)
    A(f'v_max_f32_dpp v{E1}, v{M}, v{M} row_ror:4 row_mask:0xf bank_mask:0xf')
    A(f'v_max_f32_dpp v{E2}, v{E1}, v{E1} row_ror:8 row_mask:0xf bank_mask:0xf')
    A(f'v_max_f32_dpp v{E2}, v{E2}, v{E2} row_bcast:15 row_mask:0xa bank_mask:0xf')
    A(f'v_max_f32_dpp v{E2}, v{E2}, v{E2} row_bcast:31 row_mask:0xc bank_mask:0xf')
    A(f'v_readlane_b32 s60, v{E2}, 63')
    A(f'v_subrev_f32 v{E1}, s60, v{M}')
    A(f'v_exp_f32 v{E1}, v{E1}')
    A(f'v_mul_f32 v{Lr}, v{Lr}, v{E1}')
    A(f'v_add_f32_dpp v{E1}, v{Lr}, v{Lr} row_ror:4 row_mask:0xf bank_mask:0xf')
    A(f'v_add_f32_dpp v{E2}, v{E1}, v{E1} row_ror:8 row_mask:0xf bank_mask:0xf')
    A(f'v_add_f32_dpp v{E2}, v{E2}, v{E2} row_bcast:15 row_mask:0xa bank_mask:0xf')
    A(f'v_add_f32_dpp v{E2}, v{E2}, v{E2} row_bcast:31 row_mask:0xc bank_mask:0xf')
    A(f'v_readlane_b32 s64, v{E2}, 63')
    A(f'v_mov_b32 v{T01}, s60')
    A(f'v_lshlrev_b32 v{U}, 24, v{LANE}')
    A(f'v_mov_b32 v{T23}, s64')
    A(f'v_min_u32 v{T01}, -2, v{T01}'); A(f'v_min_u32 v{T23}, -2, v{T23}')
    A('s_lshl_b32 s39, s37, 2'); A('s_add_u32 s39, s39, s38'); A('s_lshl_b32 s39, s39, 3')
    A('s_lshl_b32 s65, s35, 7'); A('s_add_u32 s39, s39, s65')
    A(f'buffer_store_dwordx2 v[{T01}:{T23}], v{U}, s[48:51], s39 offen sc1')
    A('s_mov_b32 s59, 0')
    A('L_vloop:')
    beta = [0, 2, 1, 3]
    for t in range(8):
        R = lambda i: RING + 4 * (4 * t + i)
        A(f'v_subrev_f32 v{E1}, s60, v{S+t}')
        A(f'v_exp_f32 v{E1}, v{E1}')
        A(f'v_mov_b32 v{S+t}, v{S+8+t}')
        A(f'v_cvt_pk_bf16_f32 v{PP}, v{E1}, v{E1}')
        A(f'v_mov_b32 v{S+8+t}, v{S+16+t}')
        A(f'v_mov_b32 v{S+16+t}, v{S+24+t}')
        def build(i):
            dst = A0 if i % 2 == 0 else A1
            for r in range(4):
                n = (2 * r - 4 * beta[i]) % 16
                if n == 0 or n == 2 - 16 % 16 and False:
                    A(f'v_and_b32 v{dst+r}, v{PP}, v{MASK+r}')
                else:
                    A(f'v_and_b32_dpp v{dst+r}, v{PP}, v{MASK+r} row_ror:{n} row_mask:0xf bank_mask:0xf')
        def mf(i):
            src = A0 if i % 2 == 0 else A1
            A(f'v_mfma_f32_16x16x32_bf16 v[{ACC}:{ACC+3}], v[{src}:{src+3}], v[{R(i)}:{R(i)+3}], v[{ACC}:{ACC+3}]')
        build(0); build(1); mf(0); build(2); mf(1); build(3); mf(2); mf(3)
        A('s_cmp_eq_u32 s59, 3')
        nextwait = 28 - 4 * (t + 1)
        if t < 7 and nextwait < D:
            A(f's_cbranch_scc0 L_vi{t}')
            A(f's_waitcnt vmcnt({nextwait})')
            A(f's_branch L_vc{t}')
            A(f'L_vi{t}:')
        else:
            A(f's_cbranch_scc1 L_vc{t}')
        for i in range(4): issue(4 * t + i, D - 1)
        if t < 7: A(f'L_vc{t}:')
    A('s_add_u32 s59, s59, 1'); A('s_branch L_vloop')
    A('L_vc7:')
    A('s_nop 7')
    A(f'ds_write_b128 v{VLDS}, v[{ACC}:{ACC+3}]')
    A('s_waitcnt lgkmcnt(0)')
    stamp(4)
    A('s_barrier')
    A('s_sub_u32 s59, s2, 32')
    A('s_cmp_lt_u32 s59, 40')
    A('s_cbranch_scc1 L_consumer')
    write_stamps(0)
    A('s_endpgm')
    A('L_consumer:')
    A('s_lshl_b32 s39, s59, 14'); A('s_lshl_b32 s57, s38, 12'); A('s_add_u32 s39, s39, s57'); A(f's_add_u32 s39, s39, {W_Y}')
    G0 = RING
    for j in range(4):
        A(f'buffer_load_dwordx4 v[{G0+4*j}:{G0+4*j+3}], v1, s[48:51], s39 offen offset:{j*1024} sc1')
    A(f'v_lshlrev_b32 v2, 2, v{LANE}')
    A(f'ds_read_b32 v{S}, v2 offset:{L_G}')
    A(f'ds_read_b32 v{S+1}, v2 offset:{L_X}')
    A(f'v_and_b32 v3, 7, v{LANE}'); A('v_lshlrev_b32 v3, 3, v3')
    A(f'v_bfe_u32 v16, v{LANE}, 4, 1'); A('v_lshl_add_u32 v3, v16, 2, v3')
    A(f'v_bfe_u32 v16, v{LANE}, 3, 1'); A('v_lshl_add_u32 v3, v16, 1, v3')
    A('s_lshl_b32 s57, s59, 6')
    A('s_mov_b32 s52, s28'); A('s_mov_b32 s53, s29'); A('s_mov_b32 s54, 2560'); A('s_mov_b32 s55, 0x20000')
    A('s_lshl_b32 s58, s38, 8')
    A('v_add_u32 v17, s58, v2')
    A(f's_mov_b32 s66, {SPIN}')
    A('s_barrier')
    A('L_ypoll:')
    A('s_waitcnt vmcnt(0)')
    for j in range(4):
        g = G0 + 4 * j
        A(f'v_max3_u32 v{P0+j}, v{g}, v{g+1}, v{g+2}')
    for j in range(4):
        g = G0 + 4 * j
        A(f'v_max_u32 v{P0+j}, v{P0+j}, v{g+3}')
    for j in range(4):
        A(f'v_cmp_eq_u32 s[{68+2*j}:{69+2*j}], -1, v{P0+j}')
    A('s_nop 0')
    A('s_or_b64 s[60:61], s[68:69], s[70:71]'); A('s_or_b64 s[62:63], s[72:73], s[74:75]'); A('s_or_b64 s[60:61], s[60:61], s[62:63]')
    A('s_cbranch_scc0 L_ydone')
    for j in range(4):
        A(f's_mov_b64 exec, s[{68+2*j}:{69+2*j}]')
        A(f's_cbranch_execz L_yskip{j}')
        A(f'buffer_load_dwordx4 v[{G0+4*j}:{G0+4*j+3}], v1, s[48:51], s39 offen offset:{j*1024} sc1')
        A(f'L_yskip{j}:')
    A('s_mov_b64 exec, -1')
    A('s_sub_u32 s66, s66, 1'); A('s_cmp_lg_u32 s66, 0'); A('s_cbranch_scc1 L_ypoll')
    A('L_ydone:')
    stamp(5)
    for r in range(4):
        A(f'v_add_f32 v{G0+r}, v{G0+r}, v{G0+4+r}')
        A(f'v_add_f32 v{G0+8+r}, v{G0+8+r}, v{G0+12+r}')
    for r in range(4):
        A(f'v_add_f32 v{G0+r}, v{G0+r}, v{G0+8+r}')
    col_reduce(G0, T01, T23)
    A(f'ds_write_b32 v17, v{T01} offset:{L_F}')
    A('s_waitcnt lgkmcnt(0)')
    A('s_barrier')
    A('s_cmp_lg_u32 s38, 0'); A('s_cbranch_scc1 L_end')
    for k in range(1, 4):
        A(f'ds_read_b32 v{P0+k}, v2 offset:{L_F + 256*k}')
    A('s_waitcnt lgkmcnt(0)')
    A(f'v_add_f32 v{T01}, v{T01}, v{P0+1}')
    A(f'v_add_f32 v{P0+2}, v{P0+2}, v{P0+3}')
    A(f'v_add_f32 v{T01}, v{T01}, v{P0+2}')
    bf16r(T01, T01)
    A(f'v_mul_f32 v{T01}, v{T01}, v{S}')
    bf16r(T01, T01)
    A(f'v_add_f32 v{T01}, v{T01}, v{S+1}')
    A(f'v_cvt_pk_bf16_f32 v{T01}, v{T01}, v{T01}')
    A(f'buffer_store_short v{T01}, v3, s[52:55], s57 offen')
    stamp(6)
    write_stamps(0)
    A('s_endpgm')

    SEL, HACC, HA0, HA1, XN, TMP, VX, VW, VY, VD, BUF = 4, 12, 32, 36, 40, 60, 92, 93, 94, 95, 96
    A('L_helper:')
    A('v_lshrrev_b32 v2, 4, v1')
    A('v_and_b32 v3, 15, v1')
    A('v_lshrrev_b32 v12, 5, v1'); A('v_mul_u32_u24 v12, 1280, v12'); A('v_and_b32 v13, 31, v1'); A(f'v_lshl_add_u32 v{VX}, v13, 3, v12')
    A(f'v_mul_u32_u24 v12, {40*8192}, v2'); A(f'v_lshl_add_u32 v{VW}, v3, 4, v12')
    A('v_lshrrev_b32 v12, 1, v2'); A('v_lshlrev_b32 v12, 9, v12'); A('v_and_b32 v13, 1, v2'); A('v_lshl_add_u32 v12, v13, 4, v12')
    A(f'v_lshl_add_u32 v{VD}, v3, 5, v12')
    A('s_mul_i32 s39, s38, 40'); A('v_add_u32 v12, s39, v1')
    A('v_lshrrev_b32 v13, 3, v12'); A('v_lshlrev_b32 v13, 14, v13'); A('v_and_b32 v12, 7, v12'); A('v_lshl_add_u32 v12, v12, 4, v13')
    A('s_mul_i32 s39, s36, 20'); A('s_lshl_b32 s39, s39, 14')
    A('s_lshl_b32 s56, s34, 2'); A('s_add_u32 s56, s56, s37'); A('s_lshl_b32 s56, s56, 7'); A('s_add_u32 s39, s39, s56'); A(f's_add_u32 s39, s39, {W_Y}')
    A('v_add_u32 v12, s39, v12')
    A('v_mov_b32 v13, 0x40000000')
    A('v_cmp_gt_u32 vcc, 40, v1'); A(f'v_cndmask_b32 v{VY}, v13, v12, vcc')
    for r in range(4): A(f'v_mov_b32 v{16+r}, -1')
    A('v_lshlrev_b32 v20, 24, v1')
    A('s_lshl_b32 s56, s34, 8'); A(f's_mul_i32 s57, s38, {160*8192}'); A('s_add_u32 s56, s56, s57')
    A(f's_sub_u32 s42, {640*8192}, s56')
    A('s_mov_b32 s46, 2560'); A('s_mov_b32 s47, 0x20000')
    A('s_waitcnt lgkmcnt(0)')
    A('s_mov_b32 s44, s8'); A('s_mov_b32 s45, s9')
    A('s_add_u32 s40, s14, s56'); A('s_addc_u32 s41, s15, 0')
    XR = TMP + 20
    XF = TMP
    for j in range(5):
        A(f'buffer_load_dwordx2 v[{XR+2*j}:{XR+2*j+1}], v{VX}, s[44:47], 0 offen offset:{j*256}')
    def wissue(i, stride):
        r = BUF + 4 * i
        A(f's_mov_b32 s57, {i*stride}')
        A(f'buffer_load_dwordx4 v[{r}:{r+3}], v{VW}, s[40:43], s57 offen {wflags}')
    for i in range(Dh): wissue(i, 8192)
    A('s_mov_b32 s48, s32'); A('s_mov_b32 s49, s33')
    A(f'buffer_store_dwordx4 v[16:19], v{VY}, s[48:51], 0 offen sc1')
    A('s_lshl_b32 s39, s37, 2'); A('s_add_u32 s39, s39, s38'); A('s_lshl_b32 s39, s39, 3')
    A('s_lshl_b32 s58, s35, 7'); A('s_add_u32 s39, s39, s58')
    A('buffer_store_dwordx2 v[16:17], v20, s[48:51], s39 offen sc1')
    NC = 2
    A('s_lshl_b32 s59, s2, 2'); A('s_add_u32 s59, s59, s38'); A('s_lshl_b32 s59, s59, 10'); A(f's_add_u32 s59, s59, {W_H}')
    A('s_cmp_ge_u32 s2, 14'); A('s_cbranch_scc1 L_noclrh')
    A(f'buffer_store_dwordx4 v[16:19], v{VD}, s[48:51], s59 offen sc1')
    A('L_noclrh:')
    def gaddr(dst):
        A(f'v_lshrrev_b32 v{dst}, 1, v2'); A(f'v_mul_u32_u24 v{dst}, 20, v{dst}'); A(f'v_lshrrev_b32 v{dst+1}, 2, v3'); A(f'v_add_u32 v{dst}, v{dst}, v{dst+1}')
        A(f'v_lshlrev_b32 v{dst}, 13, v{dst}')
        A(f'v_and_b32 v{dst+1}, 3, v3'); A(f'v_lshl_add_u32 v{dst}, v{dst+1}, 5, v{dst}')
        A(f'v_and_b32 v{dst+1}, 1, v2'); A(f'v_lshl_add_u32 v{dst}, v{dst+1}, 4, v{dst}')
    A('s_sub_u32 s60, s2, 16')
    A('s_cmp_ge_u32 s60, 14'); A('s_cbranch_scc1 L_noclrg')
    gaddr(21)
    A('s_lshl_b32 s39, s60, 2'); A('s_add_u32 s39, s39, s38'); A('s_lshl_b32 s39, s39, 7'); A(f's_add_u32 s39, s39, {W_G}')
    for cb in range(5):
        A(f'buffer_store_dwordx4 v[16:19], v21, s[48:51], s39 offen sc1')
        if cb < 4: A(f's_add_u32 s39, s39, {4*8192}')
    A('L_noclrg:')
    A('v_and_b32 v12, 7, v3'); A('v_lshrrev_b32 v13, 1, v12'); A('v_and_b32 v12, 1, v12')
    A('v_mov_b32 v14, 0x0c0c0c0c')
    A('v_cmp_eq_u32 vcc, 1, v12')
    A('v_mov_b32 v22, 0x0c0c0100'); A('v_mov_b32 v23, 0x01000c0c'); A('v_cndmask_b32 v22, v22, v23, vcc')
    A('v_mov_b32 v24, 0x0c0c0302'); A('v_mov_b32 v23, 0x03020c0c'); A('v_cndmask_b32 v24, v24, v23, vcc')
    for r in range(4):
        A(f'v_cmp_eq_u32 vcc, {r}, v13')
        A(f'v_cndmask_b32 v{SEL+r}, v14, v22, vcc')
        A(f'v_cndmask_b32 v{SEL+4+r}, v14, v24, vcc')
    for i in range(Dh, 2 * Dh):
        A(f's_waitcnt vmcnt({Dh - 1 + NC})')
        wissue(i, 8192)
    for j in range(10):
        A(f'v_lshlrev_b32 v{XF+2*j}, 16, v{XR+j}')
        A(f'v_and_b32 v{XF+2*j+1}, 0xffff0000, v{XR+j}')
    def half_reduce(r, t):
        row_reduce('v_add_f32', r, t)
        A(f'v_mov_b32 v{t}, v{r}')
        A(f'v_permlane16_swap_b32 v{r}, v{t}')
        A(f'v_add_f32 v{r}, v{r}, v{t}')
    A(f'v_add_f32 v12, v{XF}, v{XF+1}'); A(f'v_add_f32 v13, v{XF+2}, v{XF+3}')
    for j in range(4, 20, 2):
        A(f'v_add_f32 v12, v12, v{XF+j}'); A(f'v_add_f32 v13, v13, v{XF+j+1}')
    A('v_add_f32 v12, v12, v13')
    half_reduce(12, 13)
    A(f's_mov_b32 s39, {f2u(1.0/640):#x}')
    A('v_mul_f32 v12, s39, v12')
    A('v_mov_b32 v14, 0'); A('v_mov_b32 v15, 0')
    for j in range(0, 20, 2):
        A(f'v_sub_f32 v22, v{XF+j}, v12'); A(f'v_sub_f32 v23, v{XF+j+1}, v12')
        A('v_fmac_f32 v14, v22, v22'); A('v_fmac_f32 v15, v23, v23')
    A('v_add_f32 v14, v14, v15')
    half_reduce(14, 15)
    A('v_mul_f32 v14, s39, v14')
    bf16r(12, 12)
    bf16r(14, 14)
    A(f'v_add_f32 v14, {f2u(1e-5):#x}, v14')
    bf16r(14, 14)
    A('v_sqrt_f32 v14, v14')
    bf16r(14, 14)
    A('v_rcp_f32 v14, v14')
    for j in range(10):
        A(f'v_sub_f32 v{XF+2*j}, v{XF+2*j}, v12'); A(f'v_sub_f32 v{XF+2*j+1}, v{XF+2*j+1}, v12')
        A(f'v_cvt_pk_bf16_f32 v{XR+j}, v{XF+2*j}, v{XF+2*j+1}')
    for j in range(10):
        A(f'v_lshlrev_b32 v{XF+2*j}, 16, v{XR+j}'); A(f'v_and_b32 v{XF+2*j+1}, 0xffff0000, v{XR+j}')
        A(f'v_mul_f32 v{XF+2*j}, v14, v{XF+2*j}'); A(f'v_mul_f32 v{XF+2*j+1}, v14, v{XF+2*j+1}')
        A(f'v_cvt_pk_bf16_f32 v{XR+j}, v{XF+2*j}, v{XF+2*j+1}')
    for j in range(5):
        A(f'ds_write_b64 v{VX}, v[{XR+2*j}:{XR+2*j+1}] offset:{L_XN + j*256}')
    A('v_lshrrev_b32 v12, 3, v3'); A('v_mul_u32_u24 v12, 1280, v12'); A('v_mul_u32_u24 v13, 80, v2'); A('v_add_u32 v12, v12, v13')
    A('s_mul_i32 s39, s38, 320'); A('v_add_u32 v12, s39, v12')
    A('s_waitcnt lgkmcnt(0)')
    for j in range(5):
        A(f'ds_read_b128 v[{XN+4*j}:{XN+4*j+3}], v12 offset:{L_XN + 16*j}')
    A('s_waitcnt lgkmcnt(0)')
    stamp(1)
    def gemv1(lag, dd, stride):
        for i in range(40):
            if i + lag < 40:
                A(f's_waitcnt vmcnt({dd-1})'); wissue(i + lag, stride)
            elif 39 - i < dd:
                A(f's_waitcnt vmcnt({39-i})')
            dst = HA0 if i % 2 == 0 else HA1
            for r in range(4):
                A(f'v_perm_b32 v{dst+r}, v{XN+(i>>1)}, v{XN+(i>>1)}, v{SEL+4*(i&1)+r}')
            c = '0' if i == 0 else f'v[{HACC}:{HACC+3}]'
            A(f'v_mfma_f32_16x16x32_bf16 v[{HACC}:{HACC+3}], v[{dst}:{dst+3}], v[{BUF+4*i}:{BUF+4*i+3}], {c}')
    gemv1(2 * Dh, Dh, 8192)
    A('s_lshl_b32 s39, s38, 10'); A(f'v_add_u32 v16, s39, v{VD}')
    A(f'ds_write_b128 v16, v[{HACC}:{HACC+3}] offset:{L_QP}')
    A('s_waitcnt vmcnt(0) lgkmcnt(0)')
    stamp(2)
    A('s_barrier')
    A('s_mov_b32 s52, s30'); A('s_mov_b32 s53, s31'); A('s_mov_b32 s54, 256'); A('s_mov_b32 s55, 0x20000')
    A('s_cmp_lg_u32 s38, 0'); A('s_cbranch_scc1 L_noatom')
    A('v_mov_b32 v16, 1'); A('v_lshlrev_b32 v17, 24, v1')
    A('buffer_atomic_add v16, v17, s[52:55], 0 offen sc1')
    A('L_noatom:')
    A('s_cmp_ge_u32 s2, 14'); A('s_cbranch_scc1 L_nomlp1')
    A(f'v_mul_u32_u24 v16, {40*3456}, v2'); A(f'v_lshl_add_u32 v{VW}, v3, 4, v16')
    A('s_lshl_b32 s56, s2, 8'); A(f's_mul_i32 s57, s38, {160*3456}'); A('s_add_u32 s56, s56, s57')
    A('s_add_u32 s40, s20, s56'); A('s_addc_u32 s41, s21, 0'); A(f's_sub_u32 s42, {640*3456}, s56')
    for i in range(Dg): wissue(i, 3456)
    gemv1(Dg, Dg, 3456)
    for r in range(4): A(f'v_min_u32 v{HACC+r}, -2, v{HACC+r}')
    A(f'buffer_store_dwordx4 v[{HACC}:{HACC+3}], v{VD}, s[48:51], s59 offen sc1')
    A('L_nomlp1:')
    A(f'v_mul_u32_u24 v16, {8*1280}, v2'); A(f'v_lshl_add_u32 v{VW}, v3, 4, v16')
    A('s_cmp_ge_u32 s60, 14'); A('s_cbranch_scc1 L_wo')
    A('s_lshl_b32 s56, s60, 2'); A('s_add_u32 s56, s56, s38'); A(f's_mul_i32 s56, s56, {32*1280}')
    A(f's_min_u32 s56, s56, {1728*1280}')
    A('s_add_u32 s40, s24, s56'); A('s_addc_u32 s41, s25, 0'); A(f's_sub_u32 s42, {1728*1280}, s56')
    A('s_mov_b32 s62, 1')
    A('s_branch L_g2load')
    A('L_wo:')
    A('s_lshl_b32 s56, s34, 2'); A('s_add_u32 s56, s56, s38'); A(f's_mul_i32 s56, s56, {32*1280}')
    A('s_add_u32 s40, s16, s56'); A('s_addc_u32 s41, s17, 0'); A(f's_sub_u32 s42, {4096*1280}, s56')
    A('s_mov_b32 s62, 0')
    A('L_g2load:')
    for i in range(8):
        A(f's_mov_b32 s57, {i*1280}')
        for cb in range(5):
            n = i * 5 + cb
            if n >= Dg: A(f's_waitcnt vmcnt({Dg-1})')
            r = BUF + 4 * n
            A(f'buffer_load_dwordx4 v[{r}:{r+3}], v{VW}, s[40:43], s57 offen offset:{cb*256} {wflags}')
    A(f's_mov_b32 s63, {SPIN}')
    A('L_cntpoll:')
    A('buffer_load_dword v16, off, s[52:55], 0 sc1')
    A('s_waitcnt vmcnt(0)')
    A('v_readfirstlane_b32 s39, v16')
    A('s_cmp_ge_u32 s39, 256'); A('s_cbranch_scc1 L_cntdone')
    A(f's_sleep {sleep}')
    A('s_sub_u32 s63, s63, 1'); A('s_cmp_lg_u32 s63, 0'); A('s_cbranch_scc1 L_cntpoll')
    A('L_cntdone:')
    UU = XN
    A('s_cmp_eq_u32 s62, 1'); A('s_cbranch_scc1 L_mlp2prep')
    stamp(3)
    A('s_sub_u32 s61, s2, 32')
    A('s_cmp_ge_u32 s61, 40'); A('s_cbranch_scc1 L_nogate')
    A('s_cmp_lg_u32 s38, 0'); A('s_cbranch_scc1 L_nogate')
    A('v_lshlrev_b32 v16, 4, v1')
    A('s_lshl_b32 s39, s61, 13'); A(f's_add_u32 s39, s39, {W_G}'); A('s_add_u32 s56, s39, 4096')
    A('v_and_b32 v17, 7, v1'); A('v_lshlrev_b32 v17, 3, v17')
    A('v_bfe_u32 v18, v1, 4, 1'); A('v_lshl_add_u32 v17, v18, 2, v17')
    A('v_bfe_u32 v18, v1, 3, 1'); A('v_lshl_add_u32 v17, v18, 1, v17')
    A('s_lshl_b32 s57, s61, 6')
    A('buffer_load_ushort v20, v17, s[44:47], s57 offen')
    A('s_cmp_ge_u32 s61, 20'); A('s_cselect_b32 s58, 1280, 0'); A('s_sub_u32 s57, s57, s58')
    A('s_mov_b32 s68, s26'); A('s_mov_b32 s69, s27'); A('s_mov_b32 s70, 1280'); A('s_mov_b32 s71, 0x20000')
    A('buffer_load_ushort v21, v17, s[68:71], s57 offen')
    A(f's_mov_b32 s63, {SPIN}')
    A('L_gpoll:')
    for j in range(7):
        so = 's39' if j < 4 else 's56'
        A(f'buffer_load_dwordx4 v[{TMP+4*j}:{TMP+4*j+3}], v16, s[48:51], {so} offen offset:{(j&3)*1024} sc1')
    A('s_waitcnt vmcnt(0)')
    A(f'v_max_u32 v18, v{TMP}, v{TMP+1}')
    for j in range(2, 28, 2):
        A(f'v_max3_u32 v18, v18, v{TMP+j}, v{TMP+j+1}')
    A('v_cmp_eq_u32 vcc, -1, v18')
    A('s_nop 1')
    A('s_cmp_eq_u64 vcc, 0'); A('s_cbranch_scc1 L_gdone')
    A(f's_sleep {sleep}')
    A('s_sub_u32 s63, s63, 1'); A('s_cmp_lg_u32 s63, 0'); A('s_cbranch_scc1 L_gpoll')
    A('L_gdone:')
    for j in range(1, 7):
        for r in range(4): A(f'v_add_f32 v{TMP+r}, v{TMP+r}, v{TMP+4*j+r}')
    col_reduce(TMP, 18, 19)
    bf16r(18, 18)
    A('v_lshlrev_b32 v21, 16, v21'); A('v_lshlrev_b32 v20, 16, v20')
    A('v_add_f32 v18, v18, v21')
    bf16r(18, 18)
    A(f'v_mul_f32 v19, {f2u(-1.4426950408889634):#x}, v18')
    A('v_exp_f32 v19, v19')
    A('v_add_f32 v19, 1.0, v19')
    A('v_rcp_f32 v19, v19')
    A('v_mul_f32 v18, v18, v19')
    bf16r(18, 18)
    A('v_lshlrev_b32 v16, 2, v1')
    A(f'ds_write_b32 v16, v18 offset:{L_G}')
    A(f'ds_write_b32 v16, v20 offset:{L_X}')
    A('L_nogate:')
    stamp(4)
    A('v_lshlrev_b32 v16, 3, v3')
    A('s_lshl_b32 s39, s35, 7')
    A(f's_mov_b32 s63, {SPIN}')
    A('L_mlpoll:')
    A('buffer_load_dwordx2 v[18:19], v16, s[48:51], s39 offen sc1')
    A('s_waitcnt vmcnt(0)')
    A('v_max_u32 v20, v18, v19')
    A('v_cmp_eq_u32 vcc, -1, v20')
    A('s_nop 1')
    A('s_cmp_eq_u64 vcc, 0'); A('s_cbranch_scc1 L_mldone')
    A(f's_sleep {sleep}')
    A('s_sub_u32 s63, s63, 1'); A('s_cmp_lg_u32 s63, 0'); A('s_cbranch_scc1 L_mlpoll')
    A('L_mldone:')
    A('v_mov_b32 v20, v18')
    row_reduce('v_max_f32', 20, 21)
    A('v_sub_f32 v18, v18, v20')
    A('v_exp_f32 v18, v18')
    A('v_mul_f32 v19, v19, v18')
    row_reduce('v_add_f32', 19, 21)
    A('v_rcp_f32 v19, v19')
    A('v_mul_f32 v18, v18, v19')
    A('s_lshl_b32 s39, s37, 2')
    for w in range(4):
        A(f'v_readlane_b32 s{64+w}, v18, s39')
        if w < 3: A('s_add_u32 s39, s39, 1')
    A('s_lshl_b32 s39, s38, 7'); A('v_lshlrev_b32 v16, 5, v2'); A('v_add_u32 v16, s39, v16')
    A(f's_mul_i32 s39, s38, 2560'); A(f'v_and_b32 v44, 0x1ff, v{VD}'); A('v_add_u32 v44, s39, v44')
    A('s_mul_i32 s39, s38, 640'); A('v_lshlrev_b32 v45, 4, v1'); A('v_add_u32 v45, s39, v45')
    A('s_waitcnt vmcnt(0) lgkmcnt(0)')
    stamp(5)
    A('s_barrier')
    for w in range(4):
        A(f'ds_read_b128 v[{TMP+8*w}:{TMP+8*w+3}], v16 offset:{L_O + 1024*w}')
        A(f'ds_read_b128 v[{TMP+8*w+4}:{TMP+8*w+7}], v16 offset:{L_O + 1024*w + 16}')
    for w in range(4):
        A(f's_waitcnt lgkmcnt({6-2*w})')
        for j in range(8):
            if w == 0: A(f'v_mul_f32 v{TMP+j}, s64, v{TMP+j}')
            else: A(f'v_fmac_f32 v{TMP+j}, s{64+w}, v{TMP+8*w+j}')
    for r in range(4):
        A(f'v_cvt_pk_bf16_f32 v{UU+r}, v{TMP+2*r}, v{TMP+2*r+1}')
    A('L_g2comp:')
    def pbuild(i):
        dst = HA0 if i % 2 == 0 else HA1
        for r in range(4):
            A(f'v_perm_b32 v{dst+r}, v{UU+(i>>1)}, v{UU+(i>>1)}, v{SEL+4*(i&1)+r}')
    pbuild(0)
    for i in range(8):
        src = HA0 if i % 2 == 0 else HA1
        for cb in range(5):
            if cb == 1 and i < 7: pbuild(i + 1)
            n = i * 5 + cb
            c = '0' if i == 0 else f'v[{HACC+4*cb}:{HACC+4*cb+3}]'
            A(f'v_mfma_f32_16x16x32_bf16 v[{HACC+4*cb}:{HACC+4*cb+3}], v[{src}:{src+3}], v[{BUF+4*n}:{BUF+4*n+3}], {c}')
    A('s_cmp_eq_u32 s62, 1'); A('s_cbranch_scc1 L_mlp2store')
    for cb in range(5):
        A(f'ds_write_b128 v44, v[{HACC+4*cb}:{HACC+4*cb+3}] offset:{L_Y + 512*cb}')
    A('s_waitcnt lgkmcnt(0)')
    A('s_barrier')
    for k in range(4):
        A(f'ds_read_b128 v[{TMP+4*k}:{TMP+4*k+3}], v45 offset:{L_Y + 2560*k}')
    A('s_waitcnt lgkmcnt(2)')
    for r in range(4): A(f'v_add_f32 v{TMP+r}, v{TMP+r}, v{TMP+4+r}')
    A('s_waitcnt lgkmcnt(0)')
    for r in range(4): A(f'v_add_f32 v{TMP+8+r}, v{TMP+8+r}, v{TMP+12+r}')
    for r in range(4): A(f'v_add_f32 v{TMP+r}, v{TMP+r}, v{TMP+8+r}')
    for r in range(4): A(f'v_min_u32 v{TMP+r}, -2, v{TMP+r}')
    A(f'buffer_store_dwordx4 v[{TMP}:{TMP+3}], v{VY}, s[48:51], 0 offen sc1')
    stamp(6)
    write_stamps(1)
    A('s_endpgm')
    A('L_mlp2prep:')
    A('v_lshrrev_b32 v16, 3, v3'); A('v_lshlrev_b32 v16, 9, v16'); A('v_lshl_add_u32 v16, v2, 5, v16')
    A('s_lshl_b32 s39, s60, 12'); A('s_lshl_b32 s56, s38, 7'); A('s_add_u32 s39, s39, s56'); A(f's_add_u32 s39, s39, {W_H}')
    A('s_mov_b32 s68, s22'); A('s_mov_b32 s69, s23'); A(f's_mov_b32 s70, {1728*2}'); A('s_mov_b32 s71, 0x20000')
    A('s_lshl_b32 s56, s60, 2'); A('s_add_u32 s56, s56, s38'); A('s_lshl_b32 s57, s56, 6')
    A('v_lshlrev_b32 v17, 4, v2')
    A('buffer_load_dwordx4 v[20:23], v17, s[68:71], s57 offen')
    A(f's_mov_b32 s63, {SPIN}')
    A('L_hpoll:')
    for k in range(4):
        A(f'buffer_load_dwordx4 v[{TMP+8*k}:{TMP+8*k+3}], v16, s[48:51], s39 offen offset:{k*1024} sc1')
        A(f'buffer_load_dwordx4 v[{TMP+8*k+4}:{TMP+8*k+7}], v16, s[48:51], s39 offen offset:{k*1024+16} sc1')
    A('s_waitcnt vmcnt(0)')
    A(f'v_max_u32 v18, v{TMP}, v{TMP+1}')
    for j in range(2, 32, 2):
        A(f'v_max3_u32 v18, v18, v{TMP+j}, v{TMP+j+1}')
    A('v_cmp_eq_u32 vcc, -1, v18')
    A('s_nop 1')
    A('s_cmp_eq_u64 vcc, 0'); A('s_cbranch_scc1 L_hdone')
    A(f's_sleep {sleep}')
    A('s_sub_u32 s63, s63, 1'); A('s_cmp_lg_u32 s63, 0'); A('s_cbranch_scc1 L_hpoll')
    A('L_hdone:')
    for k in range(1, 4):
        for j in range(8): A(f'v_add_f32 v{TMP+j}, v{TMP+j}, v{TMP+8*k+j}')
    for j in range(8):
        bf16r(TMP + j, TMP + j)
        if j % 2 == 0: A(f'v_lshlrev_b32 v18, 16, v{20+j//2}')
        else: A(f'v_and_b32 v18, 0xffff0000, v{20+j//2}')
        A(f'v_add_f32 v{TMP+j}, v{TMP+j}, v18')
        bf16r(TMP + j, TMP + j)
        A(f'v_max_f32 v{TMP+j}, 0, v{TMP+j}')
        A(f'v_mul_f32 v{TMP+j}, v{TMP+j}, v{TMP+j}')
    A('s_cmp_ge_u32 s56, 54'); A('s_cselect_b32 s57, 0, -1')
    for r in range(4):
        A(f'v_cvt_pk_bf16_f32 v{UU+r}, v{TMP+2*r}, v{TMP+2*r+1}')
        A(f'v_and_b32 v{UU+r}, s57, v{UU+r}')
    A('s_branch L_g2comp')
    A('L_mlp2store:')
    gaddr(TMP)
    A('s_lshl_b32 s39, s60, 2'); A('s_add_u32 s39, s39, s38'); A('s_lshl_b32 s39, s39, 7'); A(f's_add_u32 s39, s39, {W_G}')
    A('s_nop 7')
    for cb in range(5):
        for r in range(4): A(f'v_min_u32 v{HACC+4*cb+r}, -2, v{HACC+4*cb+r}')
        A(f'buffer_store_dwordx4 v[{HACC+4*cb}:{HACC+4*cb+3}], v{TMP}, s[48:51], s39 offen sc1')
        if cb < 4: A(f's_add_u32 s39, s39, {4*8192}')
    A('s_branch L_wo')
    A('L_end:')
    A('s_endpgm')
    body = a.finalize()
    out = HEADER
    out += f'; @launch grid=(256,1,1) block=(512,1,1) lds={L_TOTAL}\n'
    out += '.amdgcn_target "amdgcn-amd-amdhsa--gfx950"\n.text\n'
    out += f'.globl {NAME}_kernel\n.p2align 8\n.type {NAME}_kernel,@function\n'
    out += body
    out += f'''.section .rodata,"a"
.p2align 6
.amdhsa_kernel {NAME}_kernel
  .amdhsa_next_free_vgpr 256
  .amdhsa_next_free_sgpr 96
  .amdhsa_accum_offset 256
  .amdhsa_group_segment_fixed_size 0
  .amdhsa_kernarg_size 104
  .amdhsa_user_sgpr_count 2
  .amdhsa_user_sgpr_kernarg_segment_ptr 1
  .amdhsa_system_sgpr_workgroup_id_x 1
.end_amdhsa_kernel
'''
    return out

if __name__ == '__main__':
    ap = argparse.ArgumentParser()
    ap.add_argument('out')
    ap.add_argument('opts', nargs='*')
    args = ap.parse_args()
    kw = {}
    for o in args.opts:
        k, v = o.split('=')
        kw[k] = v if k.endswith('flags') else int(v)
    open(args.out, 'w').write(gen(**kw))
```

```python
import sys, struct, argparse
from asmlib import Asm
NAME = 'recurrent_scan__mha_block_cached__dense_activation_squared_relu__decode'

def f2u(x): return struct.unpack('<I', struct.pack('<f', x))[0]

HEADER = open('cdna_kernels/' + NAME + '.s.ref').read().split('; Override launch')[0]

L_XN, L_QP, L_O, L_Y, L_G, L_X, L_F, L_TOTAL = 0, 4096, 8192, 12288, 22528, 22784, 23040, 24576
W_ML, W_H, W_G, W_Y, W_SIZE = 0, 0x10000, 0x20000, 0x100000, 0x200000

def gen(D=5, D0=3, D0n=24, Dh=5, Dg=2, stamps=False, mimic=False, kvflags='nt', wflags='nt', sleep=16, fixdur=0, kflags=None, vflags=None):
    if fixdur: stamps = True
    a = Asm()
    A = a
    SPIN = 0x20000
    nst = [0]
    def stamp(i):
        if stamps: A(f's_memrealtime s[{76+2*i}:{77+2*i}]')
    def write_stamps(role):
        if not stamps: return
        n = nst[0]; nst[0] += 1
        A('s_waitcnt lgkmcnt(0)')
        A('s_cmp_lg_u32 s38, 0'); A(f's_cbranch_scc1 L_nostamp{n}')
        A('s_mov_b64 exec, -1')
        A('s_add_u32 s92, s32, 0x10000000'); A('s_addc_u32 s93, s33, 0'); A('s_mov_b32 s94, 0x100000'); A('s_mov_b32 s95, 0x20000')
        A('s_lshl_b32 s39, s2, 7'); A(f's_add_u32 s39, s39, {role*64}')
        A('v_and_b32 v2, 63, v0'); A('v_lshlrev_b32 v2, 24, v2')
        if role == 1:
            A('s_getreg_b32 s90, hwreg(HW_REG_XCC_ID)'); A('s_mov_b32 s91, 0')
        for q in range(4):
            for r in range(4): A(f'v_mov_b32 v{4+r}, s{76+4*q+r}')
            A(f'buffer_store_dwordx4 v[4:7], v2, s[92:95], s39 offen offset:{16*q}')
            A('s_waitcnt vmcnt(0)')
        A(f'L_nostamp{n}:')

    def bf16r(dst, src):
        A(f'v_cvt_pk_bf16_f32 v{dst}, v{src}, v{src}')
        A(f'v_lshlrev_b32 v{dst}, 16, v{dst}')

    def row_reduce(op, r, t):
        A(f'{op}_dpp v{t}, v{r}, v{r} row_ror:8 row_mask:0xf bank_mask:0xf')
        A(f'{op}_dpp v{r}, v{t}, v{t} row_ror:4 row_mask:0xf bank_mask:0xf')
        A(f'{op}_dpp v{t}, v{r}, v{r} row_ror:2 row_mask:0xf bank_mask:0xf')
        A(f'{op}_dpp v{r}, v{t}, v{t} row_ror:1 row_mask:0xf bank_mask:0xf')

    def col_reduce(x, t0, t1):
        A(f'v_add_f32_dpp v{t0}, v{x}, v{x} row_ror:8 row_mask:0xf bank_mask:0xf')
        A(f'v_add_f32_dpp v{t1}, v{x+2}, v{x+2} row_ror:8 row_mask:0xf bank_mask:0xf')
        A(f'v_add_f32_dpp v{t0}, v{x+1}, v{x+1} row_ror:8 row_mask:0xf bank_mask:0xc')
        A(f'v_add_f32_dpp v{t1}, v{x+3}, v{x+3} row_ror:8 row_mask:0xf bank_mask:0xc')
        A(f'v_permlane16_swap_b32 v{t0}, v{t1}')
        A(f'v_add_f32 v{t0}, v{t0}, v{t1}')
        A(f'v_mov_b32 v{t1}, v{t0}')
        A(f'v_permlane32_swap_b32 v{t0}, v{t1}')
        A(f'v_add_f32 v{t0}, v{t0}, v{t1}')

    A(f'{NAME}_kernel:')
    A('s_cmp_ge_u32 s2, 256'); A('s_cbranch_scc1 L_end')
    A('s_load_dwordx16 s[8:23], s[0:1], 0')
    A('s_load_dwordx8 s[24:31], s[0:1], 64')
    A('s_load_dwordx2 s[32:33], s[0:1], 96')
    if stamps:
        for i in range(76, 92): A(f's_mov_b32 s{i}, 0')
    stamp(0)
    A('v_lshrrev_b32 v2, 6, v0')
    A('v_and_b32 v1, 63, v0')
    A('v_readfirstlane_b32 s3, v2')
    A('s_and_b32 s34, s2, 7'); A('s_lshl_b32 s34, s34, 2'); A('s_lshr_b32 s35, s2, 6'); A('s_add_u32 s34, s34, s35')
    A('s_bfe_u32 s36, s2, 0x10005')
    A('s_bfe_u32 s37, s2, 0x20003')
    A('s_lshl_b32 s35, s36, 5'); A('s_add_u32 s35, s35, s34')
    A('s_and_b32 s38, s3, 3')
    A(f's_mov_b32 s50, {W_SIZE}'); A('s_mov_b32 s51, 0x20000'); A('s_mov_b32 s43, 0x20000')
    A('s_cmp_ge_u32 s3, 4'); A('s_cbranch_scc1 L_helper')

    Q, MASK, ACC, A0, A1 = 4, 8, 12, 16, 20
    P0, T01, T23, U, U2, M, Lr, MN, E1, E2, PP, VLDS, LANE = 24, 28, 29, 30, 31, 32, 33, 34, 35, 36, 37, 38, 39
    S, RING = 40, 72
    A('s_lshl_b32 s56, s35, 21'); A('s_lshl_b32 s57, s37, 19'); A('s_add_u32 s56, s56, s57')
    A('s_lshl_b32 s57, s38, 12'); A('s_add_u32 s56, s56, s57')
    A('s_sub_u32 s42, 0x80000, s57')
    A(f'v_mov_b32 v{LANE}, v1')
    A('v_lshlrev_b32 v1, 4, v1')
    A('s_and_b32 s58, s2, 31'); A('s_lshl_b32 s58, s58, 14')
    A('s_waitcnt lgkmcnt(0)')
    A('s_add_u32 s40, s10, s56'); A('s_addc_u32 s41, s11, 0')
    def issue(j, wait):
        i = j & 3
        if i == 0:
            A('s_mov_b32 s57, s58'); A('s_add_u32 s58, s58, 0x4000'); A('s_and_b32 s58, s58, 0x7ffff')
        if wait is not None: A(f's_waitcnt vmcnt({wait})')
        r = RING + 4 * j
        A(f'buffer_load_dwordx4 v[{r}:{r+3}], v1, s[40:43], s57 offen offset:{i*1024} {kvflags}')
    for j in range(32):
        d = D0 if j < D0n else D
        issue(j, None if j < d else d - 1)
        if j == D0 - 1:
            A('s_add_u32 s44, s12, s56'); A('s_addc_u32 s45, s13, 0')
            A('s_mov_b32 s48, s32'); A('s_mov_b32 s49, s33')
            A(f'v_and_b32 v2, 15, v{LANE}')
            A(f'v_lshrrev_b32 v3, 4, v{LANE}')
            A('v_and_b32 v16, 1, v2'); A('v_lshlrev_b32 v16, 4, v16'); A('v_mov_b32 v17, 0xffff'); A('v_lshlrev_b32 v16, v16, v17')
            A('v_lshrrev_b32 v17, 1, v2')
            for r in range(4):
                A(f'v_cmp_eq_u32 vcc, {r}, v17'); A(f'v_cndmask_b32 v{MASK+r}, 0, v16, vcc')
            A('v_lshrrev_b32 v16, 1, v3'); A('v_lshlrev_b32 v16, 9, v16'); A('v_and_b32 v17, 1, v3'); A('v_lshl_add_u32 v16, v17, 4, v16')
            A('v_lshl_add_u32 v16, v2, 5, v16')
            A('s_lshl_b32 s39, s38, 10'); A(f's_add_u32 s39, s39, {L_O}')
            A(f'v_add_u32 v{VLDS}, s39, v16')
            A('s_lshl_b32 s39, s36, 9'); A(f's_add_u32 s39, s39, {L_QP}')
            A('v_lshlrev_b32 v2, 5, v2'); A('v_add_u32 v2, s39, v2')
            A(f'v_mov_b32 v{M}, 0xff7fffff'); A(f'v_mov_b32 v{Lr}, 0')
            for r in range(4): A(f'v_mov_b32 v{ACC+r}, 0')
            A(f's_mov_b32 s61, {f2u(1.4426950408889634 * 128 ** -0.5):#x}')
            A(f's_mov_b32 s62, {f2u(128 ** -0.5):#x}'); A(f's_mov_b32 s63, {f2u(1.4426950408889634):#x}')
    stamp(1)
    A('s_barrier')
    stamp(2)
    for k in range(4):
        A(f'ds_read_b128 v[{S+8*k}:{S+8*k+3}], v2 offset:{k*1024}')
        A(f'ds_read_b128 v[{S+8*k+4}:{S+8*k+7}], v2 offset:{k*1024+16}')
    A('s_waitcnt lgkmcnt(0)')
    for j in range(8):
        A(f'v_add_f32 v{S+j}, v{S+j}, v{S+8+j}')
        A(f'v_add_f32 v{S+16+j}, v{S+16+j}, v{S+24+j}')
    for j in range(8):
        A(f'v_add_f32 v{S+j}, v{S+j}, v{S+16+j}')
    for r in range(4):
        A(f'v_cvt_pk_bf16_f32 v{Q+r}, v{S+2*r}, v{S+2*r+1}')
    A('s_mov_b32 s59, 0')
    A('L_kloop:')
    A('s_cmp_eq_u32 s59, 3')
    A('s_cselect_b32 s40, s44, s40'); A('s_cselect_b32 s41, s45, s41')
    for t in range(8):
        R = lambda i: RING + 4 * (4 * t + i)
        for i in range(4): A(f'v_dot2_f32_bf16 v{P0+i}, v{R(i)}, v{Q}, 0')
        for r in range(1, 4):
            for i in range(4): A(f'v_dot2c_f32_bf16 v{P0+i}, v{R(i)+r}, v{Q+r}')
        issue(4 * t + 0, D - 1)
        A(f'v_add_f32_dpp v{T01}, v{P0}, v{P0} row_ror:8 row_mask:0xf bank_mask:0xf')
        A(f'v_add_f32_dpp v{T23}, v{P0+2}, v{P0+2} row_ror:8 row_mask:0xf bank_mask:0xf')
        A(f'v_add_f32_dpp v{T01}, v{P0+1}, v{P0+1} row_ror:8 row_mask:0xf bank_mask:0xc')
        A(f'v_add_f32_dpp v{T23}, v{P0+3}, v{P0+3} row_ror:8 row_mask:0xf bank_mask:0xc')
        A(f'v_mov_b32 v{S+t}, v{S+8+t}')
        A(f'v_add_f32_dpp v{U}, v{T01}, v{T01} row_half_mirror row_mask:0xf bank_mask:0xf')
        A(f'v_add_f32_dpp v{U}, v{T23}, v{T23} row_half_mirror row_mask:0xf bank_mask:0xa')
        A(f'v_mov_b32 v{S+8+t}, v{S+16+t}')
        A(f'v_mov_b32 v{S+16+t}, v{S+24+t}')
        A(f'v_add_f32_dpp v{U2}, v{U}, v{U} quad_perm:[1,0,3,2] row_mask:0xf bank_mask:0xf')
        issue(4 * t + 1, D - 1)
        A(f'v_add_f32_dpp v{U}, v{U2}, v{U2} quad_perm:[2,3,0,1] row_mask:0xf bank_mask:0xf')
        if mimic:
            bf16r(U, U)
            A(f'v_mul_f32 v{U}, s62, v{U}')
            bf16r(U, U)
            A(f'v_mul_f32 v{S+24+t}, s63, v{U}')
        else:
            A(f'v_mul_f32 v{S+24+t}, s61, v{U}')
        A(f'v_max_f32 v{MN}, v{M}, v{S+24+t}')
        A(f'v_sub_f32 v{E1}, v{M}, v{MN}')
        A(f'v_sub_f32 v{E2}, v{S+24+t}, v{MN}')
        A(f'v_exp_f32 v{E1}, v{E1}')
        A(f'v_exp_f32 v{E2}, v{E2}')
        A(f'v_mov_b32 v{M}, v{MN}')
        A(f'v_fma_f32 v{Lr}, v{Lr}, v{E1}, v{E2}')
        issue(4 * t + 2, D - 1)
        issue(4 * t + 3, D - 1)
    A('s_add_u32 s59, s59, 1'); A('s_cmp_lt_u32 s59, 4'); A('s_cbranch_scc1 L_kloop')
    stamp(3)
    A(f'v_max_f32_dpp v{E1}, v{M}, v{M} row_ror:4 row_mask:0xf bank_mask:0xf')
    A(f'v_max_f32_dpp v{E2}, v{E1}, v{E1} row_ror:8 row_mask:0xf bank_mask:0xf')
    A(f'v_max_f32_dpp v{E2}, v{E2}, v{E2} row_bcast:15 row_mask:0xa bank_mask:0xf')
    A(f'v_max_f32_dpp v{E2}, v{E2}, v{E2} row_bcast:31 row_mask:0xc bank_mask:0xf')
    A(f'v_readlane_b32 s60, v{E2}, 63')
    A(f'v_subrev_f32 v{E1}, s60, v{M}')
    A(f'v_exp_f32 v{E1}, v{E1}')
    A(f'v_mul_f32 v{Lr}, v{Lr}, v{E1}')
    A(f'v_add_f32_dpp v{E1}, v{Lr}, v{Lr} row_ror:4 row_mask:0xf bank_mask:0xf')
    A(f'v_add_f32_dpp v{E2}, v{E1}, v{E1} row_ror:8 row_mask:0xf bank_mask:0xf')
    A(f'v_add_f32_dpp v{E2}, v{E2}, v{E2} row_bcast:15 row_mask:0xa bank_mask:0xf')
    A(f'v_add_f32_dpp v{E2}, v{E2}, v{E2} row_bcast:31 row_mask:0xc bank_mask:0xf')
    A(f'v_readlane_b32 s64, v{E2}, 63')
    A(f'v_mov_b32 v{T01}, s60')
    A(f'v_lshlrev_b32 v{U}, 24, v{LANE}')
    A(f'v_mov_b32 v{T23}, s64')
    A(f'v_min_u32 v{T01}, -2, v{T01}'); A(f'v_min_u32 v{T23}, -2, v{T23}')
    A('s_lshl_b32 s39, s37, 2'); A('s_add_u32 s39, s39, s38'); A('s_lshl_b32 s39, s39, 3')
    A('s_lshl_b32 s65, s35, 7'); A('s_add_u32 s39, s39, s65')
    A(f'buffer_store_dwordx2 v[{T01}:{T23}], v{U}, s[48:51], s39 offen sc1')
    A('s_mov_b32 s59, 0')
    A('L_vloop:')
    beta = [0, 2, 1, 3]
    for t in range(8):
        R = lambda i: RING + 4 * (4 * t + i)
        A(f'v_subrev_f32 v{E1}, s60, v{S+t}')
        A(f'v_exp_f32 v{E1}, v{E1}')
        A(f'v_mov_b32 v{S+t}, v{S+8+t}')
        A(f'v_cvt_pk_bf16_f32 v{PP}, v{E1}, v{E1}')
        A(f'v_mov_b32 v{S+8+t}, v{S+16+t}')
        A(f'v_mov_b32 v{S+16+t}, v{S+24+t}')
        def build(i):
            dst = A0 if i % 2 == 0 else A1
            for r in range(4):
                n = (2 * r - 4 * beta[i]) % 16
                if n == 0 or n == 2 - 16 % 16 and False:
                    A(f'v_and_b32 v{dst+r}, v{PP}, v{MASK+r}')
                else:
                    A(f'v_and_b32_dpp v{dst+r}, v{PP}, v{MASK+r} row_ror:{n} row_mask:0xf bank_mask:0xf')
        def mf(i):
            src = A0 if i % 2 == 0 else A1
            A(f'v_mfma_f32_16x16x32_bf16 v[{ACC}:{ACC+3}], v[{src}:{src+3}], v[{R(i)}:{R(i)+3}], v[{ACC}:{ACC+3}]')
        build(0); build(1); mf(0); build(2); mf(1); build(3); mf(2); mf(3)
        A('s_cmp_eq_u32 s59, 3')
        nextwait = 28 - 4 * (t + 1)
        if t < 7 and nextwait < D:
            A(f's_cbranch_scc0 L_vi{t}')
            A(f's_waitcnt vmcnt({nextwait})')
            A(f's_branch L_vc{t}')
            A(f'L_vi{t}:')
        else:
            A(f's_cbranch_scc1 L_vc{t}')
        for i in range(4): issue(4 * t + i, D - 1)
        if t < 7: A(f'L_vc{t}:')
    A('s_add_u32 s59, s59, 1'); A('s_branch L_vloop')
    A('L_vc7:')
    A('s_nop 7')
    A(f'ds_write_b128 v{VLDS}, v[{ACC}:{ACC+3}]')
    A('s_waitcnt lgkmcnt(0)')
    stamp(4)
    A('s_barrier')
    A('s_sub_u32 s59, s2, 32')
    A('s_cmp_lt_u32 s59, 40')
    A('s_cbranch_scc1 L_consumer')
    write_stamps(0)
    A('s_endpgm')
    A('L_consumer:')
    A('s_lshl_b32 s39, s59, 14'); A('s_lshl_b32 s57, s38, 12'); A('s_add_u32 s39, s39, s57'); A(f's_add_u32 s39, s39, {W_Y}')
    G0 = RING
    for j in range(4):
        A(f'buffer_load_dwordx4 v[{G0+4*j}:{G0+4*j+3}], v1, s[48:51], s39 offen offset:{j*1024} sc1')
    A(f'v_lshlrev_b32 v2, 2, v{LANE}')
    A(f'ds_read_b32 v{S}, v2 offset:{L_G}')
    A(f'ds_read_b32 v{S+1}, v2 offset:{L_X}')
    A(f'v_and_b32 v3, 7, v{LANE}'); A('v_lshlrev_b32 v3, 3, v3')
    A(f'v_bfe_u32 v16, v{LANE}, 4, 1'); A('v_lshl_add_u32 v3, v16, 2, v3')
    A(f'v_bfe_u32 v16, v{LANE}, 3, 1'); A('v_lshl_add_u32 v3, v16, 1, v3')
    A('s_lshl_b32 s57, s59, 6')
    A('s_mov_b32 s52, s28'); A('s_mov_b32 s53, s29'); A('s_mov_b32 s54, 2560'); A('s_mov_b32 s55, 0x20000')
    A('s_lshl_b32 s58, s38, 8')
    A('v_add_u32 v17, s58, v2')
    A(f's_mov_b32 s66, {SPIN}')
    A('s_barrier')
    A('L_ypoll:')
    A('s_waitcnt vmcnt(0)')
    for j in range(4):
        g = G0 + 4 * j
        A(f'v_max3_u32 v{P0+j}, v{g}, v{g+1}, v{g+2}')
    for j in range(4):
        g = G0 + 4 * j
        A(f'v_max_u32 v{P0+j}, v{P0+j}, v{g+3}')
    for j in range(4):
        A(f'v_cmp_eq_u32 s[{68+2*j}:{69+2*j}], -1, v{P0+j}')
    A('s_nop 0')
    A('s_or_b64 s[60:61], s[68:69], s[70:71]'); A('s_or_b64 s[62:63], s[72:73], s[74:75]'); A('s_or_b64 s[60:61], s[60:61], s[62:63]')
    A('s_cbranch_scc0 L_ydone')
    for j in range(4):
        A(f's_mov_b64 exec, s[{68+2*j}:{69+2*j}]')
        A(f's_cbranch_execz L_yskip{j}')
        A(f'buffer_load_dwordx4 v[{G0+4*j}:{G0+4*j+3}], v1, s[48:51], s39 offen offset:{j*1024} sc1')
        A(f'L_yskip{j}:')
    A('s_mov_b64 exec, -1')
    A('s_sub_u32 s66, s66, 1'); A('s_cmp_lg_u32 s66, 0'); A('s_cbranch_scc1 L_ypoll')
    A('L_ydone:')
    stamp(5)
    for r in range(4):
        A(f'v_add_f32 v{G0+r}, v{G0+r}, v{G0+4+r}')
        A(f'v_add_f32 v{G0+8+r}, v{G0+8+r}, v{G0+12+r}')
    for r in range(4):
        A(f'v_add_f32 v{G0+r}, v{G0+r}, v{G0+8+r}')
    col_reduce(G0, T01, T23)
    A(f'ds_write_b32 v17, v{T01} offset:{L_F}')
    A('s_waitcnt lgkmcnt(0)')
    A('s_barrier')
    A('s_cmp_lg_u32 s38, 0'); A('s_cbranch_scc1 L_end')
    for k in range(1, 4):
        A(f'ds_read_b32 v{P0+k}, v2 offset:{L_F + 256*k}')
    A('s_waitcnt lgkmcnt(0)')
    A(f'v_add_f32 v{T01}, v{T01}, v{P0+1}')
    A(f'v_add_f32 v{P0+2}, v{P0+2}, v{P0+3}')
    A(f'v_add_f32 v{T01}, v{T01}, v{P0+2}')
    bf16r(T01, T01)
    A(f'v_mul_f32 v{T01}, v{T01}, v{S}')
    bf16r(T01, T01)
    A(f'v_add_f32 v{T01}, v{T01}, v{S+1}')
    A(f'v_cvt_pk_bf16_f32 v{T01}, v{T01}, v{T01}')
    A(f'buffer_store_short v{T01}, v3, s[52:55], s57 offen')
    stamp(6)
    if fixdur:
        A('L_fix:')
        A('s_memrealtime s[90:91]'); A('s_waitcnt lgkmcnt(0)')
        A('s_sub_u32 s90, s90, s76'); A(f's_cmp_lt_u32 s90, {fixdur}'); A('s_cbranch_scc1 L_fix')
    write_stamps(0)
    A('s_endpgm')

    SEL, HACC, HA0, HA1, XN, TMP, VX, VW, VY, VD, BUF = 4, 12, 32, 36, 40, 60, 92, 93, 94, 95, 96
    A('L_helper:')
    A('v_lshrrev_b32 v2, 4, v1')
    A('v_and_b32 v3, 15, v1')
    A('v_lshrrev_b32 v12, 5, v1'); A('v_mul_u32_u24 v12, 1280, v12'); A('v_and_b32 v13, 31, v1'); A(f'v_lshl_add_u32 v{VX}, v13, 3, v12')
    A(f'v_mul_u32_u24 v12, {40*8192}, v2'); A(f'v_lshl_add_u32 v{VW}, v3, 4, v12')
    A('v_lshrrev_b32 v12, 1, v2'); A('v_lshlrev_b32 v12, 9, v12'); A('v_and_b32 v13, 1, v2'); A('v_lshl_add_u32 v12, v13, 4, v12')
    A(f'v_lshl_add_u32 v{VD}, v3, 5, v12')
    A('s_mul_i32 s39, s38, 40'); A('v_add_u32 v12, s39, v1')
    A('v_lshrrev_b32 v13, 3, v12'); A('v_lshlrev_b32 v13, 14, v13'); A('v_and_b32 v12, 7, v12'); A('v_lshl_add_u32 v12, v12, 4, v13')
    A('s_mul_i32 s39, s36, 20'); A('s_lshl_b32 s39, s39, 14')
    A('s_lshl_b32 s56, s34, 2'); A('s_add_u32 s56, s56, s37'); A('s_lshl_b32 s56, s56, 7'); A('s_add_u32 s39, s39, s56'); A(f's_add_u32 s39, s39, {W_Y}')
    A('v_add_u32 v12, s39, v12')
    A('v_mov_b32 v13, 0x40000000')
    A('v_cmp_gt_u32 vcc, 40, v1'); A(f'v_cndmask_b32 v{VY}, v13, v12, vcc')
    for r in range(4): A(f'v_mov_b32 v{16+r}, -1')
    A('v_lshlrev_b32 v20, 24, v1')
    A('s_lshl_b32 s56, s34, 8'); A(f's_mul_i32 s57, s38, {160*8192}'); A('s_add_u32 s56, s56, s57')
    A(f's_sub_u32 s42, {640*8192}, s56')
    A('s_mov_b32 s46, 2560'); A('s_mov_b32 s47, 0x20000')
    A('s_waitcnt lgkmcnt(0)')
    A('s_mov_b32 s44, s8'); A('s_mov_b32 s45, s9')
    A('s_add_u32 s40, s14, s56'); A('s_addc_u32 s41, s15, 0')
    XR = TMP + 20
    XF = TMP
    for j in range(5):
        A(f'buffer_load_dwordx2 v[{XR+2*j}:{XR+2*j+1}], v{VX}, s[44:47], 0 offen offset:{j*256}')
    def wissue(i, stride):
        r = BUF + 4 * i
        A(f's_mov_b32 s57, {i*stride}')
        A(f'buffer_load_dwordx4 v[{r}:{r+3}], v{VW}, s[40:43], s57 offen {wflags}')
    for i in range(Dh): wissue(i, 8192)
    A('s_mov_b32 s48, s32'); A('s_mov_b32 s49, s33')
    A(f'buffer_store_dwordx4 v[16:19], v{VY}, s[48:51], 0 offen sc1')
    A('s_lshl_b32 s39, s37, 2'); A('s_add_u32 s39, s39, s38'); A('s_lshl_b32 s39, s39, 3')
    A('s_lshl_b32 s58, s35, 7'); A('s_add_u32 s39, s39, s58')
    A('buffer_store_dwordx2 v[16:17], v20, s[48:51], s39 offen sc1')
    NC = 2
    A('s_lshl_b32 s59, s2, 2'); A('s_add_u32 s59, s59, s38'); A('s_lshl_b32 s59, s59, 10'); A(f's_add_u32 s59, s59, {W_H}')
    A('s_cmp_ge_u32 s2, 14'); A('s_cbranch_scc1 L_noclrh')
    A(f'buffer_store_dwordx4 v[16:19], v{VD}, s[48:51], s59 offen sc1')
    A('L_noclrh:')
    def gaddr(dst):
        A(f'v_lshrrev_b32 v{dst}, 1, v2'); A(f'v_mul_u32_u24 v{dst}, 20, v{dst}'); A(f'v_lshrrev_b32 v{dst+1}, 2, v3'); A(f'v_add_u32 v{dst}, v{dst}, v{dst+1}')
        A(f'v_lshlrev_b32 v{dst}, 13, v{dst}')
        A(f'v_and_b32 v{dst+1}, 3, v3'); A(f'v_lshl_add_u32 v{dst}, v{dst+1}, 5, v{dst}')
        A(f'v_and_b32 v{dst+1}, 1, v2'); A(f'v_lshl_add_u32 v{dst}, v{dst+1}, 4, v{dst}')
    A('s_sub_u32 s60, s2, 16')
    A('s_cmp_ge_u32 s60, 14'); A('s_cbranch_scc1 L_noclrg')
    gaddr(21)
    A('s_lshl_b32 s39, s60, 2'); A('s_add_u32 s39, s39, s38'); A('s_lshl_b32 s39, s39, 7'); A(f's_add_u32 s39, s39, {W_G}')
    for cb in range(5):
        A(f'buffer_store_dwordx4 v[16:19], v21, s[48:51], s39 offen sc1')
        if cb < 4: A(f's_add_u32 s39, s39, {4*8192}')
    A('L_noclrg:')
    A('v_and_b32 v12, 7, v3'); A('v_lshrrev_b32 v13, 1, v12'); A('v_and_b32 v12, 1, v12')
    A('v_mov_b32 v14, 0x0c0c0c0c')
    A('v_cmp_eq_u32 vcc, 1, v12')
    A('v_mov_b32 v22, 0x0c0c0100'); A('v_mov_b32 v23, 0x01000c0c'); A('v_cndmask_b32 v22, v22, v23, vcc')
    A('v_mov_b32 v24, 0x0c0c0302'); A('v_mov_b32 v23, 0x03020c0c'); A('v_cndmask_b32 v24, v24, v23, vcc')
    for r in range(4):
        A(f'v_cmp_eq_u32 vcc, {r}, v13')
        A(f'v_cndmask_b32 v{SEL+r}, v14, v22, vcc')
        A(f'v_cndmask_b32 v{SEL+4+r}, v14, v24, vcc')
    for i in range(Dh, 2 * Dh):
        A(f's_waitcnt vmcnt({Dh - 1 + NC})')
        wissue(i, 8192)
    for j in range(10):
        A(f'v_lshlrev_b32 v{XF+2*j}, 16, v{XR+j}')
        A(f'v_and_b32 v{XF+2*j+1}, 0xffff0000, v{XR+j}')
    def half_reduce(r, t):
        row_reduce('v_add_f32', r, t)
        A(f'v_mov_b32 v{t}, v{r}')
        A(f'v_permlane16_swap_b32 v{r}, v{t}')
        A(f'v_add_f32 v{r}, v{r}, v{t}')
    A(f'v_add_f32 v12, v{XF}, v{XF+1}'); A(f'v_add_f32 v13, v{XF+2}, v{XF+3}')
    for j in range(4, 20, 2):
        A(f'v_add_f32 v12, v12, v{XF+j}'); A(f'v_add_f32 v13, v13, v{XF+j+1}')
    A('v_add_f32 v12, v12, v13')
    half_reduce(12, 13)
    A(f's_mov_b32 s39, {f2u(1.0/640):#x}')
    A('v_mul_f32 v12, s39, v12')
    A('v_mov_b32 v14, 0'); A('v_mov_b32 v15, 0')
    for j in range(0, 20, 2):
        A(f'v_sub_f32 v22, v{XF+j}, v12'); A(f'v_sub_f32 v23, v{XF+j+1}, v12')
        A('v_fmac_f32 v14, v22, v22'); A('v_fmac_f32 v15, v23, v23')
    A('v_add_f32 v14, v14, v15')
    half_reduce(14, 15)
    A('v_mul_f32 v14, s39, v14')
    bf16r(12, 12)
    bf16r(14, 14)
    A(f'v_add_f32 v14, {f2u(1e-5):#x}, v14')
    bf16r(14, 14)
    A('v_sqrt_f32 v14, v14')
    bf16r(14, 14)
    A('v_rcp_f32 v14, v14')
    for j in range(10):
        A(f'v_sub_f32 v{XF+2*j}, v{XF+2*j}, v12'); A(f'v_sub_f32 v{XF+2*j+1}, v{XF+2*j+1}, v12')
        A(f'v_cvt_pk_bf16_f32 v{XR+j}, v{XF+2*j}, v{XF+2*j+1}')
    for j in range(10):
        A(f'v_lshlrev_b32 v{XF+2*j}, 16, v{XR+j}'); A(f'v_and_b32 v{XF+2*j+1}, 0xffff0000, v{XR+j}')
        A(f'v_mul_f32 v{XF+2*j}, v14, v{XF+2*j}'); A(f'v_mul_f32 v{XF+2*j+1}, v14, v{XF+2*j+1}')
        A(f'v_cvt_pk_bf16_f32 v{XR+j}, v{XF+2*j}, v{XF+2*j+1}')
    for j in range(5):
        A(f'ds_write_b64 v{VX}, v[{XR+2*j}:{XR+2*j+1}] offset:{L_XN + j*256}')
    A('v_lshrrev_b32 v12, 3, v3'); A('v_mul_u32_u24 v12, 1280, v12'); A('v_mul_u32_u24 v13, 80, v2'); A('v_add_u32 v12, v12, v13')
    A('s_mul_i32 s39, s38, 320'); A('v_add_u32 v12, s39, v12')
    A('s_waitcnt lgkmcnt(0)')
    for j in range(5):
        A(f'ds_read_b128 v[{XN+4*j}:{XN+4*j+3}], v12 offset:{L_XN + 16*j}')
    A('s_waitcnt lgkmcnt(0)')
    stamp(1)
    def gemv1(lag, dd, stride):
        for i in range(40):
            if i + lag < 40:
                A(f's_waitcnt vmcnt({dd-1})'); wissue(i + lag, stride)
            elif 39 - i < dd:
                A(f's_waitcnt vmcnt({39-i})')
            dst = HA0 if i % 2 == 0 else HA1
            for r in range(4):
                A(f'v_perm_b32 v{dst+r}, v{XN+(i>>1)}, v{XN+(i>>1)}, v{SEL+4*(i&1)+r}')
            c = '0' if i == 0 else f'v[{HACC}:{HACC+3}]'
            A(f'v_mfma_f32_16x16x32_bf16 v[{HACC}:{HACC+3}], v[{dst}:{dst+3}], v[{BUF+4*i}:{BUF+4*i+3}], {c}')
    gemv1(2 * Dh, Dh, 8192)
    A('s_lshl_b32 s39, s38, 10'); A(f'v_add_u32 v16, s39, v{VD}')
    A(f'ds_write_b128 v16, v[{HACC}:{HACC+3}] offset:{L_QP}')
    A('s_waitcnt vmcnt(0) lgkmcnt(0)')
    stamp(2)
    A('s_barrier')
    A('s_mov_b32 s52, s30'); A('s_mov_b32 s53, s31'); A('s_mov_b32 s54, 256'); A('s_mov_b32 s55, 0x20000')
    A('s_cmp_lg_u32 s38, 0'); A('s_cbranch_scc1 L_noatom')
    A('v_mov_b32 v16, 1'); A('v_lshlrev_b32 v17, 24, v1')
    A('buffer_atomic_add v16, v17, s[52:55], 0 offen sc1')
    A('L_noatom:')
    A('s_cmp_ge_u32 s2, 14'); A('s_cbranch_scc1 L_nomlp1')
    A(f'v_mul_u32_u24 v16, {40*3456}, v2'); A(f'v_lshl_add_u32 v{VW}, v3, 4, v16')
    A('s_lshl_b32 s56, s2, 8'); A(f's_mul_i32 s57, s38, {160*3456}'); A('s_add_u32 s56, s56, s57')
    A('s_add_u32 s40, s20, s56'); A('s_addc_u32 s41, s21, 0'); A(f's_sub_u32 s42, {640*3456}, s56')
    for i in range(Dg): wissue(i, 3456)
    gemv1(Dg, Dg, 3456)
    for r in range(4): A(f'v_min_u32 v{HACC+r}, -2, v{HACC+r}')
    A(f'buffer_store_dwordx4 v[{HACC}:{HACC+3}], v{VD}, s[48:51], s59 offen sc1')
    A('L_nomlp1:')
    A(f'v_mul_u32_u24 v16, {8*1280}, v2'); A(f'v_lshl_add_u32 v{VW}, v3, 4, v16')
    A('s_cmp_ge_u32 s60, 14'); A('s_cbranch_scc1 L_wo')
    A('s_lshl_b32 s56, s60, 2'); A('s_add_u32 s56, s56, s38'); A(f's_mul_i32 s56, s56, {32*1280}')
    A(f's_min_u32 s56, s56, {1728*1280}')
    A('s_add_u32 s40, s24, s56'); A('s_addc_u32 s41, s25, 0'); A(f's_sub_u32 s42, {1728*1280}, s56')
    A('s_mov_b32 s62, 1')
    A('s_branch L_g2load')
    A('L_wo:')
    A('s_lshl_b32 s56, s34, 2'); A('s_add_u32 s56, s56, s38'); A(f's_mul_i32 s56, s56, {32*1280}')
    A('s_add_u32 s40, s16, s56'); A('s_addc_u32 s41, s17, 0'); A(f's_sub_u32 s42, {4096*1280}, s56')
    A('s_mov_b32 s62, 0')
    A('L_g2load:')
    for i in range(8):
        A(f's_mov_b32 s57, {i*1280}')
        for cb in range(5):
            n = i * 5 + cb
            if n >= Dg: A(f's_waitcnt vmcnt({Dg-1})')
            r = BUF + 4 * n
            A(f'buffer_load_dwordx4 v[{r}:{r+3}], v{VW}, s[40:43], s57 offen offset:{cb*256} {wflags}')
    A(f's_mov_b32 s63, {SPIN}')
    A('L_cntpoll:')
    A('buffer_load_dword v16, off, s[52:55], 0 sc1')
    A('s_waitcnt vmcnt(0)')
    A('v_readfirstlane_b32 s39, v16')
    A('s_cmp_ge_u32 s39, 256'); A('s_cbranch_scc1 L_cntdone')
    A(f's_sleep {sleep}')
    A('s_sub_u32 s63, s63, 1'); A('s_cmp_lg_u32 s63, 0'); A('s_cbranch_scc1 L_cntpoll')
    A('L_cntdone:')
    UU = XN
    A('s_cmp_eq_u32 s62, 1'); A('s_cbranch_scc1 L_mlp2prep')
    stamp(3)
    A('s_sub_u32 s61, s2, 32')
    A('s_cmp_ge_u32 s61, 40'); A('s_cbranch_scc1 L_nogate')
    A('s_cmp_lg_u32 s38, 0'); A('s_cbranch_scc1 L_nogate')
    A('v_lshlrev_b32 v16, 4, v1')
    A('s_lshl_b32 s39, s61, 13'); A(f's_add_u32 s39, s39, {W_G}'); A('s_add_u32 s56, s39, 4096')
    A('v_and_b32 v17, 7, v1'); A('v_lshlrev_b32 v17, 3, v17')
    A('v_bfe_u32 v18, v1, 4, 1'); A('v_lshl_add_u32 v17, v18, 2, v17')
    A('v_bfe_u32 v18, v1, 3, 1'); A('v_lshl_add_u32 v17, v18, 1, v17')
    A('s_lshl_b32 s57, s61, 6')
    A('buffer_load_ushort v20, v17, s[44:47], s57 offen')
    A('s_cmp_ge_u32 s61, 20'); A('s_cselect_b32 s58, 1280, 0'); A('s_sub_u32 s57, s57, s58')
    A('s_mov_b32 s68, s26'); A('s_mov_b32 s69, s27'); A('s_mov_b32 s70, 1280'); A('s_mov_b32 s71, 0x20000')
    A('buffer_load_ushort v21, v17, s[68:71], s57 offen')
    A(f's_mov_b32 s63, {SPIN}')
    A('L_gpoll:')
    for j in range(7):
        so = 's39' if j < 4 else 's56'
        A(f'buffer_load_dwordx4 v[{TMP+4*j}:{TMP+4*j+3}], v16, s[48:51], {so} offen offset:{(j&3)*1024} sc1')
    A('s_waitcnt vmcnt(0)')
    A(f'v_max_u32 v18, v{TMP}, v{TMP+1}')
    for j in range(2, 28, 2):
        A(f'v_max3_u32 v18, v18, v{TMP+j}, v{TMP+j+1}')
    A('v_cmp_eq_u32 vcc, -1, v18')
    A('s_nop 1')
    A('s_cmp_eq_u64 vcc, 0'); A('s_cbranch_scc1 L_gdone')
    A(f's_sleep {sleep}')
    A('s_sub_u32 s63, s63, 1'); A('s_cmp_lg_u32 s63, 0'); A('s_cbranch_scc1 L_gpoll')
    A('L_gdone:')
    for j in range(1, 7):
        for r in range(4): A(f'v_add_f32 v{TMP+r}, v{TMP+r}, v{TMP+4*j+r}')
    col_reduce(TMP, 18, 19)
    bf16r(18, 18)
    A('v_lshlrev_b32 v21, 16, v21'); A('v_lshlrev_b32 v20, 16, v20')
    A('v_add_f32 v18, v18, v21')
    bf16r(18, 18)
    A(f'v_mul_f32 v19, {f2u(-1.4426950408889634):#x}, v18')
    A('v_exp_f32 v19, v19')
    A('v_add_f32 v19, 1.0, v19')
    A('v_rcp_f32 v19, v19')
    A('v_mul_f32 v18, v18, v19')
    bf16r(18, 18)
    A('v_lshlrev_b32 v16, 2, v1')
    A(f'ds_write_b32 v16, v18 offset:{L_G}')
    A(f'ds_write_b32 v16, v20 offset:{L_X}')
    A('L_nogate:')
    stamp(4)
    A('v_lshlrev_b32 v16, 3, v3')
    A('s_lshl_b32 s39, s35, 7')
    A(f's_mov_b32 s63, {SPIN}')
    A('L_mlpoll:')
    A('buffer_load_dwordx2 v[18:19], v16, s[48:51], s39 offen sc1')
    A('s_waitcnt vmcnt(0)')
    A('v_max_u32 v20, v18, v19')
    A('v_cmp_eq_u32 vcc, -1, v20')
    A('s_nop 1')
    A('s_cmp_eq_u64 vcc, 0'); A('s_cbranch_scc1 L_mldone')
    A(f's_sleep {sleep}')
    A('s_sub_u32 s63, s63, 1'); A('s_cmp_lg_u32 s63, 0'); A('s_cbranch_scc1 L_mlpoll')
    A('L_mldone:')
    A('v_mov_b32 v20, v18')
    row_reduce('v_max_f32', 20, 21)
    A('v_sub_f32 v18, v18, v20')
    A('v_exp_f32 v18, v18')
    A('v_mul_f32 v19, v19, v18')
    row_reduce('v_add_f32', 19, 21)
    A('v_rcp_f32 v19, v19')
    A('v_mul_f32 v18, v18, v19')
    A('s_lshl_b32 s39, s37, 2')
    for w in range(4):
        A(f'v_readlane_b32 s{64+w}, v18, s39')
        if w < 3: A('s_add_u32 s39, s39, 1')
    A('s_lshl_b32 s39, s38, 7'); A('v_lshlrev_b32 v16, 5, v2'); A('v_add_u32 v16, s39, v16')
    A(f's_mul_i32 s39, s38, 2560'); A(f'v_and_b32 v44, 0x1ff, v{VD}'); A('v_add_u32 v44, s39, v44')
    A('s_mul_i32 s39, s38, 640'); A('v_lshlrev_b32 v45, 4, v1'); A('v_add_u32 v45, s39, v45')
    A('s_waitcnt vmcnt(0) lgkmcnt(0)')
    stamp(5)
    A('s_barrier')
    for w in range(4):
        A(f'ds_read_b128 v[{TMP+8*w}:{TMP+8*w+3}], v16 offset:{L_O + 1024*w}')
        A(f'ds_read_b128 v[{TMP+8*w+4}:{TMP+8*w+7}], v16 offset:{L_O + 1024*w + 16}')
    for w in range(4):
        A(f's_waitcnt lgkmcnt({6-2*w})')
        for j in range(8):
            if w == 0: A(f'v_mul_f32 v{TMP+j}, s64, v{TMP+j}')
            else: A(f'v_fmac_f32 v{TMP+j}, s{64+w}, v{TMP+8*w+j}')
    for r in range(4):
        A(f'v_cvt_pk_bf16_f32 v{UU+r}, v{TMP+2*r}, v{TMP+2*r+1}')
    A('L_g2comp:')
    def pbuild(i):
        dst = HA0 if i % 2 == 0 else HA1
        for r in range(4):
            A(f'v_perm_b32 v{dst+r}, v{UU+(i>>1)}, v{UU+(i>>1)}, v{SEL+4*(i&1)+r}')
    pbuild(0)
    for i in range(8):
        src = HA0 if i % 2 == 0 else HA1
        for cb in range(5):
            if cb == 1 and i < 7: pbuild(i + 1)
            n = i * 5 + cb
            c = '0' if i == 0 else f'v[{HACC+4*cb}:{HACC+4*cb+3}]'
            A(f'v_mfma_f32_16x16x32_bf16 v[{HACC+4*cb}:{HACC+4*cb+3}], v[{src}:{src+3}], v[{BUF+4*n}:{BUF+4*n+3}], {c}')
    A('s_cmp_eq_u32 s62, 1'); A('s_cbranch_scc1 L_mlp2store')
    for cb in range(5):
        A(f'ds_write_b128 v44, v[{HACC+4*cb}:{HACC+4*cb+3}] offset:{L_Y + 512*cb}')
    A('s_waitcnt lgkmcnt(0)')
    A('s_barrier')
    for k in range(4):
        A(f'ds_read_b128 v[{TMP+4*k}:{TMP+4*k+3}], v45 offset:{L_Y + 2560*k}')
    A('s_waitcnt lgkmcnt(2)')
    for r in range(4): A(f'v_add_f32 v{TMP+r}, v{TMP+r}, v{TMP+4+r}')
    A('s_waitcnt lgkmcnt(0)')
    for r in range(4): A(f'v_add_f32 v{TMP+8+r}, v{TMP+8+r}, v{TMP+12+r}')
    for r in range(4): A(f'v_add_f32 v{TMP+r}, v{TMP+r}, v{TMP+8+r}')
    for r in range(4): A(f'v_min_u32 v{TMP+r}, -2, v{TMP+r}')
    A(f'buffer_store_dwordx4 v[{TMP}:{TMP+3}], v{VY}, s[48:51], 0 offen sc1')
    stamp(6)
    write_stamps(1)
    A('s_endpgm')
    A('L_mlp2prep:')
    A('v_lshrrev_b32 v16, 3, v3'); A('v_lshlrev_b32 v16, 9, v16'); A('v_lshl_add_u32 v16, v2, 5, v16')
    A('s_lshl_b32 s39, s60, 12'); A('s_lshl_b32 s56, s38, 7'); A('s_add_u32 s39, s39, s56'); A(f's_add_u32 s39, s39, {W_H}')
    A('s_mov_b32 s68, s22'); A('s_mov_b32 s69, s23'); A(f's_mov_b32 s70, {1728*2}'); A('s_mov_b32 s71, 0x20000')
    A('s_lshl_b32 s56, s60, 2'); A('s_add_u32 s56, s56, s38'); A('s_lshl_b32 s57, s56, 6')
    A('v_lshlrev_b32 v17, 4, v2')
    A('buffer_load_dwordx4 v[20:23], v17, s[68:71], s57 offen')
    A(f's_mov_b32 s63, {SPIN}')
    A('L_hpoll:')
    for k in range(4):
        A(f'buffer_load_dwordx4 v[{TMP+8*k}:{TMP+8*k+3}], v16, s[48:51], s39 offen offset:{k*1024} sc1')
        A(f'buffer_load_dwordx4 v[{TMP+8*k+4}:{TMP+8*k+7}], v16, s[48:51], s39 offen offset:{k*1024+16} sc1')
    A('s_waitcnt vmcnt(0)')
    A(f'v_max_u32 v18, v{TMP}, v{TMP+1}')
    for j in range(2, 32, 2):
        A(f'v_max3_u32 v18, v18, v{TMP+j}, v{TMP+j+1}')
    A('v_cmp_eq_u32 vcc, -1, v18')
    A('s_nop 1')
    A('s_cmp_eq_u64 vcc, 0'); A('s_cbranch_scc1 L_hdone')
    A(f's_sleep {sleep}')
    A('s_sub_u32 s63, s63, 1'); A('s_cmp_lg_u32 s63, 0'); A('s_cbranch_scc1 L_hpoll')
    A('L_hdone:')
    for k in range(1, 4):
        for j in range(8): A(f'v_add_f32 v{TMP+j}, v{TMP+j}, v{TMP+8*k+j}')
    for j in range(8):
        bf16r(TMP + j, TMP + j)
        if j % 2 == 0: A(f'v_lshlrev_b32 v18, 16, v{20+j//2}')
        else: A(f'v_and_b32 v18, 0xffff0000, v{20+j//2}')
        A(f'v_add_f32 v{TMP+j}, v{TMP+j}, v18')
        bf16r(TMP + j, TMP + j)
        A(f'v_max_f32 v{TMP+j}, 0, v{TMP+j}')
        A(f'v_mul_f32 v{TMP+j}, v{TMP+j}, v{TMP+j}')
    A('s_cmp_ge_u32 s56, 54'); A('s_cselect_b32 s57, 0, -1')
    for r in range(4):
        A(f'v_cvt_pk_bf16_f32 v{UU+r}, v{TMP+2*r}, v{TMP+2*r+1}')
        A(f'v_and_b32 v{UU+r}, s57, v{UU+r}')
    A('s_branch L_g2comp')
    A('L_mlp2store:')
    gaddr(TMP)
    A('s_lshl_b32 s39, s60, 2'); A('s_add_u32 s39, s39, s38'); A('s_lshl_b32 s39, s39, 7'); A(f's_add_u32 s39, s39, {W_G}')
    A('s_nop 7')
    for cb in range(5):
        for r in range(4): A(f'v_min_u32 v{HACC+4*cb+r}, -2, v{HACC+4*cb+r}')
        A(f'buffer_store_dwordx4 v[{HACC+4*cb}:{HACC+4*cb+3}], v{TMP}, s[48:51], s39 offen sc1')
        if cb < 4: A(f's_add_u32 s39, s39, {4*8192}')
    A('s_branch L_wo')
    A('L_end:')
    A('s_endpgm')
    body = a.finalize()
    out = HEADER
    out += f'; @launch grid=(256,1,1) block=(512,1,1) lds={L_TOTAL}\n'
    out += '.amdgcn_target "amdgcn-amd-amdhsa--gfx950"\n.text\n'
    out += f'.globl {NAME}_kernel\n.p2align 8\n.type {NAME}_kernel,@function\n'
    out += body
    out += f'''.section .rodata,"a"
.p2align 6
.amdhsa_kernel {NAME}_kernel
  .amdhsa_next_free_vgpr 256
  .amdhsa_next_free_sgpr 96
  .amdhsa_accum_offset 256
  .amdhsa_group_segment_fixed_size 0
  .amdhsa_kernarg_size 104
  .amdhsa_user_sgpr_count 2
  .amdhsa_user_sgpr_kernarg_segment_ptr 1
  .amdhsa_system_sgpr_workgroup_id_x 1
.end_amdhsa_kernel
'''
    return out

if __name__ == '__main__':
    ap = argparse.ArgumentParser()
    ap.add_argument('out')
    ap.add_argument('opts', nargs='*')
    args = ap.parse_args()
    kw = {}
    for o in args.opts:
        k, v = o.split('=')
        kw[k] = v if k.endswith('flags') else int(v)
    open(args.out, 'w').write(gen(**kw))
```

```python
import sys, struct, argparse
from asmlib import Asm
NAME = 'recurrent_scan__mha_block_cached__dense_activation_squared_relu__decode'
def f2u(x): return struct.unpack('<I', struct.pack('<f', x))[0]
HEADER = open('cdna_kernels/' + NAME + '.s.ref').read().split('; Override launch')[0]

L_Q, L_PROG, L_QRDY, L_GO, L_MODE, L_G, L_X, L_F, L_TOTAL = 0, 256, 260, 264, 268, 512, 768, 1024, 2048
W_ML, W_EP, W_CTR, W_H, W_QP, W_O, W_G, W_Y, W_SIZE = 0, 0xC000, 0xD000, 0x10000, 0x40000, 0x80000, 0x100000, 0x200000, 0x400000
N1, N2, C0 = 112, 108, 176

def gen(D=5, D0=3, D0n=12, stamps=0, mimic=0, kvflags='nt', wflags='nt', sleep=32, fixdur=0, amp=-1,
        pH=2, pC=2, pG=5, pML=6, Dw=5, DV=0, qack=1, noclr=0, nomlp=0, stflags='sc1', ctl=0, ca=700, cb=222, Dhi=8, oack=0, yack=0):
    if fixdur: stamps = 1
    if not DV: DV = D
    a = Asm(); A = a
    SPIN = 0x20000
    cnt = [0]
    def uid():
        cnt[0] += 1; return cnt[0]
    def stamp(i):
        if stamps: A(f's_memrealtime s[{76+2*i}:{77+2*i}]')
    def write_stamps(role):
        if not stamps or fixdur: return
        n = uid()
        A('s_waitcnt lgkmcnt(0)')
        if role == 0:
            A('s_cmp_lg_u32 s38, 0'); A(f's_cbranch_scc1 L_nostamp{n}')
        else:
            wait_lds(L_PROG, 8)
        A('s_mov_b64 exec, -1')
        A('s_add_u32 s92, s32, 0x10000000'); A('s_addc_u32 s93, s33, 0'); A('s_mov_b32 s94, 0x100000'); A('s_mov_b32 s95, 0x20000')
        A('s_lshl_b32 s39, s2, 8')
        if role != 0:
            A('s_add_u32 s56, s3, 1'); A('s_lshl_b32 s56, s56, 6'); A('s_add_u32 s39, s39, s56')
        A('v_and_b32 v2, 63, v0'); A('v_lshlrev_b32 v2, 24, v2')
        for q in range(4):
            for r in range(4): A(f'v_mov_b32 v{4+4*q+r}, s{76+4*q+r}')
            A(f'buffer_store_dwordx4 v[{4+4*q}:{7+4*q}], v2, s[92:95], s39 offen offset:{16*q}')
        A(f'L_nostamp{n}:')
    def bf16r(dst, src):
        A(f'v_cvt_pk_bf16_f32 v{dst}, v{src}, v{src}')
        A(f'v_lshlrev_b32 v{dst}, 16, v{dst}')
    DPPF = 'row_mask:0xf bank_mask:0xf'
    def red8(op, regs, tmps):
        for r, t in zip(regs, tmps): A(f'{op}_dpp v{t}, v{r}, v{r} quad_perm:[1,0,3,2] {DPPF}')
        for r, t in zip(regs, tmps): A(f'{op}_dpp v{r}, v{t}, v{t} quad_perm:[2,3,0,1] {DPPF}')
        for r, t in zip(regs, tmps): A(f'{op}_dpp v{r}, v{r}, v{r} row_half_mirror {DPPF}')
    def rows_add(r, t):
        A(f'v_mov_b32 v{t}, v{r}'); A(f'v_permlane16_swap_b32 v{r}, v{t}'); A(f'v_add_f32 v{r}, v{r}, v{t}')
        A(f'v_mov_b32 v{t}, v{r}'); A(f'v_permlane32_swap_b32 v{r}, v{t}'); A(f'v_add_f32 v{r}, v{r}, v{t}')
    def col_reduce(x, y, t0, t1):
        for r in range(4): A(f'v_add_f32_dpp v{y+r}, v{x+r}, v{x+r} row_ror:4 {DPPF}')
        for r in range(4): A(f'v_add_f32_dpp v{t0}, v{y+r}, v{y+r} row_ror:8 row_mask:0xf bank_mask:{1<<r:#x}')
        rows_add(t0, t1)
    def wait_lds(addr, level, va=16, vt=17, slp=8):
        n = uid()
        A(f's_mov_b32 s67, {SPIN*8}')
        A(f'v_mov_b32 v{va}, {addr}')
        A(f'L_pw{n}:')
        A(f'ds_read_b32 v{vt}, v{va}'); A('s_waitcnt lgkmcnt(0)')
        A(f'v_readfirstlane_b32 s39, v{vt}')
        A(f's_cmp_ge_u32 s39, {level}'); A(f's_cbranch_scc1 L_pd{n}')
        A(f's_sleep {slp}')
        A('s_sub_u32 s67, s67, 1'); A('s_cmp_lg_u32 s67, 0'); A(f's_cbranch_scc1 L_pw{n}')
        A(f'L_pd{n}:')
    def spin_tail(n, slp):
        A('s_nop 1')
        A('s_cmp_eq_u64 vcc, 0'); A(f's_cbranch_scc1 L_gd{n}')
        if slp: A(f's_sleep {slp}')
        A('s_sub_u32 s67, s67, 1'); A('s_cmp_lg_u32 s67, 0'); A(f's_cbranch_scc1 L_gw{n}')
        A(f'L_gd{n}:')
    def polltag(loads, bases, t, slp):
        n = uid()
        A(f's_mov_b32 s67, {SPIN}')
        A(f'L_gw{n}:')
        for l in loads: A(l)
        A('s_waitcnt vmcnt(0)')
        for k, b in enumerate(bases):
            A(f'v_xor_b32 v{b+1}, s74, v{b+1}'); A(f'v_xor_b32 v{b+3}, s75, v{b+3}')
            if k == 0: A(f'v_or_b32 v{t}, v{b+1}, v{b+3}')
            else: A(f'v_or3_b32 v{t}, v{t}, v{b+1}, v{b+3}')
        A(f'v_cmp_ne_u32 vcc, 0, v{t}')
        spin_tail(n, slp)
    def untag(quads, t):
        first = True
        for b in quads:
            for r in range(4): A(f'v_xor_b32 v{b+r}, s{70+r}, v{b+r}')
            if first:
                A(f'v_or3_b32 v{t}, v{b}, v{b+1}, v{b+2}'); A(f'v_or_b32 v{t}, v{t}, v{b+3}'); first = False
            else:
                A(f'v_or3_b32 v{t}, v{t}, v{b}, v{b+1}'); A(f'v_or3_b32 v{t}, v{t}, v{b+2}, v{b+3}')
        A(f'v_and_b32 v{t}, 0xfff, v{t}')
    def poll(loads, quads, t, slp):
        n = uid()
        A(f's_mov_b32 s67, {SPIN}')
        A(f'L_gw{n}:')
        for l in loads: A(l)
        A('s_waitcnt vmcnt(0)')
        untag(quads, t)
        A(f'v_cmp_ne_u32 vcc, 0, v{t}')
        spin_tail(n, slp)
    def tagregs(base):
        for r in range(4): A(f'v_mov_b32 v{base+r}, s{70+r}')
        A(f'v_mov_b32 v{base+4}, 0xfff')
    def entag(dst, src, tb, rnd=False):
        for r in range(4):
            if rnd:
                A(f'v_add_u32 v{dst+r}, 0x800, v{src+r}'); A(f'v_bfi_b32 v{dst+r}, v{tb+4}, v{tb+r}, v{dst+r}')
            else:
                A(f'v_bfi_b32 v{dst+r}, v{tb+4}, v{tb+r}, v{src+r}')
    def load_tag():
        A(f's_load_dwordx2 s[74:75], s[32:33], {W_EP}')
    def make_tag():
        A('s_add_u32 s74, s74, 0x7f4a7c15'); A('s_addc_u32 s75, s75, 0x9e3779b9')
        A('s_and_b32 s70, s74, 0xfff'); A('s_bfe_u32 s71, s74, 0xc000c')
        A('s_lshr_b64 s[72:73], s[74:75], 24'); A('s_bfe_u32 s73, s72, 0xc000c'); A('s_and_b32 s72, s72, 0xfff')

    A(f'{NAME}_kernel:')
    A('s_cmp_ge_u32 s2, 256'); A('s_cbranch_scc1 L_end')
    A('s_load_dwordx16 s[8:23], s[0:1], 0')
    A('s_load_dwordx8 s[24:31], s[0:1], 64')
    A('s_load_dwordx2 s[32:33], s[0:1], 96')
    if stamps:
        for i in range(76, 92): A(f's_mov_b32 s{i}, 0')
    stamp(0)
    if ctl: A('s_memrealtime s[98:99]')
    A('v_lshrrev_b32 v2, 6, v0')
    A('v_and_b32 v1, 63, v0')
    A('v_readfirstlane_b32 s3, v2')
    for r in range(4): A(f'v_mov_b32 v{4+r}, 0')
    A(f'v_mov_b32 v8, {L_PROG}')
    A('ds_write_b128 v8, v[4:7]')
    A('s_and_b32 s34, s2, 7'); A('s_lshl_b32 s34, s34, 2'); A('s_lshr_b32 s35, s2, 6'); A('s_add_u32 s34, s34, s35')
    A('s_bfe_u32 s36, s2, 0x10005')
    A('s_bfe_u32 s37, s2, 0x20003')
    A('s_bfe_u32 s4, s2, 0x30003')
    A('s_lshl_b32 s35, s36, 5'); A('s_add_u32 s35, s35, s34')
    A(f's_mov_b32 s50, {W_SIZE}'); A('s_mov_b32 s51, 0x20000'); A('s_mov_b32 s43, 0x20000')
    A('v_lshrrev_b32 v2, 4, v1')
    A('v_and_b32 v3, 15, v1')
    A('s_cmp_lt_u32 s3, 3'); A('s_cbranch_scc1 L_helper')

    Q, MASK, ACC, A0, A1 = 4, 8, 12, 16, 20
    P0, T01, T23, U, U2, M, Lr, MN, E1, E2, PP, VO, LANE = 24, 28, 29, 30, 31, 32, 33, 34, 35, 36, 37, 38, 39
    S, RING, TG = 40, 72, 200
    A('s_sub_u32 s38, s3, 3')
    A('s_lshl_b32 s56, s35, 21'); A('s_lshl_b32 s57, s37, 19'); A('s_add_u32 s56, s56, s57')
    A('s_lshl_b32 s57, s38, 12'); A('s_add_u32 s56, s56, s57')
    A('s_sub_u32 s42, 0x80000, s57')
    A(f'v_mov_b32 v{LANE}, v1')
    A('v_lshlrev_b32 v1, 4, v1')
    A('s_and_b32 s58, s2, 31'); A('s_lshl_b32 s58, s58, 14')
    A('s_waitcnt lgkmcnt(0)')
    A('s_add_u32 s40, s10, s56'); A('s_addc_u32 s41, s11, 0')
    dyn = [0]
    def ctl_step():
        if not ctl: return
        A('s_waitcnt lgkmcnt(0)')
        A(f's_add_u32 s7, s7, {cb}'); A('s_lshl_b32 s96, s96, 2'); A('s_sub_u32 s96, s96, s7'); A('s_cmp_gt_i32 s96, 0'); A('s_cselect_b64 vcc, -1, 0')
        A('s_memrealtime s[96:97]')
    def issue(j, wait):
        i = j & 3
        if i == 0:
            A('s_mov_b32 s57, s58'); A('s_add_u32 s58, s58, 0x4000'); A('s_and_b32 s58, s58, 0x7ffff')
        if wait is not None:
            if dyn[0]:
                n = uid()
                A(f's_waitcnt vmcnt({Dhi-1})'); A(f's_cbranch_vccnz L_dw{n}'); A(f's_waitcnt vmcnt({wait})'); A(f'L_dw{n}:')
            else: A(f's_waitcnt vmcnt({wait})')
        r = RING + 4 * j
        A(f'buffer_load_dwordx4 v[{r}:{r+3}], v1, s[40:43], s57 offen offset:{i*1024} {kvflags}')
    for j in range(32):
        d = D0 if j < D0n else D
        issue(j, None if j < D0 else d - 1)
        if j == D0 - 1:
            A('s_barrier')
            load_tag()
            A('s_add_u32 s44, s12, s56'); A('s_addc_u32 s45, s13, 0')
            A('s_mov_b32 s48, s32'); A('s_mov_b32 s49, s33')
            A('v_lshlrev_b32 v16, 5, v3'); A('v_and_b32 v17, 1, v2'); A('v_lshl_add_u32 v16, v17, 4, v16')
            A('v_lshrrev_b32 v17, 1, v2'); A(f'v_lshl_add_u32 v{VO}, v17, 24, v16')
            A('s_lshl_b32 s65, s37, 2'); A('s_add_u32 s65, s65, s38')
            A('s_lshl_b32 s66, s65, 9'); A('s_lshl_b32 s39, s35, 13'); A('s_add_u32 s66, s66, s39'); A(f's_add_u32 s66, s66, {W_O}')
            A('s_lshl_b32 s65, s65, 4'); A('s_lshl_b32 s39, s35, 8'); A('s_add_u32 s65, s65, s39')
            A('v_and_b32 v16, 1, v3'); A('v_lshlrev_b32 v16, 4, v16'); A('v_mov_b32 v17, 0xffff'); A('v_lshlrev_b32 v16, v16, v17')
            A('v_lshrrev_b32 v17, 1, v3')
            for r in range(4):
                A(f'v_cmp_eq_u32 vcc, {r}, v17'); A(f'v_cndmask_b32 v{MASK+r}, 0, v16, vcc')
            A('v_lshlrev_b32 v3, 4, v3')
            A(f'v_mov_b32 v2, {L_PROG}')
            A(f'v_mov_b32 v{M}, 0xff7fffff'); A(f'v_mov_b32 v{Lr}, 0')
            for r in range(4): A(f'v_mov_b32 v{ACC+r}, 0')
            A(f's_mov_b32 s61, {f2u(1.4426950408889634 * 128 ** -0.5):#x}')
            A(f's_mov_b32 s62, {f2u(128 ** -0.5):#x}'); A(f's_mov_b32 s63, {f2u(1.4426950408889634):#x}')
    stamp(1)
    wait_lds(L_QRDY, 1, slp=1)
    stamp(2)
    A(f'ds_read_b128 v[{Q}:{Q+3}], v3 offset:{L_Q}')
    make_tag()
    tagregs(TG)
    A('s_mov_b32 s59, 0')
    if ctl:
        dyn[0] = 1
        A(f's_add_u32 s7, s98, {ca}'); A('s_lshl_b32 s7, s7, 2'); A(f's_sub_u32 s7, s7, {2*cb}')
        A('s_memrealtime s[96:97]')
    A('s_waitcnt lgkmcnt(0)')
    A('L_kloop:')
    A('s_cmp_eq_u32 s59, 3')
    A('s_cselect_b32 s40, s44, s40'); A('s_cselect_b32 s41, s45, s41')
    A('s_add_u32 s59, s59, 1')
    A(f'v_mov_b32 v{PP}, s59')
    A(f'ds_max_u32 v2, v{PP}')
    for t in range(8):
        R = lambda i: RING + 4 * (4 * t + i)
        ctl_step()
        for i in range(4): A(f'v_dot2_f32_bf16 v{P0+i}, v{R(i)}, v{Q}, 0')
        for r in range(1, 4):
            for i in range(4): A(f'v_dot2c_f32_bf16 v{P0+i}, v{R(i)+r}, v{Q+r}')
        issue(4 * t + 0, D - 1)
        A(f'v_add_f32_dpp v{T01}, v{P0}, v{P0} row_ror:8 row_mask:0xf bank_mask:0xf')
        A(f'v_add_f32_dpp v{T23}, v{P0+2}, v{P0+2} row_ror:8 row_mask:0xf bank_mask:0xf')
        A(f'v_add_f32_dpp v{T01}, v{P0+1}, v{P0+1} row_ror:8 row_mask:0xf bank_mask:0xc')
        A(f'v_add_f32_dpp v{T23}, v{P0+3}, v{P0+3} row_ror:8 row_mask:0xf bank_mask:0xc')
        A(f'v_mov_b32 v{S+t}, v{S+8+t}')
        A(f'v_add_f32_dpp v{U}, v{T01}, v{T01} row_half_mirror row_mask:0xf bank_mask:0xf')
        A(f'v_add_f32_dpp v{U}, v{T23}, v{T23} row_half_mirror row_mask:0xf bank_mask:0xa')
        A(f'v_mov_b32 v{S+8+t}, v{S+16+t}')
        A(f'v_mov_b32 v{S+16+t}, v{S+24+t}')
        A(f'v_add_f32_dpp v{U2}, v{U}, v{U} quad_perm:[1,0,3,2] row_mask:0xf bank_mask:0xf')
        issue(4 * t + 1, D - 1)
        A(f'v_add_f32_dpp v{U}, v{U2}, v{U2} quad_perm:[2,3,0,1] row_mask:0xf bank_mask:0xf')
        if mimic:
            bf16r(U, U)
            A(f'v_mul_f32 v{U}, s62, v{U}')
            bf16r(U, U)
            A(f'v_mul_f32 v{S+24+t}, s63, v{U}')
        else:
            A(f'v_mul_f32 v{S+24+t}, s61, v{U}')
        A(f'v_max_f32 v{MN}, v{M}, v{S+24+t}')
        A(f'v_sub_f32 v{E1}, v{M}, v{MN}')
        A(f'v_sub_f32 v{E2}, v{S+24+t}, v{MN}')
        A(f'v_exp_f32 v{E1}, v{E1}')
        A(f'v_exp_f32 v{E2}, v{E2}')
        A(f'v_mov_b32 v{M}, v{MN}')
        A(f'v_fma_f32 v{Lr}, v{Lr}, v{E1}, v{E2}')
        issue(4 * t + 2, D - 1)
        issue(4 * t + 3, D - 1)
    A('s_cmp_lt_u32 s59, 4'); A('s_cbranch_scc1 L_kloop')
    stamp(3)
    A(f'v_max_f32_dpp v{E1}, v{M}, v{M} row_ror:4 row_mask:0xf bank_mask:0xf')
    A(f'v_max_f32_dpp v{E2}, v{E1}, v{E1} row_ror:8 row_mask:0xf bank_mask:0xf')
    A(f'v_max_f32_dpp v{E2}, v{E2}, v{E2} row_bcast:15 row_mask:0xa bank_mask:0xf')
    A(f'v_max_f32_dpp v{E2}, v{E2}, v{E2} row_bcast:31 row_mask:0xc bank_mask:0xf')
    A(f'v_readlane_b32 s60, v{E2}, 63')
    A(f'v_subrev_f32 v{E1}, s60, v{M}')
    A(f'v_exp_f32 v{E1}, v{E1}')
    A(f'v_mul_f32 v{Lr}, v{Lr}, v{E1}')
    A(f'v_add_f32_dpp v{E1}, v{Lr}, v{Lr} row_ror:4 row_mask:0xf bank_mask:0xf')
    A(f'v_add_f32_dpp v{E2}, v{E1}, v{E1} row_ror:8 row_mask:0xf bank_mask:0xf')
    A(f'v_add_f32_dpp v{E2}, v{E2}, v{E2} row_bcast:15 row_mask:0xa bank_mask:0xf')
    A(f'v_add_f32_dpp v{E2}, v{E2}, v{E2} row_bcast:31 row_mask:0xc bank_mask:0xf')
    A(f'v_readlane_b32 s64, v{E2}, 63')
    A(f'v_mov_b32 v{P0}, s60'); A(f'v_mov_b32 v{P0+1}, s74')
    A(f'v_lshlrev_b32 v{U}, 24, v{LANE}')
    A(f'v_mov_b32 v{P0+2}, s64'); A(f'v_mov_b32 v{P0+3}, s75')
    A(f'buffer_store_dwordx4 v[{P0}:{P0+3}], v{U}, s[48:51], s65 offen sc1')
    A('L_vloop:')
    A('s_add_u32 s59, s59, 1')
    A(f'v_mov_b32 v{PP}, s59')
    A(f'ds_max_u32 v2, v{PP}')
    beta = [0, 2, 1, 3]
    for t in range(8):
        R = lambda i: RING + 4 * (4 * t + i)
        ctl_step()
        A(f'v_subrev_f32 v{E1}, s60, v{S+t}')
        A(f'v_exp_f32 v{E1}, v{E1}')
        A(f'v_mov_b32 v{S+t}, v{S+8+t}')
        A(f'v_cvt_pk_bf16_f32 v{E2}, v{E1}, v{E1}')
        A(f'v_mov_b32 v{S+8+t}, v{S+16+t}')
        A(f'v_mov_b32 v{S+16+t}, v{S+24+t}')
        def build(i):
            dst = A0 if i % 2 == 0 else A1
            for r in range(4):
                n = (2 * r - 4 * beta[i]) % 16
                if n == 0: A(f'v_and_b32 v{dst+r}, v{E2}, v{MASK+r}')
                else: A(f'v_and_b32_dpp v{dst+r}, v{E2}, v{MASK+r} row_ror:{n} row_mask:0xf bank_mask:0xf')
        def mf(i):
            src = A0 if i % 2 == 0 else A1
            A(f'v_mfma_f32_16x16x32_bf16 v[{ACC}:{ACC+3}], v[{src}:{src+3}], v[{R(i)}:{R(i)+3}], v[{ACC}:{ACC+3}]')
        build(0); build(1); mf(0); build(2); mf(1); build(3); mf(2); mf(3)
        A('s_cmp_eq_u32 s59, 8')
        nextwait = 28 - 4 * (t + 1)
        if t < 7 and nextwait < (Dhi if ctl else DV):
            A(f's_cbranch_scc0 L_vi{t}')
            A(f's_waitcnt vmcnt({nextwait})')
            A(f's_branch L_vc{t}')
            A(f'L_vi{t}:')
        else:
            A(f's_cbranch_scc1 L_vc{t}')
        for i in range(4): issue(4 * t + i, DV - 1)
        if t < 7: A(f'L_vc{t}:')
    A('s_branch L_vloop')
    A('L_vc7:')
    A('s_nop 5')
    entag(A0, ACC, TG)
    A(f'buffer_store_dwordx4 v[{A0}:{A0+3}], v{VO}, s[48:51], s66 offen sc1')
    stamp(4)
    if oack: A('s_waitcnt vmcnt(0)')
    A('s_barrier')
    A(f's_sub_u32 s59, s2, {C0}')
    A('s_cmp_lt_u32 s59, 80')
    A('s_cbranch_scc1 L_consumer')
    write_stamps(0)
    A('s_endpgm')
    A('L_consumer:')
    A('s_lshl_b32 s40, s59, 6'); A(f's_mul_i32 s57, s38, {64*5120}'); A('s_add_u32 s40, s40, s57'); A(f's_add_u32 s40, s40, {W_Y}')
    for j in range(1, 4): A(f's_add_u32 s{40+j}, s40, {j*16*5120}')
    A(f'v_lshrrev_b32 v1, 2, v{LANE}'); A('v_mul_u32_u24 v1, 5120, v1'); A(f'v_and_b32 v3, 3, v{LANE}'); A('v_lshl_add_u32 v1, v3, 4, v1')
    G0 = RING
    A(f'v_lshlrev_b32 v2, 2, v{LANE}')
    A(f'ds_read_b32 v{S}, v2 offset:{L_G}')
    A(f'ds_read_b32 v{S+1}, v2 offset:{L_X}')
    A(f'v_and_b32 v3, 3, v{LANE}'); A('v_lshlrev_b32 v3, 3, v3')
    A(f'v_bfe_u32 v{T01}, v{LANE}, 2, 2'); A(f'v_lshl_add_u32 v3, v{T01}, 1, v3')
    A('s_lshl_b32 s57, s59, 5')
    A('s_mov_b32 s52, s28'); A('s_mov_b32 s53, s29'); A('s_mov_b32 s54, 2560'); A('s_mov_b32 s55, 0x20000')
    A('s_lshl_b32 s58, s38, 8')
    A(f'v_add_u32 v{U2}, s58, v2')
    A(f'v_mov_b32 v{S+2}, s74'); A(f'v_mov_b32 v{S+3}, s75')
    A('s_lshl_b32 s56, s59, 24'); A(f's_add_u32 s56, s56, {W_EP}')
    A(f's_mov_b32 s66, {SPIN}')
    A('s_barrier')
    for j in range(4):
        A(f'buffer_load_dwordx4 v[{G0+4*j}:{G0+4*j+3}], v1, s[48:51], s{40+j} offen sc1')
    A('L_ypoll:')
    G1 = G0 + 16
    A('s_waitcnt vmcnt(0)')
    for j in range(4):
        for r in range(4): A(f'v_xor_b32 v{G1+4*j+r}, v{TG+r}, v{G0+4*j+r}')
        A(f'v_or3_b32 v{P0+j}, v{G1+4*j}, v{G1+4*j+1}, v{G1+4*j+2}')
    for j in range(4):
        A(f'v_or_b32 v{P0+j}, v{P0+j}, v{G1+4*j+3}')
    for j in range(4):
        A(f'v_and_b32 v{P0+j}, v{TG+4}, v{P0+j}')
    for j in range(4):
        A(f'v_cmp_ne_u32 s[{68+2*j}:{69+2*j}], 0, v{P0+j}')
    for r in range(4):
        A(f'v_add_f32 v{G1+r}, v{G1+r}, v{G1+4+r}')
    A('s_or_b64 s[60:61], s[68:69], s[70:71]'); A('s_or_b64 s[62:63], s[72:73], s[74:75]'); A('s_or_b64 s[60:61], s[60:61], s[62:63]')
    A('s_cbranch_scc0 L_ydone')
    for j in range(4):
        A(f's_mov_b64 exec, s[{68+2*j}:{69+2*j}]')
        A(f's_cbranch_execz L_yskip{j}')
        A(f'buffer_load_dwordx4 v[{G0+4*j}:{G0+4*j+3}], v1, s[48:51], s{40+j} offen sc1')
        A(f'L_yskip{j}:')
    A('s_mov_b64 exec, -1')
    A('s_sub_u32 s66, s66, 1'); A('s_cmp_lg_u32 s66, 0'); A('s_cbranch_scc1 L_ypoll')
    A('L_ydone:')
    stamp(5)
    for r in range(4):
        A(f'v_add_f32 v{G1+8+r}, v{G1+8+r}, v{G1+12+r}')
    for r in range(4):
        A(f'v_add_f32 v{G0+r}, v{G1+r}, v{G1+8+r}')
    col_reduce(G0, G0 + 4, T01, T23)
    A(f'ds_write_b32 v{U2}, v{T01} offset:{L_F}')
    A('s_waitcnt lgkmcnt(0)')
    A('s_barrier')
    A('s_cmp_lg_u32 s38, 0'); A('s_cbranch_scc1 L_end')
    for k in range(1, 4):
        A(f'ds_read_b32 v{P0+k}, v2 offset:{L_F + 256*k}')
    A('s_waitcnt lgkmcnt(0)')
    A(f'v_add_f32 v{T01}, v{T01}, v{P0+1}')
    A(f'v_add_f32 v{P0+2}, v{P0+2}, v{P0+3}')
    A(f'v_add_f32 v{T01}, v{T01}, v{P0+2}')
    bf16r(T01, T01)
    A(f'v_mul_f32 v{T01}, v{T01}, v{S}')
    bf16r(T01, T01)
    A(f'v_add_f32 v{T01}, v{T01}, v{S+1}')
    A(f'v_cvt_pk_bf16_f32 v{T01}, v{T01}, v{T01}')
    A(f'buffer_store_short v{T01}, v3, s[52:55], s57 offen')
    A(f'buffer_store_dwordx2 v[{S+2}:{S+3}], v{U}, s[48:51], s56 offen')
    stamp(6)
    if fixdur:
        A('s_waitcnt lgkmcnt(0)')
        A(f's_mov_b32 s92, {fixdur}')
        if amp >= 0:
            A(f's_sub_u32 s93, s{76+2*amp}, s76'); A('s_mul_i32 s93, s93, 10'); A('s_add_u32 s92, s92, s93')
        A('L_fix:')
        A('s_memrealtime s[90:91]'); A('s_waitcnt lgkmcnt(0)')
        A('s_sub_u32 s90, s90, s76'); A('s_cmp_lt_u32 s90, s92'); A('s_cbranch_scc1 L_fix')
    write_stamps(0)
    A('s_endpgm')

    SEL, HACC, HA0, HA1, XN, XS, XF, VW, VST, BUF = 4, 12, 32, 36, 40, 50, 60, 92, 93, 96
    def selectors():
        A('v_and_b32 v12, 7, v3'); A('v_lshrrev_b32 v13, 1, v12'); A('v_and_b32 v12, 1, v12')
        A('v_mov_b32 v14, 0x0c0c0c0c')
        A('v_cmp_eq_u32 vcc, 1, v12')
        A('v_mov_b32 v22, 0x0c0c0100'); A('v_mov_b32 v23, 0x01000c0c'); A('v_cndmask_b32 v22, v22, v23, vcc')
        A('v_mov_b32 v24, 0x0c0c0302'); A('v_mov_b32 v23, 0x03020c0c'); A('v_cndmask_b32 v24, v24, v23, vcc')
        for r in range(4):
            A(f'v_cmp_eq_u32 vcc, {r}, v13')
            A(f'v_cndmask_b32 v{SEL+r}, v14, v22, vcc')
            A(f'v_cndmask_b32 v{SEL+4+r}, v14, v24, vcc')
    A('L_helper:')
    A('s_cmp_eq_u32 s3, 0'); A('s_cbranch_scc1 L_hq')
    A('s_cmp_eq_u32 s3, 2'); A('s_cbranch_scc1 L_hp')
    if nomlp == 1: A('s_branch L_end')
    A(f's_cmp_ge_u32 s2, {N1+N2}'); A('s_cbranch_scc1 L_end')
    A(f's_cmp_ge_u32 s2, {N1}'); A('s_cbranch_scc1 L_hm2')
    A('s_and_b32 s5, s2, 7'); A('s_lshr_b32 s56, s2, 3')
    A('s_movk_i32 s6, 3456')
    A('s_lshl_b32 s59, s2, 10'); A(f's_add_u32 s59, s59, {W_H}')
    A('s_lshl_b32 s56, s56, 8'); A(f's_mul_i32 s57, s5, {80*3456}'); A('s_add_u32 s56, s56, s57')
    A(f's_sub_u32 s42, {640*3456}, s56')
    A('s_waitcnt lgkmcnt(0)')
    A('s_add_u32 s40, s20, s56'); A('s_addc_u32 s41, s21, 0')
    A('s_branch L_g1')
    A('L_hq:')
    A('s_mov_b32 s5, s4')
    A('s_movk_i32 s6, 8192')
    A('s_lshl_b32 s59, s34, 13'); A('s_lshl_b32 s39, s5, 10'); A('s_add_u32 s59, s59, s39'); A(f's_add_u32 s59, s59, {W_QP}')
    A('s_lshl_b32 s56, s34, 8'); A(f's_mul_i32 s57, s5, {80*8192}'); A('s_add_u32 s56, s56, s57')
    A(f's_sub_u32 s42, {640*8192}, s56')
    A('s_waitcnt lgkmcnt(0)')
    A('s_add_u32 s40, s14, s56'); A('s_addc_u32 s41, s15, 0')
    A('L_g1:')
    A('s_mov_b32 s44, s8'); A('s_mov_b32 s45, s9'); A('s_mov_b32 s46, 2560'); A('s_mov_b32 s47, 0x20000')
    A('v_bfe_u32 v12, v1, 3, 1'); A('v_mul_u32_u24 v12, 1280, v12')
    A('v_and_b32 v13, 7, v1'); A('v_lshl_add_u32 v13, v2, 3, v13'); A('v_lshl_add_u32 v13, v13, 3, v12')
    for j in range(5):
        A(f'buffer_load_dwordx2 v[{XS+2*j}:{XS+2*j+1}], v13, s[44:47], 0 offen offset:{j*256}')
    A('v_mul_u32_u24 v14, 40, v2'); A('v_add_u32 v14, v14, v12'); A('s_mul_i32 s39, s5, 160')
    for j in range(5):
        A(f'buffer_load_dwordx2 v[{XN+2*j}:{XN+2*j+1}], v14, s[44:47], s39 offen offset:{j*8}')
    A('s_mul_i32 s39, s6, 20'); A('v_mul_lo_u32 v12, v2, s39'); A(f'v_lshl_add_u32 v{VW}, v3, 4, v12')
    load_tag()
    A('s_mov_b32 s57, 0')
    A('s_cmp_eq_u32 s3, 0'); A('s_cbranch_scc1 L_nb0'); A('s_barrier'); A('L_nb0:')
    for i in range(20):
        r = BUF + 4 * i
        if i % 5 == 0:
            A('s_cmp_eq_u32 s3, 0'); A(f's_cbranch_scc1 L_nt{i}'); A(f's_waitcnt vmcnt({0 if i == 0 else 1})'); A(f'L_nt{i}:')
        A(f'buffer_load_dwordx4 v[{r}:{r+3}], v{VW}, s[40:43], s57 offen {wflags}')
        if i < 19: A('s_add_u32 s57, s57, s6')
    A('s_cmp_lg_u32 s3, 0'); A('s_cbranch_scc1 L_nb1'); A('s_barrier'); A('L_nb1:')
    A('s_mov_b32 s48, s32'); A('s_mov_b32 s49, s33')
    A('v_lshrrev_b32 v12, 1, v2'); A('v_lshlrev_b32 v12, 9, v12'); A('v_lshl_add_u32 v12, v3, 5, v12')
    A('v_and_b32 v13, 1, v2'); A(f'v_lshl_add_u32 v{VST}, v13, 4, v12')
    selectors()
    A('v_mov_b32 v20, 0x3f803f80')
    A('s_waitcnt vmcnt(25)')
    A(f'v_dot2_f32_bf16 v12, v{XS}, v20, 0'); A(f'v_dot2_f32_bf16 v13, v{XS+1}, v20, 0')
    for j in range(2, 10, 2):
        A(f'v_dot2_f32_bf16 v12, v{XS+j}, v20, v12'); A(f'v_dot2_f32_bf16 v13, v{XS+j+1}, v20, v13')
    for j in range(10):
        A(f'v_lshlrev_b32 v{XF+2*j}, 16, v{XS+j}')
        A(f'v_and_b32 v{XF+2*j+1}, 0xffff0000, v{XS+j}')
    A('v_add_f32 v12, v12, v13')
    red8('v_add_f32', [12], [13]); rows_add(12, 13)
    A(f's_mov_b32 s39, {f2u(1.0/640):#x}')
    A('v_mul_f32 v12, s39, v12')
    A('v_mov_b32 v14, 0'); A('v_mov_b32 v15, 0')
    for j in range(0, 20, 2):
        A(f'v_sub_f32 v22, v{XF+j}, v12'); A(f'v_sub_f32 v23, v{XF+j+1}, v12')
        A('v_fmac_f32 v14, v22, v22'); A('v_fmac_f32 v15, v23, v23')
    A('v_add_f32 v14, v14, v15')
    red8('v_add_f32', [14], [15]); rows_add(14, 15)
    A('v_mul_f32 v14, s39, v14')
    bf16r(12, 12)
    bf16r(14, 14)
    A(f'v_add_f32 v14, {f2u(1e-5):#x}, v14')
    bf16r(14, 14)
    A('v_sqrt_f32 v14, v14')
    bf16r(14, 14)
    A('v_rcp_f32 v14, v14')
    A('s_waitcnt vmcnt(20)')
    for j in range(10):
        A(f'v_lshlrev_b32 v{XF+2*j}, 16, v{XN+j}'); A(f'v_and_b32 v{XF+2*j+1}, 0xffff0000, v{XN+j}')
        A(f'v_sub_f32 v{XF+2*j}, v{XF+2*j}, v12'); A(f'v_sub_f32 v{XF+2*j+1}, v{XF+2*j+1}, v12')
        A(f'v_cvt_pk_bf16_f32 v{XN+j}, v{XF+2*j}, v{XF+2*j+1}')
    for j in range(10):
        A(f'v_lshlrev_b32 v{XF+2*j}, 16, v{XN+j}'); A(f'v_and_b32 v{XF+2*j+1}, 0xffff0000, v{XN+j}')
        A(f'v_mul_f32 v{XF+2*j}, v14, v{XF+2*j}'); A(f'v_mul_f32 v{XF+2*j+1}, v14, v{XF+2*j+1}')
        A(f'v_cvt_pk_bf16_f32 v{XN+j}, v{XF+2*j}, v{XF+2*j+1}')
    A('s_waitcnt lgkmcnt(0)')
    make_tag()
    stamp(1)
    tagregs(TG)
    def pb(i, src):
        dst = HA0 if i % 2 == 0 else HA1
        for r in range(4):
            A(f'v_perm_b32 v{dst+r}, v{src+(i>>1)}, v{src+(i>>1)}, v{SEL+4*(i&1)+r}')
    pb(0, XN)
    for i in range(20):
        if i < 19: pb(i + 1, XN)
        if i % 4 == 0: A(f's_waitcnt vmcnt({19 - (i + 3)})')
        src = HA0 if i % 2 == 0 else HA1
        c = '0' if i == 0 else f'v[{HACC}:{HACC+3}]'
        A(f'v_mfma_f32_16x16x32_bf16 v[{HACC}:{HACC+3}], v[{src}:{src+3}], v[{BUF+4*i}:{BUF+4*i+3}], {c}')
    entag(16, HACC, TG, rnd=True)
    A(f'buffer_store_dwordx4 v[16:19], v{VST}, s[48:51], s59 offen sc1')
    stamp(2)
    A('s_cmp_eq_u32 s3, 0'); A('s_cbranch_scc1 L_hq2')
    write_stamps(1)
    A('s_endpgm')
    A('L_hq2:')
    A('v_and_b32 v24, 31, v1'); A('v_lshlrev_b32 v24, 4, v24'); A('v_lshrrev_b32 v25, 5, v1'); A('v_lshl_add_u32 v24, v25, 10, v24')
    A('s_lshl_b32 s56, s34, 13'); A('s_lshl_b32 s39, s36, 9'); A('s_add_u32 s56, s56, s39'); A(f's_add_u32 s56, s56, {W_QP}'); A('s_add_u32 s57, s56, 4096')
    if qack: A('s_waitcnt vmcnt(0)')
    stamp(3)
    A(f's_mov_b32 s67, {SPIN}')
    A('s_movk_i32 s62, 0xf')
    A('L_qw:')
    for j in range(4):
        A(f's_bitcmp1_b32 s62, {j}'); A(f's_cbranch_scc0 L_qs{j}')
        A(f'buffer_load_dwordx4 v[{XF+16+4*j}:{XF+16+4*j+3}], v24, s[48:51], s{56 + (j >> 1)} offen offset:{(j&1)*2048} sc1')
        A(f'L_qs{j}:')
    A('s_waitcnt vmcnt(0)')
    A('s_mov_b32 s62, 0')
    for j in range(4):
        b = XF + 4 * j
        for r in range(4): A(f'v_xor_b32 v{b+r}, v{TG+r}, v{b+16+r}')
        A(f'v_or3_b32 v25, v{b}, v{b+1}, v{b+2}'); A(f'v_or_b32 v25, v25, v{b+3}'); A(f'v_and_b32 v25, v{TG+4}, v25')
        A('v_cmp_ne_u32 vcc, 0, v25')
        A('s_nop 0')
        A('s_cmp_lg_u64 vcc, 0'); A(f's_cselect_b32 s39, {1 << j}, 0'); A('s_or_b32 s62, s62, s39')
    A('s_cbranch_scc0 L_qd')
    A('s_sub_u32 s67, s67, 1'); A('s_cmp_lg_u32 s67, 0'); A('s_cbranch_scc1 L_qw')
    A('L_qd:')
    for r in range(4):
        A(f'v_add_f32 v{XF+r}, v{XF+r}, v{XF+4+r}'); A(f'v_add_f32 v{XF+8+r}, v{XF+8+r}, v{XF+12+r}')
    for r in range(4): A(f'v_add_f32 v{XF+r}, v{XF+r}, v{XF+8+r}')
    A(f'v_permlane32_swap_b32 v{XF}, v{XF+2}'); A(f'v_permlane32_swap_b32 v{XF+1}, v{XF+3}')
    A(f'v_add_f32 v{XF}, v{XF}, v{XF+2}'); A(f'v_add_f32 v{XF+1}, v{XF+1}, v{XF+3}')
    A(f'v_cvt_pk_bf16_f32 v{XF}, v{XF}, v{XF+1}')
    A('v_and_b32 v22, 31, v1'); A('v_lshlrev_b32 v22, 3, v22'); A('v_lshrrev_b32 v23, 5, v1'); A('v_lshl_add_u32 v22, v23, 2, v22')
    A(f'ds_write_b32 v22, v{XF} offset:{L_Q}')
    A('v_mov_b32 v25, 1'); A(f'v_mov_b32 v26, {L_QRDY}')
    A('s_waitcnt lgkmcnt(0)')
    A('ds_write_b32 v26, v25')
    stamp(4)
    A(f's_sub_u32 s61, s2, {C0}')
    if not nomlp:
        A('s_cmp_lt_u32 s61, 80'); A('s_cbranch_scc1 L_gate')
    write_stamps(1)
    A('s_endpgm')
    A('L_gate:')
    wait_lds(L_PROG, pG)
    A('v_lshrrev_b32 v16, 2, v1'); A('v_min_u32 v19, 11, v16'); A('v_mul_u32_u24 v16, 5120, v16'); A('v_mul_u32_u24 v19, 5120, v19')
    A('v_and_b32 v17, 3, v1'); A('v_lshl_add_u32 v16, v17, 4, v16'); A('v_lshl_add_u32 v19, v17, 4, v19')
    A('s_lshl_b32 s8, s61, 6'); A(f's_add_u32 s8, s8, {W_G}')
    for j in range(1, 7): A(f's_add_u32 s{8+j}, s8, {j*16*5120}')
    A('v_and_b32 v17, 3, v1'); A('v_lshlrev_b32 v17, 3, v17')
    A('v_bfe_u32 v18, v1, 2, 2'); A('v_lshl_add_u32 v17, v18, 1, v17')
    A('s_lshl_b32 s57, s61, 5')
    A('buffer_load_ushort v20, v17, s[44:47], s57 offen')
    A('s_cmp_ge_u32 s61, 40'); A('s_cselect_b32 s58, 1280, 0'); A('s_sub_u32 s57, s57, s58')
    A('s_mov_b32 s52, s26'); A('s_mov_b32 s53, s27'); A('s_mov_b32 s54, 1280'); A('s_mov_b32 s55, 0x20000')
    A('buffer_load_ushort v21, v17, s[52:55], s57 offen')
    poll([f'buffer_load_dwordx4 v[{XF+4*j}:{XF+4*j+3}], v{16 if j < 6 else 19}, s[48:51], s{8+j} offen sc1' for j in range(7)],
         [XF + 4 * j for j in range(7)], 18, sleep)
    A('v_cmp_gt_u32 vcc, 48, v1')
    for r in range(4): A(f'v_cndmask_b32 v{XF+24+r}, 0, v{XF+24+r}, vcc')
    for j in range(1, 7):
        for r in range(4): A(f'v_add_f32 v{XF+r}, v{XF+r}, v{XF+4*j+r}')
    col_reduce(XF, XF + 4, 18, 19)
    bf16r(18, 18)
    A('v_lshlrev_b32 v21, 16, v21'); A('v_lshlrev_b32 v20, 16, v20')
    A('v_add_f32 v18, v18, v21')
    bf16r(18, 18)
    A(f'v_mul_f32 v19, {f2u(-1.4426950408889634):#x}, v18')
    A('v_exp_f32 v19, v19')
    A('v_add_f32 v19, 1.0, v19')
    A('v_rcp_f32 v19, v19')
    A('v_mul_f32 v18, v18, v19')
    bf16r(18, 18)
    A('v_lshlrev_b32 v16, 2, v1')
    A(f'ds_write_b32 v16, v18 offset:{L_G}')
    A(f'ds_write_b32 v16, v20 offset:{L_X}')
    A('s_waitcnt lgkmcnt(0)')
    stamp(5)
    write_stamps(1)
    A('s_endpgm')

    A('L_hm2:')
    A(f's_sub_u32 s5, s2, {N1}')
    A(f's_mul_i32 s56, s5, {16*1280}')
    A(f's_sub_u32 s42, {1728*1280}, s56')
    A('s_mul_i32 s59, s5, 5120'); A(f's_add_u32 s59, s59, {W_G}')
    A('s_waitcnt lgkmcnt(0)')
    A('s_add_u32 s40, s24, s56'); A('s_addc_u32 s41, s25, 0')
    A('s_branch L_g2')
    A('L_hp:')
    A('s_lshl_b32 s5, s34, 3'); A('s_add_u32 s5, s5, s4')
    A(f's_mul_i32 s56, s5, {16*1280}')
    A(f's_sub_u32 s42, {4096*1280}, s56')
    A('s_mul_i32 s59, s5, 5120'); A(f's_add_u32 s59, s59, {W_Y}')
    A('s_waitcnt lgkmcnt(0)')
    A('s_add_u32 s40, s16, s56'); A('s_addc_u32 s41, s17, 0')
    A('L_g2:')
    A('s_barrier')
    load_tag()
    A('s_mov_b32 s48, s32'); A('s_mov_b32 s49, s33')
    A(f'v_mul_u32_u24 v12, {4*1280}, v2'); A(f'v_lshl_add_u32 v{VW}, v3, 4, v12')
    for i in range(4):
        A(f's_movk_i32 s57, {i*1280}')
        for cb in range(5):
            n = i * 5 + cb
            if n == 1:
                A('v_lshrrev_b32 v12, 1, v2'); A('v_mul_u32_u24 v12, 2560, v12'); A('v_lshl_add_u32 v12, v3, 5, v12')
                A('v_and_b32 v13, 1, v2'); A(f'v_lshl_add_u32 v{VST}, v13, 4, v12')
                selectors()
                A('v_and_b32 v94, 7, v3')
                A('v_lshrrev_b32 v95, 3, v3')
                A('s_waitcnt vmcnt(0)')
            elif n > Dw: A(f's_waitcnt vmcnt({Dw - 1})')
            r = BUF + 4 * n
            A(f'buffer_load_dwordx4 v[{r}:{r+3}], v{VW}, s[40:43], s57 offen offset:{cb*256} {wflags}')
    A('s_waitcnt lgkmcnt(0)')
    make_tag()
    stamp(1)
    UU = XN
    tagregs(TG)
    A('s_cmp_eq_u32 s3, 2'); A('s_cbranch_scc1 L_hp2')
    if nomlp == 2: A('s_branch L_g2e')
    wait_lds(L_PROG, pH)
    if nomlp == 5: A('s_branch L_g2c')
    A('v_lshlrev_b32 v94, 10, v94'); A('v_lshl_add_u32 v94, v2, 4, v94'); A('v_lshl_add_u32 v94, v95, 9, v94')
    A('s_lshr_b32 s39, s5, 3'); A('s_lshl_b32 s39, s39, 13'); A('s_and_b32 s57, s5, 7'); A('s_lshl_b32 s57, s57, 6'); A('s_add_u32 s39, s39, s57'); A(f's_add_u32 s39, s39, {W_H}')
    A('s_mov_b32 s52, s22'); A('s_mov_b32 s53, s23'); A(f's_mov_b32 s54, {1728*2}'); A('s_mov_b32 s55, 0x20000')
    A('s_lshl_b32 s57, s5, 5'); A('v_lshlrev_b32 v17, 3, v2')
    A('buffer_load_dwordx2 v[20:21], v17, s[52:55], s57 offen')
    poll([f'buffer_load_dwordx4 v[{XF}:{XF+3}], v94, s[48:51], s39 offen sc1'], [XF], 18, sleep)
    red8('v_add_f32', [XF + r for r in range(4)], [XF + 4 + r for r in range(4)])
    for j in range(4):
        bf16r(XF + j, XF + j)
        if j % 2 == 0: A(f'v_lshlrev_b32 v18, 16, v{20+j//2}')
        else: A(f'v_and_b32 v18, 0xffff0000, v{20+j//2}')
        A(f'v_add_f32 v{XF+j}, v{XF+j}, v18')
        bf16r(XF + j, XF + j)
        A(f'v_max_f32 v{XF+j}, 0, v{XF+j}')
        A(f'v_mul_f32 v{XF+j}, v{XF+j}, v{XF+j}')
    A('s_branch L_g2c')
    A('L_hp2:')
    wait_lds(L_PROG, pML)
    A('v_lshlrev_b32 v16, 4, v94'); A('v_lshl_add_u32 v16, v95, 13, v16')
    A('s_lshl_b32 s39, s34, 8')
    polltag(['buffer_load_dwordx4 v[20:23], v16, s[48:51], s39 offen sc1', 'buffer_load_dwordx4 v[24:27], v16, s[48:51], s39 offen offset:128 sc1'], [20, 24], 18, sleep)
    A('v_max_f32 v28, v20, v24')
    red8('v_max_f32', [28], [29])
    A('v_sub_f32 v20, v20, v28'); A('v_sub_f32 v24, v24, v28')
    A('v_exp_f32 v20, v20'); A('v_exp_f32 v24, v24')
    A('v_mul_f32 v22, v22, v20'); A('v_fmac_f32 v22, v26, v24')
    red8('v_add_f32', [22], [29])
    A('v_rcp_f32 v22, v22')
    A('v_mul_f32 v44, v20, v22'); A('v_mul_f32 v45, v24, v22')
    A('v_lshlrev_b32 v94, 9, v94'); A('v_lshl_add_u32 v94, v2, 4, v94'); A('v_lshl_add_u32 v94, v95, 18, v94')
    A('s_lshl_b32 s39, s34, 13'); A('s_lshl_b32 s57, s4, 6'); A('s_add_u32 s39, s39, s57'); A(f's_add_u32 s39, s39, {W_O}'); A('s_add_u32 s57, s39, 4096')
    stamp(2)
    A('s_barrier')
    stamp(3)
    poll([f'buffer_load_dwordx4 v[{XF}:{XF+3}], v94, s[48:51], s39 offen sc1', f'buffer_load_dwordx4 v[{XF+4}:{XF+7}], v94, s[48:51], s57 offen sc1'], [XF, XF + 4], 18, 0)
    stamp(4)
    for r in range(4): A(f'v_mul_f32 v{XF+r}, v44, v{XF+r}')
    for r in range(4): A(f'v_fmac_f32 v{XF+r}, v45, v{XF+4+r}')
    red8('v_add_f32', [XF + r for r in range(4)], [XF + 4 + r for r in range(4)])
    A('L_g2c:')
    A(f'v_cvt_pk_bf16_f32 v{UU}, v{XF}, v{XF+1}'); A(f'v_cvt_pk_bf16_f32 v{UU+1}, v{XF+2}, v{XF+3}')
    pb(0, UU)
    for i in range(4):
        src = HA0 if i % 2 == 0 else HA1
        for cb in range(5):
            if cb == 1 and i < 3: pb(i + 1, UU)
            n = i * 5 + cb
            c = '0' if i == 0 else f'v[{HACC+4*cb}:{HACC+4*cb+3}]'
            A(f'v_mfma_f32_16x16x32_bf16 v[{HACC+4*cb}:{HACC+4*cb+3}], v[{src}:{src+3}], v[{BUF+4*n}:{BUF+4*n+3}], {c}')
    if nomlp == 4:
        A('s_cmp_lg_u32 s3, 2'); A('s_cbranch_scc1 L_g2e')
    for cb in range(5):
        entag(HACC + 4 * cb, HACC + 4 * cb, TG)
        A(f'buffer_store_dwordx4 v[{HACC+4*cb}:{HACC+4*cb+3}], v{VST}, s[48:51], s59 offen offset:{cb*512} {stflags}')
    stamp(5)
    A('s_cmp_lg_u32 s3, 2'); A('s_cbranch_scc1 L_g2e')
    if yack: A('s_waitcnt vmcnt(0)')
    stamp(6)
    A('s_barrier')
    write_stamps(1)
    A('s_endpgm')
    A('L_g2e:')
    write_stamps(1)
    A('L_end:')
    A('s_endpgm')
    body = a.finalize()
    out = HEADER
    out += f'; @launch grid=(256,1,1) block=(448,1,1) lds={L_TOTAL}\n'
    out += '.amdgcn_target "amdgcn-amd-amdhsa--gfx950"\n.text\n'
    out += f'.globl {NAME}_kernel\n.p2align 8\n.type {NAME}_kernel,@function\n'
    out += body
    out += f'''.section .rodata,"a"
.p2align 6
.amdhsa_kernel {NAME}_kernel
  .amdhsa_next_free_vgpr 208
  .amdhsa_next_free_sgpr 100
  .amdhsa_accum_offset 208
  .amdhsa_group_segment_fixed_size 0
  .amdhsa_kernarg_size 104
  .amdhsa_user_sgpr_count 2
  .amdhsa_user_sgpr_kernarg_segment_ptr 1
  .amdhsa_system_sgpr_workgroup_id_x 1
.end_amdhsa_kernel
'''
    return out

if __name__ == '__main__':
    ap = argparse.ArgumentParser()
    ap.add_argument('out')
    ap.add_argument('opts', nargs='*')
    args = ap.parse_args()
    kw = {}
    for o in args.opts:
        k, v = o.split('=')
        kw[k] = v if k.endswith('flags') else int(v)
    open(args.out, 'w').write(gen(**kw))
```

```python
import sys, struct, argparse
from asmlib import Asm
NAME = 'recurrent_scan__mha_block_cached__dense_activation_squared_relu__decode'
def f2u(x): return struct.unpack('<I', struct.pack('<f', x))[0]
HEADER = open('cdna_kernels/' + NAME + '.s.ref').read().split('; Override launch')[0]

L_YACK = 280
L_Q, L_PROG, L_FAST, L_CTL, L_QRDY, L_G, L_X, L_F, L_TOTAL = 0, 256, 260, 264, 272, 512, 768, 1024, 2048
W_ML, W_TS, W_EP, W_H, W_QP, W_O, W_G, W_Y, W_SIZE = 0, 0x8000, 0xC000, 0x10000, 0x40000, 0x80000, 0x100000, 0x200000, 0x400000
N1, N2, C0 = 112, 108, 176

def gen(D=5, D0=3, D0n=12, stamps=0, mimic=0, kvflags='nt', wflags='nt', sleep=32, fixdur=0, amp=-1,
        pH=2, pG=6, pML=6, Dw=5, ctl=1, cmargin=20, cscale=256, Dhi=8, fast=1, prestore=1, yack=1, ysl=0, ysl2=0, ypre=0, yldflags='sc1', ystflags='sc1', D00=0, Dm=5, gsl=28, Dlo=4, lead=60, dryp=0, dryc=0, oldflags='sc1', ostflags=''):
    if fixdur: stamps = 1
    a = Asm(); A = a
    SPIN = 0x20000
    cnt = [0]
    def uid():
        cnt[0] += 1; return cnt[0]
    def stamp(i):
        if stamps: A(f's_memrealtime s[{76+2*i}:{77+2*i}]')
    def write_stamps(role):
        if not stamps or fixdur: return
        n = uid()
        A('s_waitcnt lgkmcnt(0)')
        if role == 0:
            A('s_cmp_lg_u32 s38, 0'); A(f's_cbranch_scc1 L_nostamp{n}')
        elif role == 1:
            wait_q(); wait_lds(L_PROG, 8)
        A('s_mov_b64 exec, -1')
        A('s_add_u32 s92, s32, 0x10000000'); A('s_addc_u32 s93, s33, 0'); A('s_mov_b32 s94, 0x100000'); A('s_mov_b32 s95, 0x20000')
        A('s_lshl_b32 s39, s2, 8')
        if role != 0:
            A('s_add_u32 s56, s3, 1'); A('s_lshl_b32 s56, s56, 6'); A('s_add_u32 s39, s39, s56')
        A('v_and_b32 v2, 63, v0'); A('v_lshlrev_b32 v2, 24, v2')
        for q in range(4):
            for r in range(4): A(f'v_mov_b32 v{4+4*q+r}, s{76+4*q+r}')
            A(f'buffer_store_dwordx4 v[{4+4*q}:{7+4*q}], v2, s[92:95], s39 offen offset:{16*q}')
        A(f'L_nostamp{n}:')
    def bf16r(dst, src):
        A(f'v_cvt_pk_bf16_f32 v{dst}, v{src}, v{src}')
        A(f'v_lshlrev_b32 v{dst}, 16, v{dst}')
    DPPF = 'row_mask:0xf bank_mask:0xf'
    def red8(op, regs, tmps):
        for r, t in zip(regs, tmps): A(f'{op}_dpp v{t}, v{r}, v{r} quad_perm:[1,0,3,2] {DPPF}')
        for r, t in zip(regs, tmps): A(f'{op}_dpp v{r}, v{t}, v{t} quad_perm:[2,3,0,1] {DPPF}')
        for r, t in zip(regs, tmps): A(f'{op}_dpp v{r}, v{r}, v{r} row_half_mirror {DPPF}')
    def rows_add(r, t, op='v_add_f32'):
        A(f'v_mov_b32 v{t}, v{r}'); A(f'v_permlane16_swap_b32 v{r}, v{t}'); A(f'{op} v{r}, v{r}, v{t}')
        A(f'v_mov_b32 v{t}, v{r}'); A(f'v_permlane32_swap_b32 v{r}, v{t}'); A(f'{op} v{r}, v{r}, v{t}')
    def col_reduce(x, y, t0, t1):
        for r in range(4): A(f'v_add_f32_dpp v{y+r}, v{x+r}, v{x+r} row_ror:4 {DPPF}')
        for r in range(4): A(f'v_add_f32_dpp v{t0}, v{y+r}, v{y+r} row_ror:8 row_mask:0xf bank_mask:{1<<r:#x}')
        rows_add(t0, t1)
    def wait_lds(addr, level, va=16, vt=17, slp=8):
        n = uid()
        A(f's_mov_b32 s67, {SPIN*8}')
        A(f'v_mov_b32 v{va}, {addr}')
        A(f'L_pw{n}:')
        A(f'ds_read_b32 v{vt}, v{va}'); A('s_waitcnt lgkmcnt(0)')
        A(f'v_readfirstlane_b32 s39, v{vt}')
        A(f's_cmp_ge_u32 s39, {level}'); A(f's_cbranch_scc1 L_pd{n}')
        if slp: A(f's_sleep {slp}')
        A('s_sub_u32 s67, s67, 1'); A('s_cmp_lg_u32 s67, 0'); A(f's_cbranch_scc1 L_pw{n}')
        A(f'L_pd{n}:')
    def wait_q(va=16, vt=18, slp=4):
        n = uid()
        A(f's_mov_b32 s67, {SPIN*8}')
        A(f'v_mov_b32 v{va}, {L_QRDY}')
        A(f'L_pw{n}:')
        A(f'ds_read_b64 v[{vt}:{vt+1}], v{va}'); A('s_waitcnt lgkmcnt(0)')
        A(f'v_readfirstlane_b32 s68, v{vt}'); A(f'v_readfirstlane_b32 s69, v{vt+1}')
        A('s_cmp_eq_u64 s[68:69], s[74:75]'); A(f's_cbranch_scc1 L_pd{n}')
        A(f's_sleep {slp}')
        A('s_sub_u32 s67, s67, 1'); A('s_cmp_lg_u32 s67, 0'); A(f's_cbranch_scc1 L_pw{n}')
        A(f'L_pd{n}:')
    def spin_tail(n, slp):
        A('s_nop 1')
        A('s_cmp_eq_u64 vcc, 0'); A(f's_cbranch_scc1 L_gd{n}')
        if slp: A(f's_sleep {slp}')
        A('s_sub_u32 s67, s67, 1'); A('s_cmp_lg_u32 s67, 0'); A(f's_cbranch_scc1 L_gw{n}')
        A(f'L_gd{n}:')
    def polltag(loads, bases, t, slp):
        n = uid()
        A(f's_mov_b32 s67, {SPIN}')
        A(f'L_gw{n}:')
        for l in loads: A(l)
        A('s_waitcnt vmcnt(0)')
        for k, b in enumerate(bases):
            A(f'v_xor_b32 v{b+1}, s74, v{b+1}'); A(f'v_xor_b32 v{b+3}, s75, v{b+3}')
            if k == 0: A(f'v_or_b32 v{t}, v{b+1}, v{b+3}')
            else: A(f'v_or3_b32 v{t}, v{t}, v{b+1}, v{b+3}')
        A(f'v_cmp_ne_u32 vcc, 0, v{t}')
        spin_tail(n, slp)
    def untag(quads, t):
        first = True
        for b in quads:
            for r in range(4): A(f'v_xor_b32 v{b+r}, s{70+r}, v{b+r}')
            if first:
                A(f'v_or3_b32 v{t}, v{b}, v{b+1}, v{b+2}'); A(f'v_or_b32 v{t}, v{t}, v{b+3}'); first = False
            else:
                A(f'v_or3_b32 v{t}, v{t}, v{b}, v{b+1}'); A(f'v_or3_b32 v{t}, v{t}, v{b+2}, v{b+3}')
        A(f'v_and_b32 v{t}, 0xfff, v{t}')
    def poll(loads, quads, t, slp, init=True):
        n = uid()
        if init: A(f's_mov_b32 s67, {SPIN}')
        A(f'L_gw{n}:')
        for l in loads: A(l)
        A('s_waitcnt vmcnt(0)')
        untag(quads, t)
        A(f'v_cmp_ne_u32 vcc, 0, v{t}')
        spin_tail(n, slp)
    def tagregs(base):
        for r in range(4): A(f'v_mov_b32 v{base+r}, s{70+r}')
        A(f'v_mov_b32 v{base+4}, 0xfff')
    def entag(dst, src, tb, rnd=False):
        for r in range(4):
            if rnd:
                A(f'v_add_u32 v{dst+r}, 0x800, v{src+r}'); A(f'v_bfi_b32 v{dst+r}, v{tb+4}, v{tb+r}, v{dst+r}')
            else:
                A(f'v_bfi_b32 v{dst+r}, v{tb+4}, v{tb+r}, v{src+r}')
    def load_tag():
        A(f's_load_dwordx2 s[74:75], s[32:33], {W_EP}')
    def make_tag():
        A('s_add_u32 s74, s74, 0x7f4a7c15'); A('s_addc_u32 s75, s75, 0x9e3779b9')
        A('s_and_b32 s70, s74, 0xfff'); A('s_bfe_u32 s71, s74, 0xc000c')
        A('s_lshr_b64 s[72:73], s[74:75], 24'); A('s_bfe_u32 s73, s72, 0xc000c'); A('s_and_b32 s72, s72, 0xfff')

    A(f'{NAME}_kernel:')
    A('s_cmp_ge_u32 s2, 256'); A('s_cbranch_scc1 L_end')
    A('s_load_dwordx16 s[8:23], s[0:1], 0')
    A('s_load_dwordx8 s[24:31], s[0:1], 64')
    A('s_load_dwordx2 s[32:33], s[0:1], 96')
    if stamps:
        for i in range(76, 92): A(f's_mov_b32 s{i}, 0')
    stamp(0)
    A('v_lshrrev_b32 v2, 6, v0')
    A('v_and_b32 v1, 63, v0')
    A('v_readfirstlane_b32 s3, v2')
    A('s_and_b32 s34, s2, 7'); A('s_lshl_b32 s34, s34, 2'); A('s_lshr_b32 s35, s2, 6'); A('s_add_u32 s34, s34, s35')
    A('s_bfe_u32 s36, s2, 0x10005')
    A('s_bfe_u32 s37, s2, 0x20003')
    A('s_bfe_u32 s4, s2, 0x30003')
    A('s_lshl_b32 s35, s36, 5'); A('s_add_u32 s35, s35, s34')
    A(f's_mov_b32 s50, {W_SIZE}'); A('s_mov_b32 s51, 0x20000'); A('s_mov_b32 s43, 0x20000')
    A('v_lshrrev_b32 v2, 4, v1')
    A('v_and_b32 v3, 15, v1')
    A('s_cmp_lt_u32 s3, 3'); A('s_cbranch_scc1 L_helper')

    Q, MASK, ACC, A0, A1 = 4, 8, 12, 16, 20
    P0, T01, T23, U, U2, M, Lr, MN, E1, E2, PP, VO, LANE = 24, 28, 29, 30, 31, 32, 33, 34, 35, 36, 37, 38, 39
    S, RING, TG = 40, 72, 200
    A('s_sub_u32 s38, s3, 3')
    A('s_lshl_b32 s56, s35, 21'); A('s_lshl_b32 s57, s37, 19'); A('s_add_u32 s56, s56, s57')
    A('s_lshl_b32 s57, s38, 12'); A('s_add_u32 s56, s56, s57')
    A('s_sub_u32 s42, 0x80000, s57')
    A(f'v_mov_b32 v{LANE}, v1')
    A('v_lshlrev_b32 v1, 4, v1')
    A('s_and_b32 s58, s2, 31'); A('s_lshl_b32 s58, s58, 14')
    A('s_waitcnt lgkmcnt(0)')
    A('s_add_u32 s40, s10, s56'); A('s_addc_u32 s41, s11, 0')
    def issue(j, wait, dyn=False):
        i = j & 3
        if i == 0:
            A('s_mov_b32 s57, s58'); A('s_add_u32 s58, s58, 0x4000'); A('s_and_b32 s58, s58, 0x7ffff')
            if dyn and lead: A(f's_cmp_lt_i32 s98, {-lead*16}')
        if wait is not None:
            if dyn:
                n = uid()
                A(f's_waitcnt vmcnt({Dhi-1})'); A(f's_cbranch_vccnz L_dw{n}'); A(f's_waitcnt vmcnt({wait})')
                if lead: A(f's_cbranch_scc0 L_dw{n}'); A(f's_waitcnt vmcnt({Dlo-1})')
                A(f'L_dw{n}:')
            else: A(f's_waitcnt vmcnt({wait})')
        r = RING + 4 * j
        A(f'buffer_load_dwordx4 v[{r}:{r+3}], v1, s[40:43], s57 offen offset:{i*1024} {kvflags}')
    F = D00 if D00 else D0
    for j in range(32):
        d = D0 if j < D0n else D
        if j < F: issue(j, None)
        elif j == F: issue(j, F - 1)
        else: issue(j, d - 1)
        if j == F - 1:
            load_tag()
            A('s_add_u32 s44, s12, s56'); A('s_addc_u32 s45, s13, 0')
            A('s_mov_b32 s48, s32'); A('s_mov_b32 s49, s33')
            A('v_lshlrev_b32 v16, 5, v3'); A('v_and_b32 v17, 1, v2'); A('v_lshl_add_u32 v16, v17, 4, v16')
            A('v_lshrrev_b32 v17, 1, v2'); A(f'v_lshl_add_u32 v{VO}, v17, 24, v16')
            A('s_lshl_b32 s65, s37, 2'); A('s_add_u32 s65, s65, s38')
            A('s_lshl_b32 s66, s65, 9'); A('s_lshl_b32 s39, s35, 13'); A('s_add_u32 s66, s66, s39'); A(f's_add_u32 s66, s66, {W_O}')
            A('s_lshl_b32 s65, s65, 4'); A('s_lshl_b32 s39, s35, 8'); A('s_add_u32 s65, s65, s39')
            A('v_and_b32 v16, 1, v3'); A('v_lshlrev_b32 v16, 4, v16'); A('v_mov_b32 v17, 0xffff'); A('v_lshlrev_b32 v16, v16, v17')
            A('v_lshrrev_b32 v17, 1, v3')
            for r in range(4):
                A(f'v_cmp_eq_u32 vcc, {r}, v17'); A(f'v_cndmask_b32 v{MASK+r}, 0, v16, vcc')
            A('v_lshlrev_b32 v3, 4, v3')
            A(f'v_mov_b32 v2, {L_PROG}')
            A(f'v_mov_b32 v{M}, 0xff7fffff'); A(f'v_mov_b32 v{Lr}, 0')
            for r in range(4): A(f'v_mov_b32 v{ACC+r}, 0')
            A(f's_mov_b32 s61, {f2u(1.4426950408889634 * 128 ** -0.5):#x}')
            A(f's_mov_b32 s62, {f2u(128 ** -0.5):#x}'); A(f's_mov_b32 s63, {f2u(1.4426950408889634):#x}')
        if j == 16:
            A('s_waitcnt lgkmcnt(0)')
            make_tag()
            tagregs(TG)
    stamp(1)
    wait_q(slp=1)
    stamp(2)
    A(f'ds_read_b128 v[{Q}:{Q+3}], v3 offset:{L_Q}')
    A('s_mov_b32 s59, 0')
    A('s_waitcnt lgkmcnt(0)')
    A('L_kloop:')
    A('s_cmp_eq_u32 s59, 3')
    A('s_cselect_b32 s40, s44, s40'); A('s_cselect_b32 s41, s45, s41')
    A('s_add_u32 s59, s59, 1')
    A(f'v_mov_b32 v{PP}, s59')
    A(f'ds_max_u32 v2, v{PP}')
    for t in range(8):
        R = lambda i: RING + 4 * (4 * t + i)
        for i in range(4): A(f'v_dot2_f32_bf16 v{P0+i}, v{R(i)}, v{Q}, 0')
        for r in range(1, 4):
            for i in range(4): A(f'v_dot2c_f32_bf16 v{P0+i}, v{R(i)+r}, v{Q+r}')
        issue(4 * t + 0, D - 1)
        A(f'v_add_f32_dpp v{T01}, v{P0}, v{P0} row_ror:8 row_mask:0xf bank_mask:0xf')
        A(f'v_add_f32_dpp v{T23}, v{P0+2}, v{P0+2} row_ror:8 row_mask:0xf bank_mask:0xf')
        A(f'v_add_f32_dpp v{T01}, v{P0+1}, v{P0+1} row_ror:8 row_mask:0xf bank_mask:0xc')
        A(f'v_add_f32_dpp v{T23}, v{P0+3}, v{P0+3} row_ror:8 row_mask:0xf bank_mask:0xc')
        A(f'v_mov_b32 v{S+t}, v{S+8+t}')
        A(f'v_add_f32_dpp v{U}, v{T01}, v{T01} row_half_mirror row_mask:0xf bank_mask:0xf')
        A(f'v_add_f32_dpp v{U}, v{T23}, v{T23} row_half_mirror row_mask:0xf bank_mask:0xa')
        A(f'v_mov_b32 v{S+8+t}, v{S+16+t}')
        A(f'v_mov_b32 v{S+16+t}, v{S+24+t}')
        A(f'v_add_f32_dpp v{U2}, v{U}, v{U} quad_perm:[1,0,3,2] row_mask:0xf bank_mask:0xf')
        issue(4 * t + 1, D - 1)
        A(f'v_add_f32_dpp v{U}, v{U2}, v{U2} quad_perm:[2,3,0,1] row_mask:0xf bank_mask:0xf')
        if mimic:
            bf16r(U, U)
            A(f'v_mul_f32 v{U}, s62, v{U}')
            bf16r(U, U)
            A(f'v_mul_f32 v{S+24+t}, s63, v{U}')
        else:
            A(f'v_mul_f32 v{S+24+t}, s61, v{U}')
        A(f'v_max_f32 v{MN}, v{M}, v{S+24+t}')
        A(f'v_sub_f32 v{E1}, v{M}, v{MN}')
        A(f'v_sub_f32 v{E2}, v{S+24+t}, v{MN}')
        A(f'v_exp_f32 v{E1}, v{E1}')
        A(f'v_exp_f32 v{E2}, v{E2}')
        A(f'v_mov_b32 v{M}, v{MN}')
        A(f'v_fma_f32 v{Lr}, v{Lr}, v{E1}, v{E2}')
        issue(4 * t + 2, D - 1)
        issue(4 * t + 3, D - 1)
    A('s_cmp_lt_u32 s59, 4'); A('s_cbranch_scc1 L_kloop')
    stamp(3)
    A(f'v_max_f32_dpp v{E1}, v{M}, v{M} row_ror:4 row_mask:0xf bank_mask:0xf')
    A(f'v_max_f32_dpp v{E2}, v{E1}, v{E1} row_ror:8 row_mask:0xf bank_mask:0xf')
    A(f'v_max_f32_dpp v{E2}, v{E2}, v{E2} row_bcast:15 row_mask:0xa bank_mask:0xf')
    A(f'v_max_f32_dpp v{E2}, v{E2}, v{E2} row_bcast:31 row_mask:0xc bank_mask:0xf')
    A(f'v_readlane_b32 s60, v{E2}, 63')
    A(f'v_subrev_f32 v{E1}, s60, v{M}')
    A(f'v_exp_f32 v{E1}, v{E1}')
    A(f'v_mul_f32 v{Lr}, v{Lr}, v{E1}')
    A(f'v_add_f32_dpp v{E1}, v{Lr}, v{Lr} row_ror:4 row_mask:0xf bank_mask:0xf')
    A(f'v_add_f32_dpp v{E2}, v{E1}, v{E1} row_ror:8 row_mask:0xf bank_mask:0xf')
    A(f'v_add_f32_dpp v{E2}, v{E2}, v{E2} row_bcast:15 row_mask:0xa bank_mask:0xf')
    A(f'v_add_f32_dpp v{E2}, v{E2}, v{E2} row_bcast:31 row_mask:0xc bank_mask:0xf')
    A(f'v_readlane_b32 s64, v{E2}, 63')
    A('s_getreg_b32 s39, hwreg(HW_REG_XCC_ID, 0, 4)')
    A(f'v_mov_b32 v{P0}, s60'); A(f'v_mov_b32 v{P0+1}, s74')
    A('s_and_b32 s64, s64, -16'); A('s_or_b32 s64, s64, s39')
    A(f'v_lshlrev_b32 v{U}, 24, v{LANE}')
    A(f'v_mov_b32 v{P0+2}, s64'); A(f'v_mov_b32 v{P0+3}, s75')
    A(f'buffer_store_dwordx4 v[{P0}:{P0+3}], v{U}, s[48:51], s65 offen sc1')
    A('s_mov_b64 vcc, 0'); A('s_mov_b32 s7, 0'); A('s_mov_b32 s98, 0')
    CT = M
    A(f'ds_read_b128 v[{CT}:{CT+3}], v2')
    if ctl: A('s_memrealtime s[96:97]')
    A('L_vloop:')
    A('s_add_u32 s59, s59, 1')
    A(f'v_mov_b32 v{PP}, s59')
    A(f'ds_max_u32 v2, v{PP}')
    if prestore:
        A('s_cmp_lg_u32 s59, 7'); A('s_cbranch_scc1 L_nopre')
        for r in range(4): A(f'v_not_b32 v{P0+r}, v{TG+r}')
        A(f'buffer_store_dwordx4 v[{P0}:{P0+3}], v{VO}, s[48:51], s66 offen')
        A('L_nopre:')
    beta = [0, 2, 1, 3]
    EX, PK = T01, T23
    for t in range(8):
        R = lambda i: RING + 4 * (4 * t + i)
        A(f'v_subrev_f32 v{EX}, s60, v{S+t}')
        A(f'v_exp_f32 v{EX}, v{EX}')
        A(f'v_mov_b32 v{S+t}, v{S+8+t}')
        A(f'v_cvt_pk_bf16_f32 v{PK}, v{EX}, v{EX}')
        A(f'v_mov_b32 v{S+8+t}, v{S+16+t}')
        A(f'v_mov_b32 v{S+16+t}, v{S+24+t}')
        def build(i):
            dst = A0 if i % 2 == 0 else A1
            for r in range(4):
                n = (2 * r - 4 * beta[i]) % 16
                if n == 0: A(f'v_and_b32 v{dst+r}, v{PK}, v{MASK+r}')
                else: A(f'v_and_b32_dpp v{dst+r}, v{PK}, v{MASK+r} row_ror:{n} row_mask:0xf bank_mask:0xf')
        def mf(i):
            src = A0 if i % 2 == 0 else A1
            A(f'v_mfma_f32_16x16x32_bf16 v[{ACC}:{ACC+3}], v[{src}:{src+3}], v[{R(i)}:{R(i)+3}], v[{ACC}:{ACC+3}]')
        build(0); build(1); mf(0); build(2); mf(1); build(3); mf(2); mf(3)
        A('s_cmp_eq_u32 s59, 8')
        nextwait = 28 - 4 * (t + 1)
        if t < 7 and nextwait < (Dhi if ctl else D):
            A(f's_cbranch_scc0 L_vi{t}')
            A(f's_waitcnt vmcnt({nextwait})')
            A(f's_branch L_vc{t}')
            A(f'L_vi{t}:')
        else:
            A(f's_cbranch_scc1 L_vc{t}')
        issue(4 * t + 0, D - 1, dyn=ctl)
        if ctl:
            A('s_waitcnt lgkmcnt(0)')
            A(f'v_readfirstlane_b32 s5, v{CT+2}'); A(f'v_readfirstlane_b32 s6, v{CT+3}')
            A('s_lshl_b32 s98, s96, 4'); A('s_sub_u32 s98, s98, s5'); A('s_mul_i32 s5, s6, s7'); A('s_sub_u32 s98, s98, s5')
            A('s_add_u32 s7, s7, 1')
            A('s_cmp_lg_u32 s6, 0'); A('s_cselect_b32 s98, s98, 0')
            A('s_cmp_gt_i32 s98, 0'); A('s_cselect_b64 vcc, -1, 0')
            if lead: A(f's_cmp_lt_i32 s98, {-lead*16}')
        for i in range(1, 4): issue(4 * t + i, D - 1, dyn=ctl)
        if ctl or t == 7:
            A(f'ds_read_b128 v[{CT}:{CT+3}], v2')
        if ctl: A('s_memrealtime s[96:97]')
        if t < 7: A(f'L_vc{t}:')
    A('s_branch L_vloop')
    A('L_vc7:')
    A('s_waitcnt lgkmcnt(0)')
    A(f'v_readfirstlane_b32 s39, v{CT+1}')
    A('s_nop 3')
    entag(A0, ACC, TG)
    if fast:
        A('s_cmp_eq_u32 s39, 1'); A('s_cbranch_scc1 L_ofast')
    A(f'buffer_store_dwordx4 v[{A0}:{A0+3}], v{VO}, s[48:51], s66 offen sc1')
    A('s_waitcnt vmcnt(0)')
    if fast:
        A('s_branch L_odone')
        A('L_ofast:')
        A(f'buffer_store_dwordx4 v[{A0}:{A0+3}], v{VO}, s[48:51], s66 offen {ostflags}')
        if fast == 2: A('s_waitcnt vmcnt(0)')
        A('L_odone:')
    stamp(4)
    A('s_barrier')
    A(f's_sub_u32 s59, s2, {C0}')
    A(f's_mov_b32 s66, {SPIN}'); A('s_movk_i32 s54, 2560')
    A('s_cmp_lt_u32 s59, 80')
    A('s_cbranch_scc1 L_consumer')
    write_stamps(0)
    A('s_endpgm')
    A('L_consumer:')
    A('s_lshl_b32 s40, s59, 6'); A(f's_mul_i32 s57, s38, {64*5120}'); A('s_add_u32 s40, s40, s57'); A(f's_add_u32 s40, s40, {W_Y}')
    for j in range(1, 4): A(f's_add_u32 s{40+j}, s40, {j*16*5120}')
    A(f'v_lshrrev_b32 v1, 2, v{LANE}'); A('v_mul_u32_u24 v1, 5120, v1'); A(f'v_and_b32 v3, 3, v{LANE}'); A('v_lshl_add_u32 v1, v3, 4, v1')
    G0 = RING
    A(f'v_lshlrev_b32 v2, 2, v{LANE}')
    A('v_lshlrev_b32 v3, 3, v3')
    A(f'v_bfe_u32 v{T01}, v{LANE}, 2, 2'); A(f'v_lshl_add_u32 v3, v{T01}, 1, v3')
    A('s_lshl_b32 s57, s59, 5')
    A('s_mov_b32 s52, s28'); A('s_mov_b32 s53, s29'); A('s_mov_b32 s55, 0x20000')
    A('s_lshl_b32 s58, s38, 8')
    A(f'v_add_u32 v{U2}, s58, v2')
    A(f'v_mov_b32 v{S+2}, s74'); A(f'v_mov_b32 v{S+3}, s75')
    A('s_lshl_b32 s56, s59, 24'); A(f's_add_u32 s56, s56, {W_EP}')
    A(f'v_mov_b32 v{T01}, {L_YACK}')
    A('s_mov_b32 s67, s66')
    A('L_yaw:')
    A(f'ds_read_b32 v{T23}, v{T01}'); A('s_waitcnt lgkmcnt(0)')
    A(f'v_readfirstlane_b32 s39, v{T23}')
    A('s_cmp_ge_u32 s39, 1'); A('s_cbranch_scc1 L_yad')
    A('s_sub_u32 s67, s67, 1'); A('s_cmp_lg_u32 s67, 0'); A('s_cbranch_scc1 L_yaw')
    A('L_yad:')
    if ysl: A(f's_sleep {ysl}')
    for j in range(4):
        A(f'buffer_load_dwordx4 v[{G0+4*j}:{G0+4*j+3}], v1, s[48:51], s{40+j} offen {yldflags}')
    A('L_ypoll:')
    G1 = G0 + 16
    A('s_waitcnt vmcnt(0)')
    for j in range(4):
        for r in range(4): A(f'v_xor_b32 v{G1+4*j+r}, v{TG+r}, v{G0+4*j+r}')
        A(f'v_or3_b32 v{P0+j}, v{G1+4*j}, v{G1+4*j+1}, v{G1+4*j+2}')
    for j in range(4):
        A(f'v_or_b32 v{P0+j}, v{P0+j}, v{G1+4*j+3}')
    for j in range(4):
        A(f'v_and_b32 v{P0+j}, v{TG+4}, v{P0+j}')
    for j in range(4):
        A(f'v_cmp_ne_u32 s[{68+2*j}:{69+2*j}], 0, v{P0+j}')
    for r in range(4):
        A(f'v_add_f32 v{G1+r}, v{G1+r}, v{G1+4+r}')
    A('s_or_b64 s[60:61], s[68:69], s[70:71]'); A('s_or_b64 s[62:63], s[72:73], s[74:75]'); A('s_or_b64 s[60:61], s[60:61], s[62:63]')
    A('s_cbranch_scc0 L_ydone')
    if ysl2: A(f's_sleep {ysl2}')
    for j in range(4):
        A(f's_mov_b64 exec, s[{68+2*j}:{69+2*j}]')
        A(f's_cbranch_execz L_yskip{j}')
        A(f'buffer_load_dwordx4 v[{G0+4*j}:{G0+4*j+3}], v1, s[48:51], s{40+j} offen {yldflags}')
        A(f'L_yskip{j}:')
    A('s_mov_b64 exec, -1')
    A('s_sub_u32 s66, s66, 1'); A('s_cmp_lg_u32 s66, 0'); A('s_cbranch_scc1 L_ypoll')
    A('L_ydone:')
    stamp(5)
    for r in range(4):
        A(f'v_add_f32 v{G1+8+r}, v{G1+8+r}, v{G1+12+r}')
    for r in range(4):
        A(f'v_add_f32 v{G0+r}, v{G1+r}, v{G1+8+r}')
    col_reduce(G0, G0 + 4, T01, T23)
    A(f'ds_write_b32 v{U2}, v{T01} offset:{L_F}')
    A('s_waitcnt lgkmcnt(0)')
    if dryc:
        A('s_cmp_eq_u32 s50, 0'); A('s_cbranch_scc1 L_nod')
    A('s_barrier')
    A('s_cmp_lg_u32 s38, 0'); A('s_cbranch_scc1 L_end')
    A('L_nod:')
    for k in range(1, 4):
        A(f'ds_read_b32 v{P0+k}, v2 offset:{L_F + 256*k}')
    A(f'ds_read_b32 v{S}, v2 offset:{L_G}')
    A(f'ds_read_b32 v{S+1}, v2 offset:{L_X}')
    A('s_waitcnt lgkmcnt(0)')
    A(f'v_add_f32 v{T01}, v{T01}, v{P0+1}')
    A(f'v_add_f32 v{P0+2}, v{P0+2}, v{P0+3}')
    A(f'v_add_f32 v{T01}, v{T01}, v{P0+2}')
    bf16r(T01, T01)
    A(f'v_mul_f32 v{T01}, v{T01}, v{S}')
    bf16r(T01, T01)
    A(f'v_add_f32 v{T01}, v{T01}, v{S+1}')
    A(f'v_cvt_pk_bf16_f32 v{T01}, v{T01}, v{T01}')
    A(f'buffer_store_short v{T01}, v3, s[52:55], s57 offen')
    A(f'buffer_store_dwordx2 v[{S+2}:{S+3}], v{U}, s[48:51], s56 offen')
    if dryc:
        A('s_cmp_eq_u32 s50, 0'); A('s_cbranch_scc1 L_gate2')
    stamp(6)
    if fixdur:
        A('s_waitcnt lgkmcnt(0)')
        A(f's_mov_b32 s92, {fixdur}')
        if amp >= 0:
            A(f's_sub_u32 s93, s{76+2*amp}, s76'); A('s_mul_i32 s93, s93, 10'); A('s_add_u32 s92, s92, s93')
        A('L_fix:')
        A('s_memrealtime s[90:91]'); A('s_waitcnt lgkmcnt(0)')
        A('s_sub_u32 s90, s90, s76'); A('s_cmp_lt_u32 s90, s92'); A('s_cbranch_scc1 L_fix')
    write_stamps(0)
    A('s_endpgm')

    SEL, HACC, HA0, HA1, XN, XS, XF, VW, VST, BUF, ACC2 = 4, 12, 32, 36, 40, 50, 60, 92, 93, 96, 176
    def selectors():
        A('v_and_b32 v12, 7, v3'); A('v_lshrrev_b32 v13, 1, v12'); A('v_and_b32 v12, 1, v12')
        A('v_mov_b32 v14, 0x0c0c0c0c')
        A('v_cmp_eq_u32 vcc, 1, v12')
        A('v_mov_b32 v22, 0x0c0c0100'); A('v_mov_b32 v23, 0x01000c0c'); A('v_cndmask_b32 v22, v22, v23, vcc')
        A('v_mov_b32 v24, 0x0c0c0302'); A('v_mov_b32 v23, 0x03020c0c'); A('v_cndmask_b32 v24, v24, v23, vcc')
        for r in range(4):
            A(f'v_cmp_eq_u32 vcc, {r}, v13')
            A(f'v_cndmask_b32 v{SEL+r}, v14, v22, vcc')
            A(f'v_cndmask_b32 v{SEL+4+r}, v14, v24, vcc')
    A('L_helper:')
    A('s_cmp_eq_u32 s3, 0'); A('s_cbranch_scc1 L_hq')
    A('s_cmp_eq_u32 s3, 2'); A('s_cbranch_scc1 L_hp')
    A(f's_cmp_ge_u32 s2, {N1+N2}'); A('s_cbranch_scc1 L_end')
    A(f's_cmp_ge_u32 s2, {N1}'); A('s_cbranch_scc1 L_hm2')
    A('s_and_b32 s5, s2, 7'); A('s_lshr_b32 s56, s2, 3')
    A('s_movk_i32 s6, 3456')
    A('s_lshl_b32 s59, s2, 10'); A(f's_add_u32 s59, s59, {W_H}')
    A('s_lshl_b32 s56, s56, 8'); A(f's_mul_i32 s57, s5, {80*3456}'); A('s_add_u32 s56, s56, s57')
    A(f's_sub_u32 s42, {640*3456}, s56')
    A('s_waitcnt lgkmcnt(0)')
    A('s_add_u32 s40, s20, s56'); A('s_addc_u32 s41, s21, 0')
    A('s_branch L_g1')
    A('L_hq:')
    A('s_mov_b32 s5, s4')
    A('s_movk_i32 s6, 8192')
    A('s_lshl_b32 s59, s34, 13'); A('s_lshl_b32 s39, s5, 10'); A('s_add_u32 s59, s59, s39'); A(f's_add_u32 s59, s59, {W_QP}')
    A('s_lshl_b32 s56, s34, 8'); A(f's_mul_i32 s57, s5, {80*8192}'); A('s_add_u32 s56, s56, s57')
    A(f's_sub_u32 s42, {640*8192}, s56')
    A('s_waitcnt lgkmcnt(0)')
    A('s_add_u32 s40, s14, s56'); A('s_addc_u32 s41, s15, 0')
    A('L_g1:')
    A('s_mov_b32 s44, s8'); A('s_mov_b32 s45, s9'); A('s_mov_b32 s46, 2560'); A('s_mov_b32 s47, 0x20000')
    A('v_bfe_u32 v12, v1, 3, 1'); A('v_mul_u32_u24 v12, 1280, v12')
    A('v_and_b32 v13, 7, v1'); A('v_lshl_add_u32 v13, v2, 3, v13'); A('v_lshl_add_u32 v13, v13, 3, v12')
    for j in range(5):
        A(f'buffer_load_dwordx2 v[{XS+2*j}:{XS+2*j+1}], v13, s[44:47], 0 offen offset:{j*256}')
    A('v_mul_u32_u24 v14, 40, v2'); A('v_add_u32 v14, v14, v12'); A('s_mul_i32 s39, s5, 160')
    for j in range(5):
        A(f'buffer_load_dwordx2 v[{XN+2*j}:{XN+2*j+1}], v14, s[44:47], s39 offen offset:{j*8}')
    A('s_mul_i32 s39, s6, 20'); A('v_mul_lo_u32 v12, v2, s39'); A(f'v_lshl_add_u32 v{VW}, v3, 4, v12')
    load_tag()
    A('s_mov_b32 s57, 0')
    for i in range(20):
        r = BUF + 4 * i
        if i % Dm == 0:
            A('s_cmp_eq_u32 s3, 0'); A(f's_cbranch_scc1 L_nt{i}'); A(f's_waitcnt vmcnt({0 if i == 0 else 1})'); A(f'L_nt{i}:')
        A(f'buffer_load_dwordx4 v[{r}:{r+3}], v{VW}, s[40:43], s57 offen {wflags}')
        if i < 19: A('s_add_u32 s57, s57, s6')
    A('s_mov_b32 s48, s32'); A('s_mov_b32 s49, s33')
    A('v_lshrrev_b32 v12, 1, v2'); A('v_lshlrev_b32 v12, 9, v12'); A('v_lshl_add_u32 v12, v3, 5, v12')
    A('v_and_b32 v13, 1, v2'); A(f'v_lshl_add_u32 v{VST}, v13, 4, v12')
    selectors()
    A('v_mov_b32 v20, 0x3f803f80')
    A('s_waitcnt vmcnt(25)')
    A(f'v_dot2_f32_bf16 v12, v{XS}, v20, 0'); A(f'v_dot2_f32_bf16 v13, v{XS+1}, v20, 0')
    for j in range(2, 10, 2):
        A(f'v_dot2_f32_bf16 v12, v{XS+j}, v20, v12'); A(f'v_dot2_f32_bf16 v13, v{XS+j+1}, v20, v13')
    for j in range(10):
        A(f'v_lshlrev_b32 v{XF+2*j}, 16, v{XS+j}')
        A(f'v_and_b32 v{XF+2*j+1}, 0xffff0000, v{XS+j}')
    A('v_add_f32 v12, v12, v13')
    red8('v_add_f32', [12], [13]); rows_add(12, 13)
    A(f's_mov_b32 s39, {f2u(1.0/640):#x}')
    A('v_mul_f32 v12, s39, v12')
    A('v_mov_b32 v14, 0'); A('v_mov_b32 v15, 0')
    for j in range(0, 20, 2):
        A(f'v_sub_f32 v22, v{XF+j}, v12'); A(f'v_sub_f32 v23, v{XF+j+1}, v12')
        A('v_fmac_f32 v14, v22, v22'); A('v_fmac_f32 v15, v23, v23')
    A('v_add_f32 v14, v14, v15')
    red8('v_add_f32', [14], [15]); rows_add(14, 15)
    A('v_mul_f32 v14, s39, v14')
    bf16r(12, 12)
    bf16r(14, 14)
    A(f'v_add_f32 v14, {f2u(1e-5):#x}, v14')
    bf16r(14, 14)
    A('v_sqrt_f32 v14, v14')
    bf16r(14, 14)
    A('v_rcp_f32 v14, v14')
    A('s_waitcnt vmcnt(20)')
    for j in range(10):
        A(f'v_lshlrev_b32 v{XF+2*j}, 16, v{XN+j}'); A(f'v_and_b32 v{XF+2*j+1}, 0xffff0000, v{XN+j}')
        A(f'v_sub_f32 v{XF+2*j}, v{XF+2*j}, v12'); A(f'v_sub_f32 v{XF+2*j+1}, v{XF+2*j+1}, v12')
        A(f'v_cvt_pk_bf16_f32 v{XN+j}, v{XF+2*j}, v{XF+2*j+1}')
    for j in range(10):
        A(f'v_lshlrev_b32 v{XF+2*j}, 16, v{XN+j}'); A(f'v_and_b32 v{XF+2*j+1}, 0xffff0000, v{XN+j}')
        A(f'v_mul_f32 v{XF+2*j}, v14, v{XF+2*j}'); A(f'v_mul_f32 v{XF+2*j+1}, v14, v{XF+2*j+1}')
        A(f'v_cvt_pk_bf16_f32 v{XN+j}, v{XF+2*j}, v{XF+2*j+1}')
    A('s_waitcnt lgkmcnt(0)')
    make_tag()
    stamp(1)
    tagregs(TG)
    def pb(i, src):
        dst = HA0 if i % 2 == 0 else HA1
        for r in range(4):
            A(f'v_perm_b32 v{dst+r}, v{src+(i>>1)}, v{src+(i>>1)}, v{SEL+4*(i&1)+r}')
    pb(0, XN)
    for i in range(20):
        if i < 19: pb(i + 1, XN)
        if i % 4 == 0: A(f's_waitcnt vmcnt({19 - (i + 3)})')
        src = HA0 if i % 2 == 0 else HA1
        c = '0' if i == 0 else f'v[{HACC}:{HACC+3}]'
        A(f'v_mfma_f32_16x16x32_bf16 v[{HACC}:{HACC+3}], v[{src}:{src+3}], v[{BUF+4*i}:{BUF+4*i+3}], {c}')
    entag(16, HACC, TG, rnd=True)
    A(f'buffer_store_dwordx4 v[16:19], v{VST}, s[48:51], s59 offen sc1')
    stamp(2)
    A('s_cmp_eq_u32 s3, 0'); A('s_cbranch_scc1 L_hq2')
    write_stamps(1)
    A('s_endpgm')
    A('L_hq2:')
    A('v_and_b32 v24, 31, v1'); A('v_lshlrev_b32 v24, 4, v24'); A('v_lshrrev_b32 v25, 5, v1'); A('v_lshl_add_u32 v24, v25, 10, v24')
    A('s_lshl_b32 s56, s34, 13'); A('s_lshl_b32 s39, s36, 9'); A('s_add_u32 s56, s56, s39'); A(f's_add_u32 s56, s56, {W_QP}'); A('s_add_u32 s57, s56, 4096')
    for r in range(4): A(f'v_mov_b32 v{28+r}, 0')
    A(f'v_mov_b32 v26, {L_PROG}')
    A('ds_write_b128 v26, v[28:31]')
    A(f'ds_write_b32 v26, v28 offset:{L_YACK - L_PROG}')
    A('s_waitcnt vmcnt(0)')
    stamp(3)
    A(f's_mov_b32 s67, {SPIN}')
    A('s_movk_i32 s62, 0xf')
    A('L_qw:')
    for j in range(4):
        A(f's_bitcmp1_b32 s62, {j}'); A(f's_cbranch_scc0 L_qs{j}')
        A(f'buffer_load_dwordx4 v[{XF+16+4*j}:{XF+16+4*j+3}], v24, s[48:51], s{56 + (j >> 1)} offen offset:{(j&1)*2048} sc1')
        A(f'L_qs{j}:')
    A('s_waitcnt vmcnt(0)')
    A('s_mov_b32 s62, 0')
    for j in range(4):
        b = XF + 4 * j
        for r in range(4): A(f'v_xor_b32 v{b+r}, v{TG+r}, v{b+16+r}')
        A(f'v_or3_b32 v25, v{b}, v{b+1}, v{b+2}'); A(f'v_or_b32 v25, v25, v{b+3}'); A(f'v_and_b32 v25, v{TG+4}, v25')
        A('v_cmp_ne_u32 vcc, 0, v25')
        A('s_nop 0')
        A('s_cmp_lg_u64 vcc, 0'); A(f's_cselect_b32 s39, {1 << j}, 0'); A('s_or_b32 s62, s62, s39')
    A('s_cbranch_scc0 L_qd')
    A('s_sub_u32 s67, s67, 1'); A('s_cmp_lg_u32 s67, 0'); A('s_cbranch_scc1 L_qw')
    A('L_qd:')
    for r in range(4):
        A(f'v_add_f32 v{XF+r}, v{XF+r}, v{XF+4+r}'); A(f'v_add_f32 v{XF+8+r}, v{XF+8+r}, v{XF+12+r}')
    for r in range(4): A(f'v_add_f32 v{XF+r}, v{XF+r}, v{XF+8+r}')
    A(f'v_permlane32_swap_b32 v{XF}, v{XF+2}'); A(f'v_permlane32_swap_b32 v{XF+1}, v{XF+3}')
    A(f'v_add_f32 v{XF}, v{XF}, v{XF+2}'); A(f'v_add_f32 v{XF+1}, v{XF+1}, v{XF+3}')
    A(f'v_cvt_pk_bf16_f32 v{XF}, v{XF}, v{XF+1}')
    A('v_and_b32 v22, 31, v1'); A('v_lshlrev_b32 v22, 3, v22'); A('v_lshrrev_b32 v23, 5, v1'); A('v_lshl_add_u32 v22, v23, 2, v22')
    A(f'ds_write_b32 v22, v{XF} offset:{L_Q}')
    A('v_mov_b32 v28, s74'); A('v_mov_b32 v29, s75')
    A('s_waitcnt lgkmcnt(0)')
    A(f'ds_write_b64 v26, v[28:29] offset:{L_QRDY - L_PROG}')
    stamp(4)
    A(f's_sub_u32 s61, s2, {C0}')
    A('s_cmp_lt_u32 s61, 80'); A('s_cbranch_scc1 L_gate')
    write_stamps(1)
    A('s_endpgm')
    A('L_gate:')
    if dryc:
        A('s_mov_b64 s[96:97], s[70:71]'); A('s_mov_b64 s[98:99], s[72:73]'); A('s_mov_b64 s[6:7], s[74:75]')
        A(f'v_mov_b32 v{LANE}, v1'); A(f'v_lshlrev_b32 v{U}, 24, v1')
        A('s_mov_b32 s50, 0'); A('s_mov_b32 s54, 0'); A('s_mov_b32 s66, 1'); A('s_mov_b32 s38, 0'); A('s_mov_b32 s59, s61')
        A('s_branch L_consumer')
        A('L_gate2:')
        A(f's_mov_b32 s50, {W_SIZE}')
        A('s_mov_b64 s[70:71], s[96:97]'); A('s_mov_b64 s[72:73], s[98:99]'); A('s_mov_b64 s[74:75], s[6:7]')
        A(f'v_mov_b32 v1, v{LANE}'); A('s_mov_b32 s61, s59')
        A('s_waitcnt vmcnt(0)')
    A('v_lshrrev_b32 v16, 2, v1'); A('v_min_u32 v19, 11, v16'); A('v_mul_u32_u24 v16, 5120, v16'); A('v_mul_u32_u24 v19, 5120, v19')
    A('v_and_b32 v17, 3, v1'); A('v_lshl_add_u32 v16, v17, 4, v16'); A('v_lshl_add_u32 v19, v17, 4, v19')
    A('s_lshl_b32 s8, s61, 6'); A(f's_add_u32 s8, s8, {W_G}')
    for j in range(1, 7): A(f's_add_u32 s{8+j}, s8, {j*16*5120}')
    A('v_lshlrev_b32 v17, 3, v17')
    A('v_bfe_u32 v18, v1, 2, 2'); A('v_lshl_add_u32 v17, v18, 1, v17')
    A('s_lshl_b32 s57, s61, 5')
    A('buffer_load_ushort v20, v17, s[44:47], s57 offen')
    A('s_cmp_ge_u32 s61, 40'); A('s_cselect_b32 s58, 1280, 0'); A('s_sub_u32 s57, s57, s58')
    A('s_mov_b32 s52, s26'); A('s_mov_b32 s53, s27'); A('s_mov_b32 s54, 1280'); A('s_mov_b32 s55, 0x20000')
    A('buffer_load_ushort v21, v17, s[52:55], s57 offen')
    if dryc:
        A('s_waitcnt vmcnt(0)')
        A('v_mov_b32 v30, v20'); A('v_mov_b32 v31, v21'); A('v_mov_b32 v29, v16'); A('v_mov_b32 v28, v19')
        A('s_mov_b32 s50, 0'); A('s_mov_b32 s67, 1'); A('s_branch L_gate4')
        A('L_gate3:')
        A(f's_mov_b32 s50, {W_SIZE}')
        A('v_mov_b32 v20, v30'); A('v_mov_b32 v21, v31'); A('v_mov_b32 v16, v29'); A('v_mov_b32 v19, v28')
    A(f's_mov_b32 s67, {SPIN}')
    A('s_barrier')
    if gsl: A(f's_sleep {gsl}')
    A('L_gate4:')
    poll([f'buffer_load_dwordx4 v[{XF+4*j}:{XF+4*j+3}], v{16 if j < 6 else 19}, s[48:51], s{8+j} offen sc1' for j in range(7)],
         [XF + 4 * j for j in range(7)], 18, 4, init=False)
    A('v_cmp_gt_u32 vcc, 48, v1')
    for r in range(4): A(f'v_cndmask_b32 v{XF+24+r}, 0, v{XF+24+r}, vcc')
    for j in range(1, 7):
        for r in range(4): A(f'v_add_f32 v{XF+r}, v{XF+r}, v{XF+4*j+r}')
    col_reduce(XF, XF + 4, 18, 19)
    bf16r(18, 18)
    A('v_lshlrev_b32 v21, 16, v21'); A('v_lshlrev_b32 v20, 16, v20')
    A('v_add_f32 v18, v18, v21')
    bf16r(18, 18)
    A(f'v_mul_f32 v19, {f2u(-1.4426950408889634):#x}, v18')
    A('v_exp_f32 v19, v19')
    A('v_add_f32 v19, 1.0, v19')
    A('v_rcp_f32 v19, v19')
    A('v_mul_f32 v18, v18, v19')
    bf16r(18, 18)
    A('v_lshlrev_b32 v16, 2, v1')
    A(f'ds_write_b32 v16, v18 offset:{L_G}')
    A(f'ds_write_b32 v16, v20 offset:{L_X}')
    A('s_waitcnt lgkmcnt(0)')
    if dryc:
        A('s_cmp_eq_u32 s50, 0'); A('s_cbranch_scc1 L_gate3')
    stamp(5)
    if stamps: A('s_barrier')
    write_stamps(2)
    A('s_endpgm')

    A('L_hm2:')
    A(f's_sub_u32 s5, s2, {N1}')
    A('s_mul_i32 s59, s5, 5120'); A(f's_add_u32 s59, s59, {W_G}')
    A(f's_mul_i32 s56, s5, {16*1280}')
    A(f's_sub_u32 s42, {1728*1280}, s56')
    A('s_waitcnt lgkmcnt(0)')
    A('s_add_u32 s40, s24, s56'); A('s_addc_u32 s41, s25, 0')
    A('s_branch L_g2')
    A('L_hp:')
    A('s_lshl_b32 s5, s34, 3'); A('s_add_u32 s5, s5, s4')
    A(f's_mul_i32 s56, s5, {16*1280}')
    A(f's_sub_u32 s42, {4096*1280}, s56')
    A('s_mul_i32 s59, s5, 5120'); A(f's_add_u32 s59, s59, {W_Y}')
    A('s_waitcnt lgkmcnt(0)')
    A('s_add_u32 s40, s16, s56'); A('s_addc_u32 s41, s17, 0')
    A('L_g2:')
    load_tag()
    A('s_mov_b32 s48, s32'); A('s_mov_b32 s49, s33')
    A(f'v_mul_u32_u24 v12, {4*1280}, v2'); A(f'v_lshl_add_u32 v{VW}, v3, 4, v12')
    A('v_lshrrev_b32 v12, 1, v2'); A('v_mul_u32_u24 v12, 2560, v12'); A('v_lshl_add_u32 v12, v3, 5, v12')
    A('v_and_b32 v13, 1, v2'); A(f'v_lshl_add_u32 v{VST}, v13, 4, v12')
    selectors()
    A('v_and_b32 v94, 7, v3')
    A('v_lshrrev_b32 v95, 3, v3')
    for r in range(20): A(f'v_mov_b32 v{ACC2+r}, 0')
    A('s_waitcnt lgkmcnt(0)')
    make_tag()
    tagregs(TG)
    A('L_g2l:')
    for i in range(4):
        A(f's_movk_i32 s57, {i*1280}')
        for cb in range(5):
            n = i * 5 + cb
            if n >= Dw: A(f's_waitcnt vmcnt({Dw - 1})')
            r = BUF + 4 * n
            A(f'buffer_load_dwordx4 v[{r}:{r+3}], v{VW}, s[40:43], s57 offen offset:{cb*256} {wflags}')
    stamp(1)
    UU = XN
    wait_q()
    A('s_cmp_eq_u32 s3, 2'); A('s_cbranch_scc1 L_hp2')
    wait_lds(L_PROG, pH)
    A('v_lshlrev_b32 v16, 10, v94'); A('v_lshl_add_u32 v16, v2, 4, v16'); A('v_lshl_add_u32 v16, v95, 9, v16')
    A('s_lshr_b32 s39, s5, 3'); A('s_lshl_b32 s39, s39, 13'); A('s_and_b32 s57, s5, 7'); A('s_lshl_b32 s57, s57, 6'); A('s_add_u32 s39, s39, s57'); A(f's_add_u32 s39, s39, {W_H}')
    A('s_mov_b32 s52, s22'); A('s_mov_b32 s53, s23'); A(f's_mov_b32 s54, {1728*2}'); A('s_mov_b32 s55, 0x20000')
    A('s_lshl_b32 s57, s5, 5'); A('v_lshlrev_b32 v17, 3, v2')
    A('buffer_load_dwordx2 v[20:21], v17, s[52:55], s57 offen')
    poll([f'buffer_load_dwordx4 v[{XF}:{XF+3}], v16, s[48:51], s39 offen sc1'], [XF], 18, sleep)
    red8('v_add_f32', [XF + r for r in range(4)], [XF + 4 + r for r in range(4)])
    for j in range(4):
        bf16r(XF + j, XF + j)
        if j % 2 == 0: A(f'v_lshlrev_b32 v18, 16, v{20+j//2}')
        else: A(f'v_and_b32 v18, 0xffff0000, v{20+j//2}')
        A(f'v_add_f32 v{XF+j}, v{XF+j}, v18')
        bf16r(XF + j, XF + j)
        A(f'v_max_f32 v{XF+j}, 0, v{XF+j}')
        A(f'v_mul_f32 v{XF+j}, v{XF+j}, v{XF+j}')
    A('s_branch L_g2c')
    A('L_hp2:')
    A('s_mov_b32 s60, 0')
    if ctl:
        wait_lds(L_PROG, 2, slp=2)
        A('s_memrealtime s[8:9]')
        wait_lds(L_PROG, 4, slp=2)
        A('s_memrealtime s[10:11]')
        A('s_waitcnt lgkmcnt(0)')
        A('v_mov_b32 v20, s8'); A('v_mov_b32 v21, s74'); A('v_mov_b32 v22, s10'); A('v_mov_b32 v23, s75')
        A('v_lshlrev_b32 v24, 24, v1')
        A('s_lshl_b32 s39, s2, 4'); A(f's_add_u32 s39, s39, {W_TS}')
        A('buffer_store_dwordx4 v[20:23], v24, s[48:51], s39 offen sc1')
        wait_lds(L_PROG, 5, slp=4)
        A('v_lshlrev_b32 v24, 4, v1'); A(f's_mov_b32 s39, {W_TS}')
        for j in range(4):
            A(f'buffer_load_dwordx4 v[{XF+4*j}:{XF+4*j+3}], v24, s[48:51], s39 offen offset:{j*1024} sc1')
        A('v_mov_b32 v26, 0'); A('v_mov_b32 v27, 0')
        A('s_sub_u32 s12, s8, s10')
        A('v_mov_b32 v28, s12')
        A('s_waitcnt vmcnt(0)')
        for j in range(4):
            b = XF + 4 * j
            A(f'v_cmp_eq_u32 vcc, s74, v{b+1}')
            A(f'v_subrev_u32 v{b}, s10, v{b}'); A(f'v_subrev_u32 v{b+2}, s10, v{b+2}')
            A(f'v_cndmask_b32 v{b}, v28, v{b}, vcc'); A(f'v_cndmask_b32 v{b+2}, 0, v{b+2}, vcc')
            A(f'v_add_u32 v26, v26, v{b}'); A(f'v_add_u32 v27, v27, v{b+2}')
        red8('v_add_u32', [26, 27], [29, 30])
        A(f'v_add_u32_dpp v26, v26, v26 row_ror:8 {DPPF}'); A(f'v_add_u32_dpp v27, v27, v27 row_ror:8 {DPPF}')
        rows_add(26, 29, 'v_add_u32'); rows_add(27, 30, 'v_add_u32')
        A('v_readfirstlane_b32 s12, v26'); A('v_readfirstlane_b32 s13, v27')
        A('s_sub_u32 s14, s13, s12')
        A(f's_mul_i32 s14, s14, {cscale}'); A('s_ashr_i32 s14, s14, 16')
        A('s_ashr_i32 s13, s13, 4')
        A(f's_add_u32 s15, s10, {cmargin}'); A('s_lshl_b32 s15, s15, 4'); A('s_add_u32 s15, s15, s13')
        A('s_lshl_b32 s12, s14, 3'); A('s_add_u32 s15, s15, s12')
        A('v_mov_b32 v26, s15'); A('v_mov_b32 v27, s14'); A(f'v_mov_b32 v28, {L_CTL}')
        A('ds_write_b64 v28, v[26:27]')
    wait_lds(L_PROG, pML)
    A('v_lshlrev_b32 v16, 4, v94'); A('v_lshl_add_u32 v16, v95, 13, v16')
    A('s_lshl_b32 s39, s34, 8')
    polltag(['buffer_load_dwordx4 v[20:23], v16, s[48:51], s39 offen sc1', 'buffer_load_dwordx4 v[24:27], v16, s[48:51], s39 offen offset:128 sc1'], [20, 24], 18, sleep)
    A('s_getreg_b32 s39, hwreg(HW_REG_XCC_ID, 0, 4)')
    A('v_xor_b32 v21, s39, v22'); A('v_xor_b32 v23, s39, v26'); A('v_or_b32 v21, v21, v23'); A('v_and_b32 v21, 15, v21')
    A('v_cmp_ne_u32 vcc, 0, v21')
    A('v_and_b32 v22, -16, v22'); A('v_and_b32 v26, -16, v26')
    A('s_cmp_eq_u64 vcc, 0'); A('s_cselect_b32 s39, 1, 2')
    A('v_mov_b32 v21, s39'); A(f'v_mov_b32 v23, {L_FAST}')
    A('ds_write_b32 v23, v21')
    A('v_max_f32 v28, v20, v24')
    red8('v_max_f32', [28], [29])
    A('v_sub_f32 v20, v20, v28'); A('v_sub_f32 v24, v24, v28')
    A('v_exp_f32 v20, v20'); A('v_exp_f32 v24, v24')
    A('v_mul_f32 v22, v22, v20'); A('v_fmac_f32 v22, v26, v24')
    red8('v_add_f32', [22], [29])
    A('v_rcp_f32 v22, v22')
    A('v_mul_f32 v44, v20, v22'); A('v_mul_f32 v45, v24, v22')
    A('v_lshlrev_b32 v94, 9, v94'); A('v_lshl_add_u32 v94, v2, 4, v94'); A('v_lshl_add_u32 v94, v95, 18, v94')
    A('s_lshl_b32 s39, s34, 13'); A('s_lshl_b32 s57, s4, 6'); A('s_add_u32 s39, s39, s57'); A(f's_add_u32 s39, s39, {W_O}'); A('s_add_u32 s57, s39, 4096')
    if ypre:
        for r in range(4): A(f'v_not_b32 v{20+r}, v{TG+r}')
        for cb in range(5):
            if ypre == 1: A(f'buffer_store_dwordx4 v[20:23], v{VST}, s[48:51], s59 offen offset:{cb*512} sc1')
            if ypre == 2: A(f'buffer_load_dwordx4 v[{XF+4*cb}:{XF+4*cb+3}], v{VST}, s[48:51], s59 offen offset:{cb*512}')
            if ypre == 3: A(f'buffer_store_dwordx4 v[20:23], v{VST}, s[48:51], s59 offen offset:{cb*512}')
        A('s_waitcnt vmcnt(0)')
    A(f'v_mov_b32 v46, {L_YACK}'); A('v_mov_b32 v47, 1')
    if dryp:
        A('s_mov_b32 s50, 0'); A('s_mov_b32 s67, 1'); A('s_branch L_hp3')
        A('L_hpr:')
        A(f's_mov_b32 s50, {W_SIZE}')
        for r in range(20): A(f'v_mov_b32 v{ACC2+r}, 0')
    A(f's_mov_b32 s67, {SPIN}')
    stamp(2)
    A('s_barrier')
    stamp(3)
    A('L_hp3:')
    poll([f'buffer_load_dwordx4 v[{XF}:{XF+3}], v94, s[48:51], s39 offen {oldflags}', f'buffer_load_dwordx4 v[{XF+4}:{XF+7}], v94, s[48:51], s57 offen {oldflags}'], [XF, XF + 4], 18, 0, init=False)
    stamp(4)
    for r in range(4): A(f'v_mul_f32 v{XF+r}, v44, v{XF+r}')
    for r in range(4): A(f'v_fmac_f32 v{XF+r}, v45, v{XF+4+r}')
    red8('v_add_f32', [XF + r for r in range(4)], [XF + 4 + r for r in range(4)])
    A('L_g2c:')
    A(f'v_cvt_pk_bf16_f32 v{UU}, v{XF}, v{XF+1}'); A(f'v_cvt_pk_bf16_f32 v{UU+1}, v{XF+2}, v{XF+3}')
    pb(0, UU)
    for i in range(4):
        src = HA0 if i % 2 == 0 else HA1
        for cb in range(5):
            if cb == 1 and i < 3: pb(i + 1, UU)
            n = i * 5 + cb
            A(f'v_mfma_f32_16x16x32_bf16 v[{ACC2+4*cb}:{ACC2+4*cb+3}], v[{src}:{src+3}], v[{BUF+4*n}:{BUF+4*n+3}], v[{ACC2+4*cb}:{ACC2+4*cb+3}]')
    A('s_cmp_eq_u32 s3, 2'); A('s_cbranch_scc1 L_g2s')
    A('s_barrier')
    A('L_g2s:')
    A('s_nop 1')
    for cb in range(5):
        entag(ACC2 + 4 * cb, ACC2 + 4 * cb, TG)
        A(f'buffer_store_dwordx4 v[{ACC2+4*cb}:{ACC2+4*cb+3}], v{VST}, s[48:51], s59 offen offset:{cb*512} {ystflags}')
    stamp(5)
    A('s_cmp_lg_u32 s3, 2'); A('s_cbranch_scc1 L_g2e')
    if yack: A('s_waitcnt vmcnt(0)')
    if dryp:
        A('s_cmp_eq_u32 s50, 0'); A('s_cbranch_scc1 L_hpr')
    A('ds_write_b32 v46, v47')
    stamp(6)
    if stamps: A('s_barrier')
    write_stamps(2)
    A('s_endpgm')
    A('L_g2e:')
    if stamps: A('s_barrier')
    write_stamps(2)
    A('L_end:')
    A('s_endpgm')
    body = a.finalize()
    out = HEADER
    out += f'; @launch grid=(256,1,1) block=(448,1,1) lds={L_TOTAL}\n'
    out += '.amdgcn_target "amdgcn-amd-amdhsa--gfx950"\n.text\n'
    out += f'.globl {NAME}_kernel\n.p2align 8\n.type {NAME}_kernel,@function\n'
    out += body
    out += f'''.section .rodata,"a"
.p2align 6
.amdhsa_kernel {NAME}_kernel
  .amdhsa_next_free_vgpr 208
  .amdhsa_next_free_sgpr 100
  .amdhsa_accum_offset 208
  .amdhsa_group_segment_fixed_size 0
  .amdhsa_kernarg_size 104
  .amdhsa_user_sgpr_count 2
  .amdhsa_user_sgpr_kernarg_segment_ptr 1
  .amdhsa_system_sgpr_workgroup_id_x 1
.end_amdhsa_kernel
'''
    return out

if __name__ == '__main__':
    ap = argparse.ArgumentParser()
    ap.add_argument('out')
    ap.add_argument('opts', nargs='*')
    args = ap.parse_args()
    kw = {}
    for o in args.opts:
        k, v = o.split('=')
        kw[k] = v if k.endswith('flags') else int(v)
    open(args.out, 'w').write(gen(**kw))
```

```python
import sys, struct, argparse
from asmlib import Asm
NAME = 'recurrent_scan__mha_block_cached__dense_activation_squared_relu__decode'
def f2u(x): return struct.unpack('<I', struct.pack('<f', x))[0]
HEADER = open('cdna_kernels/' + NAME + '.s.ref').read().split('; Override launch')[0]

L_Q, L_PROG, L_FAST, L_CTL, L_QRDY, L_CNT1, L_CNT2, L_W4, L_CNT0, L_ML, L_OP, L_YP, L_TOTAL = 0, 256, 260, 264, 272, 276, 280, 288, 284, 320, 512, 4608, 8704
W_ML, W_TS, W_EP, W_H, W_QP, W_O, W_G, W_Y, W_SIZE = 0, 0x8000, 0xC000, 0x10000, 0x40000, 0x80000, 0x100000, 0x200000, 0x400000
N1, N2, C0 = 112, 128, 176

def gen(D=5, D0=4, D0n=24, stamps=0, mimic=0, kvflags='nt', wflags='nt', sleep=32, fixdur=0, amp=-1,
        pH=2, pG=4, pML=6, Dw=8, ctl=1, cmargin=30, cscale=256, Dhi=8, fast=1, prestore=1, yack=0, ysl=16, ysl2=0, ypre=0, yldflags='sc1', ystflags='sc1', D00=6, Dm=10, gsl=28, Dlo=4, lead=60, dryp=0, dryc=0, oldflags='sc1', woflags='nt', wo0=8, wos=3, touch=1, gwait=0, gcnt=0, gearly=0, ts64=1, touch1=1, mlwg=1, pst=0, wdum=0, noex=0, tlb=0, D1=0, D1n=0, ka=1, cpf=1, bj=9):
    if fixdur: stamps = 1
    a = Asm(); A = a
    SPIN = 0x20000
    cnt = [0]
    def uid():
        cnt[0] += 1; return cnt[0]
    def stamp(i):
        if stamps: A(f's_memrealtime s[{76+2*i}:{77+2*i}]')
    def write_stamps(role):
        if not stamps or fixdur: return
        n = uid()
        A('s_waitcnt lgkmcnt(0)')
        if role == 1:
            wait_lds(L_CNT2, 4)
        A('s_mov_b64 exec, -1')
        A('s_add_u32 s92, s32, 0x10000000'); A('s_addc_u32 s93, s33, 0'); A('s_mov_b32 s94, 0x100000'); A('s_mov_b32 s95, 0x20000')
        A('s_lshl_b32 s39, s2, 8')
        if role != 0:
            A('s_add_u32 s56, s3, 1'); A('s_lshl_b32 s56, s56, 6'); A('s_add_u32 s39, s39, s56')
        A('v_and_b32 v2, 63, v0'); A('v_lshlrev_b32 v2, 24, v2')
        for q in range(4):
            for r in range(4): A(f'v_mov_b32 v{4+4*q+r}, s{76+4*q+r}')
            A(f'buffer_store_dwordx4 v[{4+4*q}:{7+4*q}], v2, s[92:95], s39 offen offset:{16*q}')
        A(f'L_nostamp{n}:')
    def bf16r(dst, src):
        A(f'v_cvt_pk_bf16_f32 v{dst}, v{src}, v{src}')
        A(f'v_lshlrev_b32 v{dst}, 16, v{dst}')
    DPPF = 'row_mask:0xf bank_mask:0xf'
    def red8(op, regs, tmps):
        for r, t in zip(regs, tmps): A(f'{op}_dpp v{t}, v{r}, v{r} quad_perm:[1,0,3,2] {DPPF}')
        for r, t in zip(regs, tmps): A(f'{op}_dpp v{r}, v{t}, v{t} quad_perm:[2,3,0,1] {DPPF}')
        for r, t in zip(regs, tmps): A(f'{op}_dpp v{r}, v{r}, v{r} row_half_mirror {DPPF}')
    def rows_add(r, t, op='v_add_f32'):
        A(f'v_mov_b32 v{t}, v{r}'); A(f'v_permlane16_swap_b32 v{r}, v{t}'); A(f'{op} v{r}, v{r}, v{t}')
        A(f'v_mov_b32 v{t}, v{r}'); A(f'v_permlane32_swap_b32 v{r}, v{t}'); A(f'{op} v{r}, v{r}, v{t}')
    def col_reduce(x, y, t0, t1):
        for r in range(4): A(f'v_add_f32_dpp v{y+r}, v{x+r}, v{x+r} row_ror:4 {DPPF}')
        for r in range(4): A(f'v_add_f32_dpp v{t0}, v{y+r}, v{y+r} row_ror:8 row_mask:0xf bank_mask:{1<<r:#x}')
        rows_add(t0, t1)
    def wait_lds(addr, level, va=16, vt=17, slp=8):
        n = uid()
        A(f's_mov_b32 s67, {SPIN*8}')
        A(f'v_mov_b32 v{va}, {addr}')
        A(f'L_pw{n}:')
        A(f'ds_read_b32 v{vt}, v{va}'); A('s_waitcnt lgkmcnt(0)')
        A(f'v_readfirstlane_b32 s39, v{vt}')
        A(f's_cmp_ge_u32 s39, {level}'); A(f's_cbranch_scc1 L_pd{n}')
        if slp: A(f's_sleep {slp}')
        A('s_sub_u32 s67, s67, 1'); A('s_cmp_lg_u32 s67, 0'); A(f's_cbranch_scc1 L_pw{n}')
        A(f'L_pd{n}:')
    def wait_q(slp=4):
        wait_lds(L_QRDY, 1, slp=slp)
    def spin_tail(n, slp):
        A('s_nop 1')
        A('s_cmp_eq_u64 vcc, 0'); A(f's_cbranch_scc1 L_gd{n}')
        if slp: A(f's_sleep {slp}')
        A('s_sub_u32 s67, s67, 1'); A('s_cmp_lg_u32 s67, 0'); A(f's_cbranch_scc1 L_gw{n}')
        A(f'L_gd{n}:')
    def polltag(loads, bases, t, slp):
        n = uid()
        A(f's_mov_b32 s67, {SPIN}')
        A(f'L_gw{n}:')
        for l in loads: A(l)
        A('s_waitcnt vmcnt(0)')
        for k, b in enumerate(bases):
            A(f'v_xor_b32 v{b+1}, s74, v{b+1}'); A(f'v_xor_b32 v{b+3}, s75, v{b+3}')
            if k == 0: A(f'v_or_b32 v{t}, v{b+1}, v{b+3}')
            else: A(f'v_or3_b32 v{t}, v{t}, v{b+1}, v{b+3}')
        A(f'v_cmp_ne_u32 vcc, 0, v{t}')
        spin_tail(n, slp)
    def untag(quads, t):
        first = True
        for b in quads:
            for r in range(4): A(f'v_xor_b32 v{b+r}, s{70+r}, v{b+r}')
            if first:
                A(f'v_or3_b32 v{t}, v{b}, v{b+1}, v{b+2}'); A(f'v_or_b32 v{t}, v{t}, v{b+3}'); first = False
            else:
                A(f'v_or3_b32 v{t}, v{t}, v{b}, v{b+1}'); A(f'v_or3_b32 v{t}, v{t}, v{b+2}, v{b+3}')
        A(f'v_and_b32 v{t}, 0xfff, v{t}')
    def poll(loads, quads, t, slp, init=True):
        n = uid()
        if init: A(f's_mov_b32 s67, {SPIN}')
        A(f'L_gw{n}:')
        for l in loads: A(l)
        A('s_waitcnt vmcnt(0)')
        untag(quads, t)
        A(f'v_cmp_ne_u32 vcc, 0, v{t}')
        spin_tail(n, slp)
    def tagregs(base):
        for r in range(4): A(f'v_mov_b32 v{base+r}, s{70+r}')
        A(f'v_mov_b32 v{base+4}, 0xfff')
    def entag(dst, src, tb, rnd=False):
        for r in range(4):
            if rnd:
                A(f'v_add_u32 v{dst+r}, 0x800, v{src+r}'); A(f'v_bfi_b32 v{dst+r}, v{tb+4}, v{tb+r}, v{dst+r}')
            else:
                A(f'v_bfi_b32 v{dst+r}, v{tb+4}, v{tb+r}, v{src+r}')
    def selectors(SEL=4, t=12):
        A(f'v_and_b32 v{t}, 7, v3'); A(f'v_lshrrev_b32 v{t+1}, 1, v{t}'); A(f'v_and_b32 v{t}, 1, v{t}')
        A(f'v_mov_b32 v{t+2}, 0x0c0c0c0c')
        A(f'v_cmp_eq_u32 vcc, 1, v{t}')
        A(f'v_mov_b32 v{t+3}, 0x0c0c0100'); A(f'v_mov_b32 v{t+4}, 0x01000c0c'); A(f'v_cndmask_b32 v{t+3}, v{t+3}, v{t+4}, vcc')
        A(f'v_mov_b32 v{t+5}, 0x0c0c0302'); A(f'v_mov_b32 v{t+4}, 0x03020c0c'); A(f'v_cndmask_b32 v{t+5}, v{t+5}, v{t+4}, vcc')
        for r in range(4):
            A(f'v_cmp_eq_u32 vcc, {r}, v{t+1}')
            A(f'v_cndmask_b32 v{SEL+r}, v{t+2}, v{t+3}, vcc')
            A(f'v_cndmask_b32 v{SEL+4+r}, v{t+2}, v{t+5}, vcc')
    def load_tag():
        A(f's_load_dwordx2 s[74:75], s[32:33], {W_EP}')
    def make_tag():
        A('s_add_u32 s74, s74, 0x7f4a7c15'); A('s_addc_u32 s75, s75, 0x9e3779b9')
        A('s_and_b32 s70, s74, 0xfff'); A('s_bfe_u32 s71, s74, 0xc000c')
        A('s_lshr_b64 s[72:73], s[74:75], 24'); A('s_bfe_u32 s73, s72, 0xc000c'); A('s_and_b32 s72, s72, 0xfff')

    A(f'{NAME}_kernel:')
    def rest_args():
        if ka:
            A('s_load_dwordx8 s[16:23], s[0:1], 32'); A('s_load_dwordx8 s[24:31], s[0:1], 64'); A('s_load_dwordx2 s[32:33], s[0:1], 96')
    if ka:
        A('s_load_dwordx8 s[8:15], s[0:1], 0')
    else:
        A('s_load_dwordx16 s[8:23], s[0:1], 0')
        A('s_load_dwordx8 s[24:31], s[0:1], 64')
        A('s_load_dwordx2 s[32:33], s[0:1], 96')
    stamp(0)
    A('v_readfirstlane_b32 s3, v0')
    A('s_lshr_b32 s35, s2, 6')
    A('s_cmp_ge_u32 s35, 4'); A('s_cbranch_scc1 L_end')
    A('s_and_b32 s34, s2, 7'); A('s_lshl_b32 s34, s34, 2'); A('s_add_u32 s34, s34, s35')
    A('s_and_b32 s39, s2, 32'); A('s_add_u32 s35, s39, s34')
    A('s_lshr_b32 s4, s2, 3'); A('s_and_b32 s37, s4, 3')
    A('s_lshr_b32 s3, s3, 6')
    A('v_and_b32 v1, 63, v0')
    A('s_mov_b32 s43, 0x20000')
    def common2():
        A('s_and_b32 s4, s4, 7'); A('s_lshr_b32 s36, s4, 2')
        A(f's_mov_b32 s50, {W_SIZE}'); A('s_mov_b32 s51, 0x20000')
        A('v_bfe_u32 v2, v0, 4, 2')
        A('v_and_b32 v3, 15, v0')
    A('s_sub_u32 s38, s3, 3'); A('s_cbranch_scc1 L_helper')

    Q, MASK, ACC, A0, A1 = 4, 8, 12, 16, 20
    P0, T01, T23, U, U2, M, Lr, MN, E1, E2, PP, VO, LANE = 24, 28, 29, 30, 31, 32, 33, 34, 35, 36, 37, 38, 39
    S, RING, TG, WO, SSEL, VWO, VY, VL, ONE = 40, 72, 200, 208, 240, 248, 249, 250, 251
    A('s_lshl_b32 s56, s35, 2'); A('s_add_u32 s56, s56, s37'); A('s_lshl_b32 s56, s56, 7'); A('s_add_u32 s56, s56, s38'); A('s_lshl_b32 s56, s56, 12')
    A('s_mov_b32 s42, 0x7d000')
    A('v_lshlrev_b32 v1, 4, v1')
    A('s_and_b32 s57, s2, 31'); A('s_lshl_b32 s57, s57, 14')
    A('s_mov_b32 s58, 0x7ffff')
    A('s_waitcnt lgkmcnt(0)')
    A('s_add_u32 s40, s10, s56'); A('s_addc_u32 s41, s11, 0')
    first = [True]
    def issue(j, wait, dyn=False):
        i = j & 3
        if i == 0:
            if first[0]: first[0] = False
            else: A('s_addk_i32 s57, 0x4000'); A('s_and_b32 s57, s57, s58')
            if dyn and lead: A(f's_cmp_lt_i32 s98, {-lead*16}')
        if wait is not None:
            if dyn:
                n = uid()
                A(f's_waitcnt vmcnt({Dhi-1})'); A(f's_cbranch_vccnz L_dw{n}'); A(f's_waitcnt vmcnt({wait})')
                if lead: A(f's_cbranch_scc0 L_dw{n}'); A(f's_waitcnt vmcnt({Dlo-1})')
                A(f'L_dw{n}:')
            else: A(f's_waitcnt vmcnt({wait})')
        r = RING + 4 * j
        A(f'buffer_load_dwordx4 v[{r}:{r+3}], v1, s[40:43], s57 offen offset:{i*1024} {kvflags}')
    F = D00 if D00 else D0
    seq = []
    def kwait(d):
        n = 0; k = 0
        for x in reversed(seq):
            if x == 'k':
                if k == d - 1: break
                k += 1
            n += 1
        return n
    for j in range(32):
        d = D0 if j < D0n else D
        if j < D1n: d = D1
        if j < F: issue(j, None)
        elif j == F: issue(j, kwait(F))
        else: issue(j, kwait(d))
        seq.append('k')
        if pst and j in (0, F, 12, 22): A(f's_memrealtime s[{76+2*{0:1, F:5, 12:6, 22:7}[j]}:{77+2*{0:1, F:5, 12:6, 22:7}[j]}]')
        if j >= wo0 and (j - wo0) % wos == 0 and (j - wo0) // wos < 8:
            i = (j - wo0) // wos
            A(f's_movk_i32 s39, {i*(640 if wdum & 2 else 1280)}')
            A(f'buffer_load_dwordx4 v[{WO+4*i}:{WO+4*i+3}], v{VWO}, s[52:55], s39 offen {woflags}')
            seq.append('w')
        if j == F - 1:
            rest_args()
            common2()
            A(f'v_and_b32 v{LANE}, 63, v0')
            A('s_add_u32 s44, s12, s56'); A('s_addc_u32 s45, s13, 0')
            A('s_lshl_b32 s39, s34, 2'); A('s_add_u32 s39, s39, s38'); A(f's_mul_i32 s39, s39, {32*1280}'); A('s_mul_i32 s5, s4, 160'); A('s_add_u32 s39, s39, s5')
            A(f'v_mul_u32_u24 v16, {8*1280}, v2'); A('v_lshl_add_u32 v16, v3, 4, v16')
            A('v_mov_b32 v18, 0x40000000'); A('v_cmp_gt_u32 vcc, 10, v3'); A(f'v_cndmask_b32 v{VWO}, v18, v16, vcc')
            A('s_waitcnt lgkmcnt(0)')
            load_tag()
            A('s_add_u32 s52, s16, s39'); A('s_addc_u32 s53, s17, 0'); A(f's_sub_u32 s54, {4096*1280}, s39'); A('s_mov_b32 s55, 0x20000')
            A('s_mov_b32 s48, s32'); A('s_mov_b32 s49, s33')
        if j == bj: A('s_barrier')
        if j == 10:
            A('v_lshrrev_b32 v16, 1, v2'); A('v_mul_u32_u24 v16, 320, v16'); A('v_lshl_add_u32 v16, v3, 5, v16')
            A('v_and_b32 v17, 1, v2'); A('v_lshl_add_u32 v16, v17, 4, v16'); A(f'v_cndmask_b32 v{VY}, v18, v16, vcc')
            A('s_lshl_b32 s99, s34, 3'); A('s_add_u32 s99, s99, s4'); A('s_mul_i32 s99, s99, 640'); A(f's_add_u32 s99, s99, {W_Y}')
            A('v_lshlrev_b32 v16, 8, v3'); A('v_lshl_add_u32 v16, v17, 6, v16')
            A('v_lshrrev_b32 v17, 1, v2'); A(f'v_lshl_add_u32 v{VO}, v17, 24, v16')
            A('s_lshl_b32 s64, s34, 12'); A(f's_add_u32 s64, s64, {W_O}')
            A('s_lshl_b32 s66, s36, 7'); A('s_lshl_b32 s39, s37, 4'); A('s_add_u32 s66, s66, s39'); A('s_add_u32 s66, s66, s64')
            A('s_lshl_b32 s39, s38, 10'); A('s_add_u32 s47, s64, s39')
            A(f'v_add_u32 v{VL}, s39, v1')
            A(f'v_mov_b32 v{ONE}, 1')
        if j == 12:
            selectors(SSEL, 24)
        if j == 14:
            A('v_and_b32 v16, 1, v3'); A('v_lshlrev_b32 v16, 4, v16'); A('v_mov_b32 v17, 0xffff'); A('v_lshlrev_b32 v16, v16, v17')
            A('v_lshrrev_b32 v17, 1, v3')
            for r in range(4):
                A(f'v_cmp_eq_u32 vcc, {r}, v17'); A(f'v_cndmask_b32 v{MASK+r}, 0, v16, vcc')
            A('v_lshlrev_b32 v3, 4, v3')
            A(f'v_mov_b32 v2, {L_PROG}')
            A(f'v_mov_b32 v{M}, 0xff7fffff'); A(f'v_mov_b32 v{Lr}, 0')
            for r in range(4): A(f'v_mov_b32 v{ACC+r}, 0')
            A(f's_mov_b32 s61, {f2u(1.4426950408889634 * 128 ** -0.5):#x}')
            if mimic: A(f's_mov_b32 s62, {f2u(128 ** -0.5):#x}'); A(f's_mov_b32 s63, {f2u(1.4426950408889634):#x}')
        if j == 16:
            A('s_waitcnt lgkmcnt(0)')
            make_tag()
            tagregs(TG)
    wait_q(slp=1)
    stamp(2)
    A(f'ds_read_b128 v[{Q}:{Q+3}], v3 offset:{L_Q}')
    A('s_mov_b32 s59, 0')
    A('s_waitcnt lgkmcnt(0)')
    A('L_kloop:')
    A('s_cmp_eq_u32 s59, 3')
    A('s_cselect_b32 s40, s44, s40'); A('s_cselect_b32 s41, s45, s41')
    A('s_add_u32 s59, s59, 1')
    A(f'v_mov_b32 v{PP}, s59')
    A(f'ds_max_u32 v2, v{PP}')
    for t in range(8):
        R = lambda i: RING + 4 * (4 * t + i)
        for i in range(4): A(f'v_dot2_f32_bf16 v{P0+i}, v{R(i)}, v{Q}, 0')
        for r in range(1, 4):
            for i in range(4): A(f'v_dot2c_f32_bf16 v{P0+i}, v{R(i)+r}, v{Q+r}')
        issue(4 * t + 0, D - 1)
        A(f'v_add_f32_dpp v{T01}, v{P0}, v{P0} row_ror:8 row_mask:0xf bank_mask:0xf')
        A(f'v_add_f32_dpp v{T23}, v{P0+2}, v{P0+2} row_ror:8 row_mask:0xf bank_mask:0xf')
        A(f'v_add_f32_dpp v{T01}, v{P0+1}, v{P0+1} row_ror:8 row_mask:0xf bank_mask:0xc')
        A(f'v_add_f32_dpp v{T23}, v{P0+3}, v{P0+3} row_ror:8 row_mask:0xf bank_mask:0xc')
        A(f'v_mov_b32 v{S+t}, v{S+8+t}')
        A(f'v_add_f32_dpp v{U}, v{T01}, v{T01} row_half_mirror row_mask:0xf bank_mask:0xf')
        A(f'v_add_f32_dpp v{U}, v{T23}, v{T23} row_half_mirror row_mask:0xf bank_mask:0xa')
        A(f'v_mov_b32 v{S+8+t}, v{S+16+t}')
        A(f'v_mov_b32 v{S+16+t}, v{S+24+t}')
        A(f'v_add_f32_dpp v{U2}, v{U}, v{U} quad_perm:[1,0,3,2] row_mask:0xf bank_mask:0xf')
        issue(4 * t + 1, D - 1)
        A(f'v_add_f32_dpp v{U}, v{U2}, v{U2} quad_perm:[2,3,0,1] row_mask:0xf bank_mask:0xf')
        if mimic:
            bf16r(U, U)
            A(f'v_mul_f32 v{U}, s62, v{U}')
            bf16r(U, U)
            A(f'v_mul_f32 v{S+24+t}, s63, v{U}')
        else:
            A(f'v_mul_f32 v{S+24+t}, s61, v{U}')
        A(f'v_max_f32 v{MN}, v{M}, v{S+24+t}')
        A(f'v_sub_f32 v{E1}, v{M}, v{MN}')
        A(f'v_sub_f32 v{E2}, v{S+24+t}, v{MN}')
        A(f'v_exp_f32 v{E1}, v{E1}')
        A(f'v_exp_f32 v{E2}, v{E2}')
        A(f'v_mov_b32 v{M}, v{MN}')
        A(f'v_fma_f32 v{Lr}, v{Lr}, v{E1}, v{E2}')
        issue(4 * t + 2, D - 1)
        issue(4 * t + 3, D - 1)
    A('s_cmp_lt_u32 s59, 4'); A('s_cbranch_scc1 L_kloop')
    stamp(3)
    A(f'v_max_f32_dpp v{E1}, v{M}, v{M} row_ror:4 row_mask:0xf bank_mask:0xf')
    A(f'v_max_f32_dpp v{E2}, v{E1}, v{E1} row_ror:8 row_mask:0xf bank_mask:0xf')
    A(f'v_max_f32_dpp v{E2}, v{E2}, v{E2} row_bcast:15 row_mask:0xa bank_mask:0xf')
    A(f'v_max_f32_dpp v{E2}, v{E2}, v{E2} row_bcast:31 row_mask:0xc bank_mask:0xf')
    A(f'v_readlane_b32 s60, v{E2}, 63')
    A(f'v_subrev_f32 v{E1}, s60, v{M}')
    A(f'v_exp_f32 v{E1}, v{E1}')
    A(f'v_mul_f32 v{Lr}, v{Lr}, v{E1}')
    A(f'v_add_f32_dpp v{E1}, v{Lr}, v{Lr} row_ror:4 row_mask:0xf bank_mask:0xf')
    A(f'v_add_f32_dpp v{E2}, v{E1}, v{E1} row_ror:8 row_mask:0xf bank_mask:0xf')
    A(f'v_add_f32_dpp v{E2}, v{E2}, v{E2} row_bcast:15 row_mask:0xa bank_mask:0xf')
    A(f'v_add_f32_dpp v{E2}, v{E2}, v{E2} row_bcast:31 row_mask:0xc bank_mask:0xf')
    A(f'v_readlane_b32 s64, v{E2}, 63')
    A('s_getreg_b32 s39, hwreg(HW_REG_XCC_ID, 0, 4)')
    A(f'v_mov_b32 v{P0}, s60'); A(f'v_mov_b32 v{P0+1}, s74')
    A('s_and_b32 s64, s64, -16'); A('s_or_b32 s64, s64, s39')
    A(f'v_lshlrev_b32 v{U}, 24, v{LANE}')
    A(f'v_mov_b32 v{P0+2}, s64'); A(f'v_mov_b32 v{P0+3}, s75')
    if mlwg:
        A('s_lshl_b32 s39, s38, 4'); A(f'v_mov_b32 v{U}, s39')
        A('s_mov_b64 exec, 1')
        A(f'ds_write_b128 v{U}, v[{P0}:{P0+3}] offset:{L_ML}')
        A(f'ds_add_u32 v2, v{ONE} offset:{L_CNT0 - L_PROG}')
        A('s_mov_b64 exec, -1')
    else:
        A(f'buffer_store_dwordx4 v[{P0}:{P0+3}], v{U}, s[48:51], s65 offen sc1')
    A('s_mov_b64 vcc, 0'); A('s_mov_b32 s7, 0'); A('s_mov_b32 s98, 0')
    CT = M
    A(f'ds_read_b128 v[{CT}:{CT+3}], v2')
    if ctl: A('s_memrealtime s[96:97]')
    A('L_vloop:')
    A('s_add_u32 s59, s59, 1')
    A(f'v_mov_b32 v{PP}, s59')
    A(f'ds_max_u32 v2, v{PP}')
    A('s_cmp_lg_u32 s59, 8'); A('s_cbranch_scc1 L_now')
    wait_lds(L_FAST, 1, va=P0, vt=P0 + 1, slp=1)
    A('s_mov_b32 s46, s39'); A('s_lshl_b32 s39, s38, 2'); A(f'v_mov_b32 v{P0}, s39')
    A(f'ds_read_b32 v{E2}, v{P0} offset:{L_W4}')
    A('L_now:')
    beta = [0, 2, 1, 3]
    EX, PK = T01, T23
    for t in range(8):
        R = lambda i: RING + 4 * (4 * t + i)
        A(f'v_subrev_f32 v{EX}, s60, v{S+t}')
        A(f'v_exp_f32 v{EX}, v{EX}')
        A(f'v_mov_b32 v{S+t}, v{S+8+t}')
        A(f'v_cvt_pk_bf16_f32 v{PK}, v{EX}, v{EX}')
        A(f'v_mov_b32 v{S+8+t}, v{S+16+t}')
        A(f'v_mov_b32 v{S+16+t}, v{S+24+t}')
        def build(i):
            dst = A0 if i % 2 == 0 else A1
            for r in range(4):
                n = (2 * r - 4 * beta[i]) % 16
                if n == 0: A(f'v_and_b32 v{dst+r}, v{PK}, v{MASK+r}')
                else: A(f'v_and_b32_dpp v{dst+r}, v{PK}, v{MASK+r} row_ror:{n} row_mask:0xf bank_mask:0xf')
        def mf(i):
            src = A0 if i % 2 == 0 else A1
            A(f'v_mfma_f32_16x16x32_bf16 v[{ACC}:{ACC+3}], v[{src}:{src+3}], v[{R(i)}:{R(i)+3}], v[{ACC}:{ACC+3}]')
        build(0); build(1); mf(0); build(2); mf(1); build(3); mf(2); mf(3)
        A('s_cmp_eq_u32 s59, 8')
        nextwait = 28 - 4 * (t + 1)
        if t < 7 and nextwait < (Dhi if ctl else D):
            A(f's_cbranch_scc0 L_vi{t}')
            A(f's_waitcnt vmcnt({nextwait})')
            A(f's_branch L_vc{t}')
            A(f'L_vi{t}:')
        else:
            A(f's_cbranch_scc1 L_vc{t}')
        issue(4 * t + 0, D - 1, dyn=ctl)
        if ctl:
            A('s_waitcnt lgkmcnt(0)')
            A(f'v_readfirstlane_b32 s5, v{CT+2}'); A(f'v_readfirstlane_b32 s6, v{CT+3}')
            A('s_lshl_b32 s98, s96, 4'); A('s_sub_u32 s98, s98, s5'); A('s_mul_i32 s5, s6, s7'); A('s_sub_u32 s98, s98, s5')
            A('s_add_u32 s7, s7, 1')
            A('s_cmp_lg_u32 s6, 0'); A('s_cselect_b32 s98, s98, 0')
            A('s_cmp_gt_i32 s98, 0'); A('s_cselect_b64 vcc, -1, 0')
            if lead: A(f's_cmp_lt_i32 s98, {-lead*16}')
        for i in range(1, 4): issue(4 * t + i, D - 1, dyn=ctl)
        if ctl:
            A(f'ds_read_b128 v[{CT}:{CT+3}], v2')
        if ctl: A('s_memrealtime s[96:97]')
        if t < 7: A(f'L_vc{t}:')
    A('s_branch L_vloop')
    A('L_vc7:')
    stamp(4)
    A('s_waitcnt lgkmcnt(0)')
    A('s_nop 4')
    G0 = RING
    def combine(src, lbase, lcnt, skip):
        A(f'ds_write_b128 v{VL}, v[{src}:{src+3}] offset:{lbase}')
        A('s_mov_b64 exec, 1')
        A(f'ds_add_rtn_u32 v{PP}, v2, v{ONE} offset:{lcnt - L_PROG}')
        A('s_mov_b64 exec, -1')
        for k in range(4): A(f'ds_read_b128 v[{G0+4*k}:{G0+4*k+3}], v1 offset:{lbase + 1024*k}')
        A('s_waitcnt lgkmcnt(4)')
        A(f'v_readfirstlane_b32 s39, v{PP}')
        A('s_cmp_lg_u32 s39, 3'); A(f's_cbranch_scc1 {skip}')
        A('s_waitcnt lgkmcnt(2)')
        for r in range(4): A(f'v_add_f32 v{G0+r}, v{G0+r}, v{G0+4+r}')
        A('s_waitcnt lgkmcnt(0)')
        for r in range(4): A(f'v_add_f32 v{G0+8+r}, v{G0+8+r}, v{G0+12+r}')
        for r in range(4): A(f'v_add_f32 v{G0+r}, v{G0+r}, v{G0+8+r}')
        entag(G0, G0, TG)
    for r in range(4): A(f'v_mul_f32 v{A0+r}, v{E2}, v{ACC+r}')
    combine(A0, L_OP, L_CNT1, 'L_owait')
    A('s_cmp_eq_u32 s46, 1'); A('s_cbranch_scc1 L_ofast')
    A(f'buffer_store_dwordx4 v[{G0}:{G0+3}], v{VO}, s[48:51], s66 offen sc1')
    A('s_branch L_opoll')
    A('L_ofast:')
    A(f'buffer_store_dwordx4 v[{G0}:{G0+3}], v{VO}, s[48:51], s66 offen')
    A('s_branch L_opoll')
    A('L_owait:')
    wait_lds(L_CNT1, 4, va=P0, vt=P0 + 1, slp=0)
    A('L_opoll:')
    if not pst: stamp(1)
    X = G0 + 16
    poll([f'buffer_load_dwordx4 v[{X}:{X+3}], v1, s[48:51], s47 offen {oldflags}'], [X], P0, 0)
    if not pst: stamp(5)
    for r in range(4): A(f'v_add_f32_dpp v{X+4+r}, v{X+r}, v{X+r} quad_perm:[1,0,3,2] {DPPF}')
    for r in range(4): A(f'v_add_f32_dpp v{X+r}, v{X+4+r}, v{X+4+r} quad_perm:[2,3,0,1] {DPPF}')
    UU = X + 8
    A(f'v_cvt_pk_bf16_f32 v{UU}, v{X}, v{X+1}'); A(f'v_cvt_pk_bf16_f32 v{UU+1}, v{X+2}, v{X+3}')
    A(f'v_cvt_pk_bf16_f32 v{UU+2}, v{X}, v{X+1}'); A(f'v_cvt_pk_bf16_f32 v{UU+3}, v{X+2}, v{X+3}')
    A(f'v_cvt_pk_bf16_f32 v{UU+4}, v{X}, v{X+1}'); A(f'v_cvt_pk_bf16_f32 v{UU+5}, v{X+2}, v{X+3}')
    A(f'v_mov_b32_dpp v{UU}, v{UU+4} row_half_mirror row_mask:0xf bank_mask:0xa')
    A(f'v_mov_b32_dpp v{UU+1}, v{UU+5} row_half_mirror row_mask:0xf bank_mask:0xa')
    A(f'v_mov_b32_dpp v{UU+2}, v{UU+4} row_half_mirror row_mask:0xf bank_mask:0x5')
    A(f'v_mov_b32_dpp v{UU+3}, v{UU+5} row_half_mirror row_mask:0xf bank_mask:0x5')
    def spb(i):
        dst = A0 if i % 2 == 0 else A1
        for r in range(4):
            A(f'v_perm_b32 v{dst+r}, v{UU+(i>>1)}, v{UU+(i>>1)}, v{SSEL+4*(i&1)+r}')
    spb(0)
    for i in range(8):
        if i < 7: spb(i + 1)
        src = A0 if i % 2 == 0 else A1
        c = '0' if i == 0 else f'v[{ACC}:{ACC+3}]'
        A(f'v_mfma_f32_16x16x32_bf16 v[{ACC}:{ACC+3}], v[{src}:{src+3}], v[{WO+4*i}:{WO+4*i+3}], {c}')
    combine(ACC, L_YP, L_CNT2, 'L_end')
    A(f'buffer_store_dwordx4 v[{G0}:{G0+3}], v{VY}, s[48:51], s99 offen {ystflags}')
    if not pst: stamp(6)
    write_stamps(0)
    A('s_endpgm')

    SEL, HACC, HA0, HA1, XN, XS, XF, VW, VST, BUF, ACC2 = 4, 12, 32, 36, 40, 50, 60, 92, 93, 96, 176
    A('L_helper:')
    common2()
    A('s_cmp_eq_u32 s3, 0'); A('s_cbranch_scc1 L_hq')
    rest_args()
    A('s_cmp_eq_u32 s3, 2'); A('s_cbranch_scc1 L_hp')
    A(f's_cmp_ge_u32 s2, {N1+N2}'); A('s_cbranch_scc1 L_end')
    A(f's_cmp_ge_u32 s2, {N1}'); A('s_cbranch_scc1 L_hm2')
    A('s_and_b32 s5, s2, 7'); A('s_lshr_b32 s56, s2, 3')
    A('s_movk_i32 s6, 3456')
    A('s_lshl_b32 s59, s2, 10'); A(f's_add_u32 s59, s59, {W_H}')
    A('s_lshl_b32 s56, s56, 8'); A(f's_mul_i32 s57, s5, {80*3456}'); A('s_add_u32 s56, s56, s57')
    A(f's_sub_u32 s42, {640*3456}, s56')
    A('s_waitcnt lgkmcnt(0)')
    A('s_add_u32 s40, s20, s56'); A('s_addc_u32 s41, s21, 0')
    A('s_branch L_g1')
    A('L_hq:')
    A('s_mov_b32 s5, s4')
    A('s_movk_i32 s6, 8192')
    A('s_lshl_b32 s59, s34, 13'); A('s_lshl_b32 s39, s5, 10'); A('s_add_u32 s59, s59, s39'); A(f's_add_u32 s59, s59, {W_QP}')
    A('s_lshl_b32 s56, s34, 8'); A(f's_mul_i32 s57, s5, {80*8192}'); A('s_add_u32 s56, s56, s57')
    A(f's_sub_u32 s42, {640*8192}, s56')
    A('s_waitcnt lgkmcnt(0)')
    A('s_add_u32 s40, s14, s56'); A('s_addc_u32 s41, s15, 0')
    rest_args()
    A('L_g1:')
    A('s_mov_b32 s44, s8'); A('s_mov_b32 s45, s9'); A('s_mov_b32 s46, 2560'); A('s_mov_b32 s47, 0x20000')
    A('v_bfe_u32 v12, v1, 3, 1'); A('v_mul_u32_u24 v12, 1280, v12')
    A('v_and_b32 v13, 7, v1'); A('v_lshl_add_u32 v13, v2, 3, v13'); A('v_lshl_add_u32 v13, v13, 3, v12')
    for j in range(5):
        A(f'buffer_load_dwordx2 v[{XS+2*j}:{XS+2*j+1}], v13, s[44:47], 0 offen offset:{j*256}')
    A('v_mul_u32_u24 v14, 40, v2'); A('v_add_u32 v14, v14, v12'); A('s_mul_i32 s39, s5, 160')
    for j in range(5):
        A(f'buffer_load_dwordx2 v[{XN+2*j}:{XN+2*j+1}], v14, s[44:47], s39 offen offset:{j*8}')
    A('s_mul_i32 s39, s6, 20'); A('v_mul_lo_u32 v12, v2, s39'); A(f'v_lshl_add_u32 v{VW}, v3, 4, v12')
    if wdum & 1:
        A(f'v_lshlrev_b32 v{VW}, 4, v1'); A('s_movk_i32 s6, 1024')
        A('s_cmp_eq_u32 s3, 0'); A('s_cselect_b32 s40, s14, s20'); A('s_cselect_b32 s41, s15, s21')
        A('s_mul_i32 s57, s2, 19456'); A('s_add_u32 s40, s40, s57'); A('s_addc_u32 s41, s41, 0'); A('s_mov_b32 s42, 20480')
    A('s_mov_b32 s57, 0')
    A('s_cmp_eq_u32 s3, 0'); A('s_cbranch_scc1 L_nb0'); A('s_barrier'); A('L_nb0:')
    for i in range(20):
        r = BUF + 4 * i
        if i % Dm == 0:
            A('s_cmp_eq_u32 s3, 0'); A(f's_cbranch_scc1 L_nt{i}'); A(f's_waitcnt vmcnt({0 if i == 0 else 1})'); A(f'L_nt{i}:')
        A(f'buffer_load_dwordx4 v[{r}:{r+3}], v{VW}, s[40:43], s57 offen {wflags}')
        if i < 19: A('s_add_u32 s57, s57, s6')
    A('s_cmp_lg_u32 s3, 0'); A('s_cbranch_scc1 L_nb1'); A('s_barrier'); A('L_nb1:')
    A('s_waitcnt lgkmcnt(0)')
    load_tag()
    A('s_mov_b32 s48, s32'); A('s_mov_b32 s49, s33')
    A('v_lshrrev_b32 v12, 1, v2'); A('v_lshlrev_b32 v12, 9, v12'); A('v_lshl_add_u32 v12, v3, 5, v12')
    A('v_and_b32 v13, 1, v2'); A(f'v_lshl_add_u32 v{VST}, v13, 4, v12')
    selectors()
    A('v_mov_b32 v20, 0x3f803f80')
    A('s_waitcnt vmcnt(25)')
    A(f'v_dot2_f32_bf16 v12, v{XS}, v20, 0'); A(f'v_dot2_f32_bf16 v13, v{XS+1}, v20, 0')
    for j in range(2, 10, 2):
        A(f'v_dot2_f32_bf16 v12, v{XS+j}, v20, v12'); A(f'v_dot2_f32_bf16 v13, v{XS+j+1}, v20, v13')
    for j in range(10):
        A(f'v_lshlrev_b32 v{XF+2*j}, 16, v{XS+j}')
        A(f'v_and_b32 v{XF+2*j+1}, 0xffff0000, v{XS+j}')
    A('v_add_f32 v12, v12, v13')
    red8('v_add_f32', [12], [13]); rows_add(12, 13)
    A(f's_mov_b32 s39, {f2u(1.0/640):#x}')
    A('v_mul_f32 v12, s39, v12')
    A('v_mov_b32 v14, 0'); A('v_mov_b32 v15, 0')
    for j in range(0, 20, 2):
        A(f'v_sub_f32 v22, v{XF+j}, v12'); A(f'v_sub_f32 v23, v{XF+j+1}, v12')
        A('v_fmac_f32 v14, v22, v22'); A('v_fmac_f32 v15, v23, v23')
    A('v_add_f32 v14, v14, v15')
    red8('v_add_f32', [14], [15]); rows_add(14, 15)
    A('v_mul_f32 v14, s39, v14')
    bf16r(12, 12)
    bf16r(14, 14)
    A(f'v_add_f32 v14, {f2u(1e-5):#x}, v14')
    bf16r(14, 14)
    A('v_sqrt_f32 v14, v14')
    bf16r(14, 14)
    A('v_rcp_f32 v14, v14')
    A('s_waitcnt vmcnt(20)')
    for j in range(10):
        A(f'v_lshlrev_b32 v{XF+2*j}, 16, v{XN+j}'); A(f'v_and_b32 v{XF+2*j+1}, 0xffff0000, v{XN+j}')
        A(f'v_sub_f32 v{XF+2*j}, v{XF+2*j}, v12'); A(f'v_sub_f32 v{XF+2*j+1}, v{XF+2*j+1}, v12')
        A(f'v_cvt_pk_bf16_f32 v{XN+j}, v{XF+2*j}, v{XF+2*j+1}')
    for j in range(10):
        A(f'v_lshlrev_b32 v{XF+2*j}, 16, v{XN+j}'); A(f'v_and_b32 v{XF+2*j+1}, 0xffff0000, v{XN+j}')
        A(f'v_mul_f32 v{XF+2*j}, v14, v{XF+2*j}'); A(f'v_mul_f32 v{XF+2*j+1}, v14, v{XF+2*j+1}')
        A(f'v_cvt_pk_bf16_f32 v{XN+j}, v{XF+2*j}, v{XF+2*j+1}')
    A('s_waitcnt lgkmcnt(0)')
    make_tag()
    stamp(1)
    tagregs(TG)
    def pb(i, src):
        dst = HA0 if i % 2 == 0 else HA1
        for r in range(4):
            A(f'v_perm_b32 v{dst+r}, v{src+(i>>1)}, v{src+(i>>1)}, v{SEL+4*(i&1)+r}')
    pb(0, XN)
    for i in range(20):
        if i < 19: pb(i + 1, XN)
        if i % 4 == 0: A(f's_waitcnt vmcnt({19 - (i + 3)})')
        src = HA0 if i % 2 == 0 else HA1
        c = '0' if i == 0 else f'v[{HACC}:{HACC+3}]'
        A(f'v_mfma_f32_16x16x32_bf16 v[{HACC}:{HACC+3}], v[{src}:{src+3}], v[{BUF+4*i}:{BUF+4*i+3}], {c}')
    entag(16, HACC, TG, rnd=True)
    if noex & 1:
        A('s_cmp_eq_u32 s3, 0'); A('s_cbranch_scc1 L_qd')
    if noex & 2:
        A('s_cmp_lg_u32 s3, 0'); A('s_cbranch_scc1 L_end')
    A(f'buffer_store_dwordx4 v[16:19], v{VST}, s[48:51], s59 offen sc1')
    stamp(2)
    A('s_cmp_eq_u32 s3, 0'); A('s_cbranch_scc1 L_hq2')
    write_stamps(1)
    A('s_endpgm')
    A('L_hq2:')
    A('v_and_b32 v24, 31, v1'); A('v_lshlrev_b32 v24, 4, v24'); A('v_lshrrev_b32 v25, 5, v1'); A('v_lshl_add_u32 v24, v25, 10, v24')
    A('s_lshl_b32 s56, s34, 13'); A('s_lshl_b32 s39, s36, 9'); A('s_add_u32 s56, s56, s39'); A(f's_add_u32 s56, s56, {W_QP}'); A('s_add_u32 s57, s56, 4096')
    A('s_waitcnt vmcnt(0)')
    stamp(3)
    A(f's_mov_b32 s67, {SPIN}')
    A('s_movk_i32 s62, 0xf')
    A('L_qw:')
    for j in range(4):
        A(f's_bitcmp1_b32 s62, {j}'); A(f's_cbranch_scc0 L_qs{j}')
        A(f'buffer_load_dwordx4 v[{XF+16+4*j}:{XF+16+4*j+3}], v24, s[48:51], s{56 + (j >> 1)} offen offset:{(j&1)*2048} sc1')
        A(f'L_qs{j}:')
    A('s_waitcnt vmcnt(0)')
    A('s_mov_b32 s62, 0')
    for j in range(4):
        b = XF + 4 * j
        for r in range(4): A(f'v_xor_b32 v{b+r}, v{TG+r}, v{b+16+r}')
        A(f'v_or3_b32 v25, v{b}, v{b+1}, v{b+2}'); A(f'v_or_b32 v25, v25, v{b+3}'); A(f'v_and_b32 v25, v{TG+4}, v25')
        A('v_cmp_ne_u32 vcc, 0, v25')
        A('s_nop 0')
        A('s_cmp_lg_u64 vcc, 0'); A(f's_cselect_b32 s39, {1 << j}, 0'); A('s_or_b32 s62, s62, s39')
    A('s_cbranch_scc0 L_qd')
    A('s_sub_u32 s67, s67, 1'); A('s_cmp_lg_u32 s67, 0'); A('s_cbranch_scc1 L_qw')
    A('L_qd:')
    for r in range(4):
        A(f'v_add_f32 v{XF+r}, v{XF+r}, v{XF+4+r}'); A(f'v_add_f32 v{XF+8+r}, v{XF+8+r}, v{XF+12+r}')
    for r in range(4): A(f'v_add_f32 v{XF+r}, v{XF+r}, v{XF+8+r}')
    A(f'v_permlane32_swap_b32 v{XF}, v{XF+2}'); A(f'v_permlane32_swap_b32 v{XF+1}, v{XF+3}')
    A(f'v_add_f32 v{XF}, v{XF}, v{XF+2}'); A(f'v_add_f32 v{XF+1}, v{XF+1}, v{XF+3}')
    A(f'v_cvt_pk_bf16_f32 v{XF}, v{XF}, v{XF+1}')
    A('v_and_b32 v22, 31, v1'); A('v_lshlrev_b32 v22, 3, v22'); A('v_lshrrev_b32 v23, 5, v1'); A('v_lshl_add_u32 v22, v23, 2, v22')
    A(f'ds_write_b32 v22, v{XF} offset:{L_Q}')
    A('v_mov_b32 v28, 1'); A(f'v_mov_b32 v26, {L_QRDY}')
    A('s_waitcnt lgkmcnt(0)')
    A('ds_write_b32 v26, v28')
    stamp(4)
    A(f's_sub_u32 s61, s2, {C0}')
    A('s_cmp_lt_u32 s61, 80'); A('s_cbranch_scc1 L_gate')
    write_stamps(1)
    A('s_endpgm')
    A('L_gate:')
    A('v_lshrrev_b32 v26, 2, v1'); A('v_min_u32 v19, 13, v26'); A('v_mul_u32_u24 v26, 5120, v26'); A('v_mul_u32_u24 v19, 5120, v19')
    A('v_and_b32 v27, 3, v1'); A('v_lshl_add_u32 v26, v27, 4, v26'); A('v_lshl_add_u32 v19, v27, 4, v19')
    A('v_lshlrev_b32 v27, 3, v27')
    A('v_bfe_u32 v18, v1, 2, 2'); A('v_lshl_add_u32 v27, v18, 1, v27')
    A('s_lshl_b32 s60, s61, 5')
    A('buffer_load_ushort v20, v27, s[44:47], s60 offen')
    A('s_cmp_ge_u32 s61, 40'); A('s_cselect_b32 s58, 40, 0'); A('s_sub_u32 s59, s61, s58')
    A('s_lshl_b32 s57, s59, 5')
    A('s_mov_b32 s52, s26'); A('s_mov_b32 s53, s27'); A('s_mov_b32 s54, 1280'); A('s_mov_b32 s55, 0x20000')
    A('buffer_load_ushort v21, v27, s[52:55], s57 offen')
    A('s_mul_i32 s56, s59, 52'); A('s_lshr_b32 s56, s56, 8'); A('s_mul_i32 s56, s56, 320')
    A('s_lshl_b32 s57, s59, 6'); A('s_add_u32 s56, s56, s57'); A('s_lshl_b32 s58, s58, 3'); A('s_add_u32 s56, s56, s58')
    A(f's_add_u32 s8, s56, {W_G}')
    A(f's_add_u32 s56, s56, {W_Y}'); A(f's_add_u32 s57, s56, {16*5120}')
    A('s_mov_b32 s40, s28'); A('s_mov_b32 s41, s29'); A('s_movk_i32 s42, 2560')
    A('v_mov_b32 v28, s74'); A('v_mov_b32 v29, s75'); A('v_lshlrev_b32 v30, 24, v1')
    A('s_lshl_b32 s58, s61, 24'); A(f's_add_u32 s58, s58, {W_EP}')
    wait_lds(L_PROG, pG)
    if not (noex & 2): poll([f'buffer_load_dwordx4 v[{XF}:{XF+3}], v19, s[48:51], s8 offen sc1'], [XF], 18, sleep)
    A('v_cmp_gt_u32 vcc, 56, v1')
    for r in range(4): A(f'v_cndmask_b32 v{XF+r}, 0, v{XF+r}, vcc')
    col_reduce(XF, XF + 4, 18, 19)
    bf16r(18, 18)
    A('v_lshlrev_b32 v21, 16, v21'); A('v_lshlrev_b32 v20, 16, v20')
    A('v_add_f32 v18, v18, v21')
    bf16r(18, 18)
    A(f'v_mul_f32 v19, {f2u(-1.4426950408889634):#x}, v18')
    A('v_exp_f32 v19, v19')
    A('v_add_f32 v19, 1.0, v19')
    A('v_rcp_f32 v19, v19')
    A('v_mul_f32 v18, v18, v19')
    bf16r(22, 18)
    stamp(5)
    wait_lds(L_PROG, 8)
    wait_lds(L_CNT2, 4, slp=0)
    if ysl: A(f's_sleep {ysl}')
    poll([f'buffer_load_dwordx4 v[{XF}:{XF+3}], v26, s[48:51], s56 offen {yldflags}', f'buffer_load_dwordx4 v[{XF+4}:{XF+7}], v26, s[48:51], s57 offen {yldflags}'], [XF, XF + 4], 18, ysl2)
    stamp(6)
    for r in range(4): A(f'v_add_f32 v{XF+r}, v{XF+r}, v{XF+4+r}')
    col_reduce(XF, XF + 4, 18, 19)
    bf16r(18, 18)
    A('v_mul_f32 v18, v18, v22')
    bf16r(18, 18)
    A('v_add_f32 v18, v18, v20')
    A('v_cvt_pk_bf16_f32 v18, v18, v18')
    A('buffer_store_short v18, v27, s[40:43], s60 offen')
    A('buffer_store_dwordx2 v[28:29], v30, s[48:51], s58 offen')
    stamp(7)
    if fixdur:
        A('s_waitcnt lgkmcnt(0)')
        A(f's_mov_b32 s92, {fixdur}')
        if amp >= 0:
            A(f's_sub_u32 s93, s{76+2*amp}, s76'); A('s_mul_i32 s93, s93, 10'); A('s_add_u32 s92, s92, s93')
        A('L_fix:')
        A('s_memrealtime s[94:95]'); A('s_waitcnt lgkmcnt(0)')
        A('s_sub_u32 s94, s94, s76'); A('s_cmp_lt_u32 s94, s92'); A('s_cbranch_scc1 L_fix')
    write_stamps(2)
    A('s_endpgm')

    A('L_hm2:')
    TG2, B1, UU = 240, 224, 40
    A(f's_sub_u32 s39, s2, {N1}')
    A('s_and_b32 s5, s39, 7'); A('s_lshr_b32 s56, s39, 6'); A('s_lshl_b32 s56, s56, 3'); A('s_add_u32 s5, s5, s56')
    A('s_cmp_ge_u32 s5, 14'); A('s_cbranch_scc1 L_end')
    A('s_bfe_u32 s6, s39, 0x30003')
    A('s_lshl_b32 s59, s5, 3'); A('s_add_u32 s59, s59, s6'); A('s_mul_i32 s59, s59, 640'); A(f's_add_u32 s59, s59, {W_G}')
    A(f's_mul_i32 s56, s5, {128*1280}'); A('s_mul_i32 s57, s6, 160'); A('s_add_u32 s56, s56, s57')
    A(f's_sub_u32 s42, {1728*1280}, s56')
    A('s_waitcnt lgkmcnt(0)')
    A('s_add_u32 s40, s24, s56'); A('s_addc_u32 s41, s25, 0')
    load_tag()
    A('s_barrier')
    A('s_mov_b32 s48, s32'); A('s_mov_b32 s49, s33')
    A(f'v_mul_u32_u24 v16, {32*1280}, v2'); A('v_lshl_add_u32 v16, v3, 4, v16')
    A('v_mov_b32 v18, 0x40000000'); A('v_cmp_gt_u32 vcc, 10, v3'); A(f'v_cndmask_b32 v{VW}, v18, v16, vcc')
    A('v_lshrrev_b32 v16, 1, v2'); A('v_mul_u32_u24 v16, 320, v16'); A('v_lshl_add_u32 v16, v3, 5, v16')
    A('v_and_b32 v17, 1, v2'); A('v_lshl_add_u32 v16, v17, 4, v16'); A(f'v_cndmask_b32 v{VST}, v18, v16, vcc')
    selectors()
    A('v_and_b32 v94, 7, v3'); A('v_lshlrev_b32 v94, 10, v94'); A('v_lshrrev_b32 v95, 3, v3'); A('v_lshl_add_u32 v94, v95, 9, v94'); A('v_lshl_add_u32 v94, v2, 7, v94')
    A('s_mov_b32 s52, s22'); A('s_mov_b32 s53, s23'); A(f's_mov_b32 s54, {1728*2}'); A('s_mov_b32 s55, 0x20000')
    A('s_waitcnt lgkmcnt(0)')
    make_tag()
    tagregs(TG2)
    if wdum & 2:
        A('v_lshlrev_b32 v16, 4, v1'); A('v_mov_b32 v18, 0x40000000'); A('v_cmp_gt_u32 vcc, 40, v1'); A(f'v_cndmask_b32 v{VW}, v18, v16, vcc')
        A('s_lshl_b32 s39, s5, 3'); A('s_add_u32 s39, s39, s6'); A('s_mul_i32 s39, s39, 19456')
        A('s_add_u32 s40, s24, s39'); A('s_addc_u32 s41, s25, 0'); A('s_mov_b32 s42, 20480')
    A('s_mov_b32 s57, 0')
    for i in range(32):
        if i >= Dw: A(f's_waitcnt vmcnt({Dw - 1})')
        r = BUF + 4 * i
        A(f'buffer_load_dwordx4 v[{r}:{r+3}], v{VW}, s[40:43], s57 offen {woflags}')
        if i < 31: A(f's_addk_i32 s57, {640 if wdum & 2 else 1280}')
    A('s_lshl_b32 s57, s5, 8'); A('v_lshlrev_b32 v20, 6, v2')
    for j in range(4): A(f'buffer_load_dwordx4 v[{B1+4*j}:{B1+4*j+3}], v20, s[52:55], s57 offen offset:{16*j}')
    stamp(1)
    if noex & 2: A('s_endpgm')
    wait_lds(L_PROG, pH)
    A('s_lshl_b32 s56, s5, 13'); A(f's_add_u32 s56, s56, {W_H}')
    poll([f'buffer_load_dwordx4 v[{XF+4*j}:{XF+4*j+3}], v94, s[48:51], s56 offen offset:{16*j} sc1' for j in range(8)], [XF + 4 * j for j in range(8)], 18, sleep)
    for j in range(8): red8('v_add_f32', [XF + 4 * j + r for r in range(4)], [20 + r for r in range(4)])
    A('s_cmp_eq_u32 s5, 13'); A('s_cselect_b32 s39, 2, 4'); A('v_cmp_gt_u32 vcc, s39, v2')
    for j in range(32):
        bf16r(XF + j, XF + j)
        if j % 2 == 0: A(f'v_lshlrev_b32 v18, 16, v{B1+j//2}')
        else: A(f'v_and_b32 v18, 0xffff0000, v{B1+j//2}')
        A(f'v_add_f32 v{XF+j}, v{XF+j}, v18')
        bf16r(XF + j, XF + j)
        A(f'v_max_f32 v{XF+j}, 0, v{XF+j}')
        A(f'v_mul_f32 v{XF+j}, v{XF+j}, v{XF+j}')
        if j % 2 == 1:
            A(f'v_cvt_pk_bf16_f32 v{UU+j//2}, v{XF+j-1}, v{XF+j}'); A(f'v_cndmask_b32 v{UU+j//2}, 0, v{UU+j//2}, vcc')
    pb(0, UU)
    for i in range(32):
        if i < 31: pb(i + 1, UU)
        src = HA0 if i % 2 == 0 else HA1
        c = '0' if i == 0 else f'v[{HACC}:{HACC+3}]'
        A(f'v_mfma_f32_16x16x32_bf16 v[{HACC}:{HACC+3}], v[{src}:{src+3}], v[{BUF+4*i}:{BUF+4*i+3}], {c}')
    entag(20, HACC, TG2, rnd=True)
    A(f'buffer_store_dwordx4 v[20:23], v{VST}, s[48:51], s59 offen sc1')
    stamp(5)
    write_stamps(1)
    A('s_endpgm')
    A('L_hp:')
    if cpf:
        A('s_getpc_b64 s[60:61]')
        A('L_pc:')
        A(f's_sub_u32 s60, s60, L_pc-{NAME}_kernel'); A('s_subb_u32 s61, s61, 0')
        A(f's_mov_b32 s62, L_end-{NAME}_kernel'); A('s_mov_b32 s63, 0x20000')
        A('s_lshr_b32 s39, s2, 3'); A('s_lshl_b32 s39, s39, 10'); A('v_lshlrev_b32 v6, 4, v1')
        A('buffer_load_dwordx4 v[8:11], v6, s[60:63], s39 offen')
    A('v_mov_b32 v4, 0'); A('v_lshlrev_b32 v5, 2, v1')
    A(f'ds_write_b32 v5, v4 offset:{L_PROG}')
    if tlb:
        A('s_lshl_b32 s56, s35, 21'); A('s_lshl_b32 s57, s37, 19'); A('s_add_u32 s56, s56, s57')
        A(f's_mul_i32 s58, s34, {128*1280}')
        A('v_mov_b32 v16, s56'); A('v_mov_b32 v17, s58'); A('v_mov_b32 v18, 0'); A(f'v_mov_b32 v19, {W_Y}'); A('v_mov_b32 v20, 0x200000')
    A('s_waitcnt lgkmcnt(0)')
    if tlb:
        A('s_mov_b64 exec, 1')
        A('global_load_dword v24, v17, s[16:17] nt')
        A('global_load_dword v25, v18, s[20:21] nt')
        A('global_load_dword v26, v18, s[24:25] nt')
        A('global_load_dword v27, v20, s[20:21] nt')
        A('global_load_dword v28, v20, s[24:25] nt')
        if tlb > 1:
            A('global_load_dword v29, v16, s[12:13] nt')
            A('global_load_dword v30, v18, s[32:33] nt')
            A('global_load_dword v31, v19, s[32:33] nt')
            A('global_load_dword v32, v18, s[22:23] nt')
            A('global_load_dword v33, v18, s[26:27] nt')
            A('global_load_dword v34, v18, s[28:29] nt')
        A('s_mov_b64 exec, -1')
    A('s_barrier')
    load_tag()
    A('s_mov_b32 s48, s32'); A('s_mov_b32 s49, s33')
    A('v_and_b32 v94, 7, v3'); A('v_lshrrev_b32 v95, 3, v3')
    A('s_waitcnt lgkmcnt(0)')
    make_tag()
    if ctl:
        wait_lds(L_PROG, 2, slp=2)
        A('s_memrealtime s[8:9]')
        wait_lds(L_PROG, 4, slp=2)
        A('s_memrealtime s[10:11]')
        A('s_waitcnt lgkmcnt(0)')
        A('v_mov_b32 v20, s8'); A('v_mov_b32 v21, s74'); A('v_mov_b32 v22, s10'); A('v_mov_b32 v23, s75')
        A('v_lshlrev_b32 v24, 24, v1')
        if ts64:
            A('s_lshr_b32 s39, s2, 5'); A('s_lshl_b32 s39, s39, 3'); A('s_and_b32 s12, s2, 7'); A('s_add_u32 s39, s39, s12'); A('s_lshl_b32 s39, s39, 4')
            A('s_lshl_b32 s12, s37, 24'); A('s_add_u32 s39, s39, s12')
            A(f's_add_u32 s39, s39, {W_TS}')
        else:
            A('s_lshl_b32 s39, s2, 4'); A(f's_add_u32 s39, s39, {W_TS}')
        A('buffer_store_dwordx4 v[20:23], v24, s[48:51], s39 offen sc1')
        wait_lds(L_PROG, 5, slp=4)
        A('v_lshlrev_b32 v24, 4, v1'); A(f's_mov_b32 s39, {W_TS}')
        NTS = 1 if ts64 else 4
        for j in range(NTS):
            A(f'buffer_load_dwordx4 v[{XF+4*j}:{XF+4*j+3}], v24, s[48:51], s39 offen offset:{j*1024} sc1')
        A('v_mov_b32 v26, 0'); A('v_mov_b32 v27, 0')
        A('s_sub_u32 s12, s8, s10')
        A('v_mov_b32 v28, s12')
        A('s_waitcnt vmcnt(0)')
        for j in range(NTS):
            b = XF + 4 * j
            A(f'v_cmp_eq_u32 vcc, s74, v{b+1}')
            A(f'v_subrev_u32 v{b}, s10, v{b}'); A(f'v_subrev_u32 v{b+2}, s10, v{b+2}')
            A(f'v_cndmask_b32 v{b}, v28, v{b}, vcc'); A(f'v_cndmask_b32 v{b+2}, 0, v{b+2}, vcc')
            A(f'v_add_u32 v26, v26, v{b}'); A(f'v_add_u32 v27, v27, v{b+2}')
        red8('v_add_u32', [26, 27], [29, 30])
        A(f'v_add_u32_dpp v26, v26, v26 row_ror:8 {DPPF}'); A(f'v_add_u32_dpp v27, v27, v27 row_ror:8 {DPPF}')
        rows_add(26, 29, 'v_add_u32'); rows_add(27, 30, 'v_add_u32')
        A('v_readfirstlane_b32 s12, v26'); A('v_readfirstlane_b32 s13, v27')
        A('s_sub_u32 s14, s13, s12')
        A(f's_mul_i32 s14, s14, {cscale}'); A(f's_ashr_i32 s14, s14, {14 if ts64 else 16}')
        A(f's_ashr_i32 s13, s13, {2 if ts64 else 4}')
        A(f's_add_u32 s15, s10, {cmargin}'); A('s_lshl_b32 s15, s15, 4'); A('s_add_u32 s15, s15, s13')
        A('s_lshl_b32 s12, s14, 3'); A('s_add_u32 s15, s15, s12')
        A('v_mov_b32 v26, s15'); A('v_mov_b32 v27, s14'); A(f'v_mov_b32 v28, {L_CTL}')
        A('ds_write_b64 v28, v[26:27]')
    if mlwg:
        wait_lds(L_CNT0, 4, slp=4)
        A('v_and_b32 v16, 3, v1'); A('v_lshlrev_b32 v16, 4, v16')
        A(f'ds_read_b128 v[20:23], v16 offset:{L_ML}')
        A('v_lshrrev_b32 v17, 2, v1'); A('v_lshl_add_u32 v16, v17, 24, v16')
        A('s_lshl_b32 s39, s35, 8'); A('s_lshl_b32 s56, s37, 6'); A('s_add_u32 s39, s39, s56')
        A('s_waitcnt lgkmcnt(0)')
        A('buffer_store_dwordx4 v[20:23], v16, s[48:51], s39 offen sc1')
    wait_lds(L_PROG, pML)
    A('v_lshlrev_b32 v16, 4, v94'); A('v_lshl_add_u32 v16, v95, 13, v16')
    A('s_lshl_b32 s39, s34, 8')
    polltag(['buffer_load_dwordx4 v[20:23], v16, s[48:51], s39 offen sc1', 'buffer_load_dwordx4 v[24:27], v16, s[48:51], s39 offen offset:128 sc1'], [20, 24], 18, sleep)
    A('s_getreg_b32 s39, hwreg(HW_REG_XCC_ID, 0, 4)')
    A('v_xor_b32 v21, s39, v22'); A('v_xor_b32 v23, s39, v26'); A('v_or_b32 v21, v21, v23'); A('v_and_b32 v21, 15, v21')
    A('v_cmp_ne_u32 vcc, 0, v21')
    A('v_and_b32 v22, -16, v22'); A('v_and_b32 v26, -16, v26')
    A('s_cmp_eq_u64 vcc, 0'); A('s_cselect_b32 s39, 1, 2')
    A('v_max_f32 v28, v20, v24')
    red8('v_max_f32', [28], [29])
    A('v_sub_f32 v20, v20, v28'); A('v_sub_f32 v24, v24, v28')
    A('v_exp_f32 v20, v20'); A('v_exp_f32 v24, v24')
    A('v_mul_f32 v22, v22, v20'); A('v_fmac_f32 v22, v26, v24')
    red8('v_add_f32', [22], [29])
    A('v_rcp_f32 v22, v22')
    A('v_mul_f32 v44, v20, v22'); A('v_mul_f32 v45, v24, v22')
    A('s_cmp_ge_u32 s37, 2'); A('s_cselect_b64 vcc, -1, 0')
    A('v_cndmask_b32 v44, v44, v45, vcc')
    A('s_lshl_b32 s56, s37, 2'); A('s_and_b32 s56, s56, 7'); A('s_lshl_b32 s57, s36, 3'); A('s_add_u32 s56, s56, s57')
    A('v_subrev_u32 v16, s56, v1'); A('v_lshlrev_b32 v16, 2, v16')
    A('s_lshl_b64 exec, 15, s56')
    A(f'ds_write_b32 v16, v44 offset:{L_W4}')
    A('s_mov_b64 exec, -1')
    A('v_mov_b32 v21, s39'); A(f'v_mov_b32 v23, {L_FAST}')
    A('s_waitcnt lgkmcnt(0)')
    A('ds_write_b32 v23, v21')
    if touch:
        A('v_lshlrev_b32 v16, 4, v1'); A('s_lshl_b32 s39, s34, 12'); A(f's_add_u32 s39, s39, {W_O}')
        wait_lds(L_PROG, 7, va=18, vt=19)
        A('s_lshl_b32 s39, s34, 12'); A(f's_add_u32 s39, s39, {W_O}')
        if touch1:
            A('s_lshl_b32 s56, s4, 9'); A('s_add_u32 s39, s39, s56'); A('v_lshlrev_b32 v16, 3, v1')
            A(f'buffer_load_dwordx2 v[{XF}:{XF+1}], v16, s[48:51], s39 offen')
        else:
            for j in range(4): A(f'buffer_load_dwordx4 v[{XF+4*j}:{XF+4*j+3}], v16, s[48:51], s39 offen offset:{j*1024}')
    stamp(2)
    write_stamps(1)
    A('L_end:')
    A('s_endpgm')
    body = a.finalize()
    out = HEADER
    out += f'; @launch grid=(256,1,1) block=(448,1,1) lds={L_TOTAL}\n'
    out += '.amdgcn_target "amdgcn-amd-amdhsa--gfx950"\n.text\n'
    out += f'.globl {NAME}_kernel\n.p2align 8\n.type {NAME}_kernel,@function\n'
    out += body
    out += f'''.section .rodata,"a"
.p2align 6
.amdhsa_kernel {NAME}_kernel
  .amdhsa_next_free_vgpr 256
  .amdhsa_next_free_sgpr 100
  .amdhsa_accum_offset 256
  .amdhsa_group_segment_fixed_size 0
  .amdhsa_kernarg_size 104
  .amdhsa_user_sgpr_count 2
  .amdhsa_user_sgpr_kernarg_segment_ptr 1
  .amdhsa_system_sgpr_workgroup_id_x 1
.end_amdhsa_kernel
'''
    return out

if __name__ == '__main__':
    ap = argparse.ArgumentParser()
    ap.add_argument('out')
    ap.add_argument('opts', nargs='*')
    args = ap.parse_args()
    kw = {}
    for o in args.opts:
        k, v = o.split('=')
        kw[k] = v if k.endswith('flags') else int(v)
    open(args.out, 'w').write(gen(**kw))
```

```python
import sys, struct, argparse
from asmlib import Asm
NAME = 'recurrent_scan__mha_block_cached__dense_activation_squared_relu__decode'
def f2u(x): return struct.unpack('<I', struct.pack('<f', x))[0]
HEADER = open('cdna_kernels/' + NAME + '.s.ref').read().split('; Override launch')[0]

L_Q, L_PROG, L_FAST, L_CTL, L_QRDY, L_CNT1, L_CNT2, L_W4, L_CNT0, L_ML, L_OP, L_YP, L_TOTAL = 0, 256, 260, 264, 272, 276, 280, 288, 284, 320, 512, 4608, 8704
W_HD = 0xA000
W_ML, W_TS, W_EP, W_H, W_QP, W_O, W_G, W_Y, W_SIZE = 0, 0x8000, 0xC000, 0x10000, 0x40000, 0x80000, 0x100000, 0x200000, 0x400000
N1, N2, C0 = 112, 128, 176

def gen(D=5, D0=4, D0n=14, stamps=0, mimic=0, kvflags='nt', wflags='nt', sleep=32, fixdur=0, amp=-1,
        pH=1, pG=4, pML=6, Dw=8, ctl=1, cmargin=35, cscale=256, Dhi=8, fast=1, prestore=1, yack=0, ysl=18, ysl2=0, ypre=0, yldflags='sc1', ystflags='sc1', D00=6, Dm=10, gsl=28, Dlo=4, lead=60, dryp=0, dryc=0, oldflags='sc1', woflags='nt', wo0=8, wos=3, touch=1, gwait=0, gcnt=0, gearly=0, ts64=1, touch1=1, mlwg=1, pst=0, wdum=0, noex=0, tlb=0, D1=0, D1n=0, ka=1, cpf=1, bj=9, wlflags='41010110', loc=1, qsl=-1):
    if fixdur: stamps = 1
    a = Asm(); A = a
    SPIN = 0x20000
    cnt = [0]
    def uid():
        cnt[0] += 1; return cnt[0]
    def stamp(i):
        if stamps: A(f's_memrealtime s[{76+2*i}:{77+2*i}]')
    def write_stamps(role):
        if not stamps or fixdur: return
        n = uid()
        A('s_waitcnt lgkmcnt(0)')
        if role == 1:
            wait_lds(L_CNT2, 4)
        A('s_mov_b64 exec, -1')
        A('s_add_u32 s92, s32, 0x10000000'); A('s_addc_u32 s93, s33, 0'); A('s_mov_b32 s94, 0x100000'); A('s_mov_b32 s95, 0x20000')
        A('s_lshl_b32 s39, s2, 8')
        if role != 0:
            A('s_add_u32 s56, s3, 1'); A('s_lshl_b32 s56, s56, 6'); A('s_add_u32 s39, s39, s56')
        A('v_and_b32 v2, 63, v0'); A('v_lshlrev_b32 v2, 24, v2')
        for q in range(4):
            for r in range(4): A(f'v_mov_b32 v{4+4*q+r}, s{76+4*q+r}')
            A(f'buffer_store_dwordx4 v[{4+4*q}:{7+4*q}], v2, s[92:95], s39 offen offset:{16*q}')
        A(f'L_nostamp{n}:')
    def bf16r(dst, src):
        A(f'v_cvt_pk_bf16_f32 v{dst}, v{src}, v{src}')
        A(f'v_lshlrev_b32 v{dst}, 16, v{dst}')
    DPPF = 'row_mask:0xf bank_mask:0xf'
    def red8(op, regs, tmps):
        for r, t in zip(regs, tmps): A(f'{op}_dpp v{t}, v{r}, v{r} quad_perm:[1,0,3,2] {DPPF}')
        for r, t in zip(regs, tmps): A(f'{op}_dpp v{r}, v{t}, v{t} quad_perm:[2,3,0,1] {DPPF}')
        for r, t in zip(regs, tmps): A(f'{op}_dpp v{r}, v{r}, v{r} row_half_mirror {DPPF}')
    def rows_add(r, t, op='v_add_f32'):
        A(f'v_mov_b32 v{t}, v{r}'); A(f'v_permlane16_swap_b32 v{r}, v{t}'); A(f'{op} v{r}, v{r}, v{t}')
        A(f'v_mov_b32 v{t}, v{r}'); A(f'v_permlane32_swap_b32 v{r}, v{t}'); A(f'{op} v{r}, v{r}, v{t}')
    def col_reduce(x, y, t0, t1):
        for r in range(4): A(f'v_add_f32_dpp v{y+r}, v{x+r}, v{x+r} row_ror:4 {DPPF}')
        for r in range(4): A(f'v_add_f32_dpp v{t0}, v{y+r}, v{y+r} row_ror:8 row_mask:0xf bank_mask:{1<<r:#x}')
        rows_add(t0, t1)
    def wait_lds(addr, level, va=16, vt=17, slp=8):
        n = uid()
        A(f's_mov_b32 s67, {SPIN*8}')
        A(f'v_mov_b32 v{va}, {addr}')
        A(f'L_pw{n}:')
        A(f'ds_read_b32 v{vt}, v{va}'); A('s_waitcnt lgkmcnt(0)')
        A(f'v_readfirstlane_b32 s39, v{vt}')
        A(f's_cmp_ge_u32 s39, {level}'); A(f's_cbranch_scc1 L_pd{n}')
        if slp: A(f's_sleep {slp}')
        A('s_sub_u32 s67, s67, 1'); A('s_cmp_lg_u32 s67, 0'); A(f's_cbranch_scc1 L_pw{n}')
        A(f'L_pd{n}:')
    def wait_q(slp=4):
        wait_lds(L_QRDY, 1, slp=slp)
    def spin_tail(n, slp):
        A('s_nop 1')
        A('s_cmp_eq_u64 vcc, 0'); A(f's_cbranch_scc1 L_gd{n}')
        if slp: A(f's_sleep {slp}')
        A('s_sub_u32 s67, s67, 1'); A('s_cmp_lg_u32 s67, 0'); A(f's_cbranch_scc1 L_gw{n}')
        A(f'L_gd{n}:')
    def polltag(loads, bases, t, slp):
        n = uid()
        A(f's_mov_b32 s67, {SPIN}')
        A(f'L_gw{n}:')
        for l in loads: A(l)
        A('s_waitcnt vmcnt(0)')
        for k, b in enumerate(bases):
            A(f'v_xor_b32 v{b+1}, s74, v{b+1}'); A(f'v_xor_b32 v{b+3}, s75, v{b+3}')
            if k == 0: A(f'v_or_b32 v{t}, v{b+1}, v{b+3}')
            else: A(f'v_or3_b32 v{t}, v{t}, v{b+1}, v{b+3}')
        A(f'v_cmp_ne_u32 vcc, 0, v{t}')
        spin_tail(n, slp)
    def untag(quads, t):
        first = True
        for b in quads:
            for r in range(4): A(f'v_xor_b32 v{b+r}, s{70+r}, v{b+r}')
            if first:
                A(f'v_or3_b32 v{t}, v{b}, v{b+1}, v{b+2}'); A(f'v_or_b32 v{t}, v{t}, v{b+3}'); first = False
            else:
                A(f'v_or3_b32 v{t}, v{t}, v{b}, v{b+1}'); A(f'v_or3_b32 v{t}, v{t}, v{b+2}, v{b+3}')
        A(f'v_and_b32 v{t}, 0xfff, v{t}')
    def poll(loads, quads, t, slp, init=True):
        n = uid()
        if init: A(f's_mov_b32 s67, {SPIN}')
        A(f'L_gw{n}:')
        for l in loads: A(l)
        A('s_waitcnt vmcnt(0)')
        untag(quads, t)
        A(f'v_cmp_ne_u32 vcc, 0, v{t}')
        spin_tail(n, slp)
    def tagregs(base):
        for r in range(4): A(f'v_mov_b32 v{base+r}, s{70+r}')
        A(f'v_mov_b32 v{base+4}, 0xfff')
    def entag(dst, src, tb, rnd=False):
        for r in range(4):
            if rnd:
                A(f'v_add_u32 v{dst+r}, 0x800, v{src+r}'); A(f'v_bfi_b32 v{dst+r}, v{tb+4}, v{tb+r}, v{dst+r}')
            else:
                A(f'v_bfi_b32 v{dst+r}, v{tb+4}, v{tb+r}, v{src+r}')
    def selectors(SEL=4, t=12):
        A(f'v_and_b32 v{t}, 7, v3'); A(f'v_lshrrev_b32 v{t+1}, 1, v{t}'); A(f'v_and_b32 v{t}, 1, v{t}')
        A(f'v_mov_b32 v{t+2}, 0x0c0c0c0c')
        A(f'v_cmp_eq_u32 vcc, 1, v{t}')
        A(f'v_mov_b32 v{t+3}, 0x0c0c0100'); A(f'v_mov_b32 v{t+4}, 0x01000c0c'); A(f'v_cndmask_b32 v{t+3}, v{t+3}, v{t+4}, vcc')
        A(f'v_mov_b32 v{t+5}, 0x0c0c0302'); A(f'v_mov_b32 v{t+4}, 0x03020c0c'); A(f'v_cndmask_b32 v{t+5}, v{t+5}, v{t+4}, vcc')
        for r in range(4):
            A(f'v_cmp_eq_u32 vcc, {r}, v{t+1}')
            A(f'v_cndmask_b32 v{SEL+r}, v{t+2}, v{t+3}, vcc')
            A(f'v_cndmask_b32 v{SEL+4+r}, v{t+2}, v{t+5}, vcc')
    def hdr_load(dst, va, line_sreg):
        A(f'v_and_b32 v{va}, 7, v1'); A(f'v_lshlrev_b32 v{va}, 4, v{va}')
        A(f's_lshl_b32 s39, {line_sreg}, 7'); A(f's_add_u32 s39, s39, {W_HD}')
        A(f'buffer_load_dwordx4 v[{dst}:{dst+3}], v{va}, s[48:51], s39 offen sc1')
    def hdr_check(dst):
        A('s_getreg_b32 s39, hwreg(HW_REG_XCC_ID, 0, 4)')
        A(f'v_xor_b32 v{dst}, s39, v{dst}'); A(f'v_xor_b32 v{dst+1}, s74, v{dst+1}'); A(f'v_xor_b32 v{dst+3}, s75, v{dst+3}')
        A(f'v_or3_b32 v{dst}, v{dst}, v{dst+1}, v{dst+3}')
        A(f'v_cmp_ne_u32 vcc, 0, v{dst}')
        A('s_nop 1')
        A('s_cmp_eq_u64 vcc, 0')
    def load_tag():
        A(f's_load_dwordx2 s[74:75], s[32:33], {W_EP}')
    def make_tag():
        A('s_add_u32 s74, s74, 0x7f4a7c15'); A('s_addc_u32 s75, s75, 0x9e3779b9')
        A('s_and_b32 s70, s74, 0xfff'); A('s_bfe_u32 s71, s74, 0xc000c')
        A('s_lshr_b64 s[72:73], s[74:75], 24'); A('s_bfe_u32 s73, s72, 0xc000c'); A('s_and_b32 s72, s72, 0xfff')

    A(f'{NAME}_kernel:')
    def rest_args():
        if ka:
            A('s_load_dwordx8 s[16:23], s[0:1], 32'); A('s_load_dwordx8 s[24:31], s[0:1], 64'); A('s_load_dwordx2 s[32:33], s[0:1], 96')
    if ka:
        A('s_load_dwordx8 s[8:15], s[0:1], 0')
    else:
        A('s_load_dwordx16 s[8:23], s[0:1], 0')
        A('s_load_dwordx8 s[24:31], s[0:1], 64')
        A('s_load_dwordx2 s[32:33], s[0:1], 96')
    stamp(0)
    A('v_readfirstlane_b32 s3, v0')
    A('s_lshr_b32 s35, s2, 6')
    A('s_cmp_ge_u32 s35, 4'); A('s_cbranch_scc1 L_end')
    A('s_and_b32 s34, s2, 7'); A('s_lshl_b32 s34, s34, 2'); A('s_add_u32 s34, s34, s35')
    A('s_and_b32 s39, s2, 32'); A('s_add_u32 s35, s39, s34')
    A('s_lshr_b32 s4, s2, 3'); A('s_and_b32 s37, s4, 3')
    A('s_lshr_b32 s3, s3, 6')
    A('v_and_b32 v1, 63, v0')
    A('s_mov_b32 s43, 0x20000')
    def common2():
        A('s_and_b32 s4, s4, 7'); A('s_lshr_b32 s36, s4, 2')
        A(f's_mov_b32 s50, {W_SIZE}'); A('s_mov_b32 s51, 0x20000')
        A('v_bfe_u32 v2, v0, 4, 2')
        A('v_and_b32 v3, 15, v0')
    A('s_sub_u32 s38, s3, 3'); A('s_cbranch_scc1 L_helper')

    Q, MASK, ACC, A0, A1 = 4, 8, 12, 16, 20
    P0, T01, T23, U, U2, M, Lr, MN, E1, E2, PP, VO, LANE = 24, 28, 29, 30, 31, 32, 33, 34, 35, 36, 37, 38, 39
    S, RING, TG, WO, SSEL, VWO, VY, VL, ONE = 40, 72, 200, 208, 240, 248, 249, 250, 251
    A('s_lshl_b32 s56, s35, 2'); A('s_add_u32 s56, s56, s37'); A('s_lshl_b32 s56, s56, 7'); A('s_add_u32 s56, s56, s38'); A('s_lshl_b32 s56, s56, 12')
    A('s_mov_b32 s42, 0x7d000')
    A('v_lshlrev_b32 v1, 4, v1')
    A('s_and_b32 s57, s2, 31'); A('s_lshl_b32 s57, s57, 14')
    A('s_mov_b32 s58, 0x7ffff')
    A('s_waitcnt lgkmcnt(0)')
    A('s_add_u32 s40, s10, s56'); A('s_addc_u32 s41, s11, 0')
    first = [True]
    def issue(j, wait, dyn=False):
        i = j & 3
        if i == 0:
            if first[0]: first[0] = False
            else: A('s_addk_i32 s57, 0x4000'); A('s_and_b32 s57, s57, s58')
            if dyn and lead: A(f's_cmp_lt_i32 s98, {-lead*16}')
        if wait is not None:
            if dyn:
                n = uid()
                A(f's_waitcnt vmcnt({Dhi-1})'); A(f's_cbranch_vccnz L_dw{n}'); A(f's_waitcnt vmcnt({wait})')
                if lead: A(f's_cbranch_scc0 L_dw{n}'); A(f's_waitcnt vmcnt({Dlo-1})')
                A(f'L_dw{n}:')
            else: A(f's_waitcnt vmcnt({wait})')
        r = RING + 4 * j
        A(f'buffer_load_dwordx4 v[{r}:{r+3}], v1, s[40:43], s57 offen offset:{i*1024} {kvflags}')
    F = D00 if D00 else D0
    seq = []
    def kwait(d):
        n = 0; k = 0
        for x in reversed(seq):
            if x == 'k':
                if k == d - 1: break
                k += 1
            n += 1
        return n
    for j in range(32):
        d = D0 if j < D0n else D
        if j < D1n: d = D1
        if j < F: issue(j, None)
        elif j == F: issue(j, kwait(F))
        else: issue(j, kwait(d))
        seq.append('k')
        if pst and j in (0, F, 12, 22): A(f's_memrealtime s[{76+2*{0:1, F:5, 12:6, 22:7}[j]}:{77+2*{0:1, F:5, 12:6, 22:7}[j]}]')
        if not wlflags and j >= wo0 and (j - wo0) % wos == 0 and (j - wo0) // wos < 8:
            i = (j - wo0) // wos
            A(f's_movk_i32 s39, {i*(640 if wdum & 2 else 1280)}')
            A(f'buffer_load_dwordx4 v[{WO+4*i}:{WO+4*i+3}], v{VWO}, s[52:55], s39 offen {woflags}')
            seq.append('w')
        if j == F - 1:
            rest_args()
            common2()
            A(f'v_and_b32 v{LANE}, 63, v0')
            A('s_add_u32 s44, s12, s56'); A('s_addc_u32 s45, s13, 0')
            A('s_lshl_b32 s39, s34, 2'); A('s_add_u32 s39, s39, s38'); A(f's_mul_i32 s39, s39, {32*1280}'); A('s_mul_i32 s5, s4, 160'); A('s_add_u32 s39, s39, s5')
            A(f'v_mul_u32_u24 v16, {8*1280}, v2'); A('v_lshl_add_u32 v16, v3, 4, v16')
            A('v_mov_b32 v18, 0x40000000'); A('v_cmp_gt_u32 vcc, 10, v3'); A(f'v_cndmask_b32 v{VWO}, v18, v16, vcc')
            A('s_waitcnt lgkmcnt(0)')
            load_tag()
            A('s_add_u32 s52, s16, s39'); A('s_addc_u32 s53, s17, 0'); A(f's_sub_u32 s54, {4096*1280}, s39'); A('s_mov_b32 s55, 0x20000')
            A('s_mov_b32 s48, s32'); A('s_mov_b32 s49, s33')
        if j == bj: A('s_barrier')
        if j == 10:
            A('v_lshrrev_b32 v16, 1, v2'); A('v_mul_u32_u24 v16, 320, v16'); A('v_lshl_add_u32 v16, v3, 5, v16')
            A('v_and_b32 v17, 1, v2'); A('v_lshl_add_u32 v16, v17, 4, v16'); A(f'v_cndmask_b32 v{VY}, v18, v16, vcc')
            A('s_lshl_b32 s99, s34, 3'); A('s_add_u32 s99, s99, s4'); A('s_mul_i32 s99, s99, 640'); A(f's_add_u32 s99, s99, {W_Y}')
            A('v_lshlrev_b32 v16, 8, v3'); A('v_lshl_add_u32 v16, v17, 6, v16')
            A('v_lshrrev_b32 v17, 1, v2'); A(f'v_lshl_add_u32 v{VO}, v17, 24, v16')
            A('s_lshl_b32 s64, s34, 12'); A(f's_add_u32 s64, s64, {W_O}')
            A('s_lshl_b32 s66, s36, 7'); A('s_lshl_b32 s39, s37, 4'); A('s_add_u32 s66, s66, s39'); A('s_add_u32 s66, s66, s64')
            A('s_lshl_b32 s39, s38, 10'); A('s_add_u32 s47, s64, s39')
            A(f'v_add_u32 v{VL}, s39, v1')
            A(f'v_mov_b32 v{ONE}, 1')
        if j == 12:
            selectors(SSEL, 24)
        if j == 14:
            A('v_and_b32 v16, 1, v3'); A('v_lshlrev_b32 v16, 4, v16'); A('v_mov_b32 v17, 0xffff'); A('v_lshlrev_b32 v16, v16, v17')
            A('v_lshrrev_b32 v17, 1, v3')
            for r in range(4):
                A(f'v_cmp_eq_u32 vcc, {r}, v17'); A(f'v_cndmask_b32 v{MASK+r}, 0, v16, vcc')
            A('v_lshlrev_b32 v3, 4, v3')
            A(f'v_mov_b32 v2, {L_PROG}')
            A(f'v_mov_b32 v{M}, 0xff7fffff'); A(f'v_mov_b32 v{Lr}, 0')
            for r in range(4): A(f'v_mov_b32 v{ACC+r}, 0')
            A(f's_mov_b32 s61, {f2u(1.4426950408889634 * 128 ** -0.5):#x}')
            if mimic: A(f's_mov_b32 s62, {f2u(128 ** -0.5):#x}'); A(f's_mov_b32 s63, {f2u(1.4426950408889634):#x}')
        if j == 16:
            A('s_waitcnt lgkmcnt(0)')
            make_tag()
            tagregs(TG)
    wait_q(slp=1)
    stamp(2)
    A(f'ds_read_b128 v[{Q}:{Q+3}], v3 offset:{L_Q}')
    A('s_mov_b32 s59, 0')
    A('s_waitcnt lgkmcnt(0)')
    A('L_kloop:')
    A('s_cmp_eq_u32 s59, 3')
    A('s_cselect_b32 s40, s44, s40'); A('s_cselect_b32 s41, s45, s41')
    A('s_add_u32 s59, s59, 1')
    A(f'v_mov_b32 v{PP}, s59')
    A(f'ds_max_u32 v2, v{PP}')
    for t in range(8):
        R = lambda i: RING + 4 * (4 * t + i)
        for i in range(4): A(f'v_dot2_f32_bf16 v{P0+i}, v{R(i)}, v{Q}, 0')
        for r in range(1, 4):
            for i in range(4): A(f'v_dot2c_f32_bf16 v{P0+i}, v{R(i)+r}, v{Q+r}')
        issue(4 * t + 0, D - 1)
        A(f'v_add_f32_dpp v{T01}, v{P0}, v{P0} row_ror:8 row_mask:0xf bank_mask:0xf')
        A(f'v_add_f32_dpp v{T23}, v{P0+2}, v{P0+2} row_ror:8 row_mask:0xf bank_mask:0xf')
        A(f'v_add_f32_dpp v{T01}, v{P0+1}, v{P0+1} row_ror:8 row_mask:0xf bank_mask:0xc')
        A(f'v_add_f32_dpp v{T23}, v{P0+3}, v{P0+3} row_ror:8 row_mask:0xf bank_mask:0xc')
        A(f'v_mov_b32 v{S+t}, v{S+8+t}')
        A(f'v_add_f32_dpp v{U}, v{T01}, v{T01} row_half_mirror row_mask:0xf bank_mask:0xf')
        A(f'v_add_f32_dpp v{U}, v{T23}, v{T23} row_half_mirror row_mask:0xf bank_mask:0xa')
        A(f'v_mov_b32 v{S+8+t}, v{S+16+t}')
        A(f'v_mov_b32 v{S+16+t}, v{S+24+t}')
        A(f'v_add_f32_dpp v{U2}, v{U}, v{U} quad_perm:[1,0,3,2] row_mask:0xf bank_mask:0xf')
        issue(4 * t + 1, D - 1)
        A(f'v_add_f32_dpp v{U}, v{U2}, v{U2} quad_perm:[2,3,0,1] row_mask:0xf bank_mask:0xf')
        if mimic:
            bf16r(U, U)
            A(f'v_mul_f32 v{U}, s62, v{U}')
            bf16r(U, U)
            A(f'v_mul_f32 v{S+24+t}, s63, v{U}')
        else:
            A(f'v_mul_f32 v{S+24+t}, s61, v{U}')
        A(f'v_max_f32 v{MN}, v{M}, v{S+24+t}')
        A(f'v_sub_f32 v{E1}, v{M}, v{MN}')
        A(f'v_sub_f32 v{E2}, v{S+24+t}, v{MN}')
        A(f'v_exp_f32 v{E1}, v{E1}')
        A(f'v_exp_f32 v{E2}, v{E2}')
        A(f'v_mov_b32 v{M}, v{MN}')
        A(f'v_fma_f32 v{Lr}, v{Lr}, v{E1}, v{E2}')
        issue(4 * t + 2, D - 1)
        issue(4 * t + 3, D - 1)
    A('s_cmp_lt_u32 s59, 4'); A('s_cbranch_scc1 L_kloop')
    stamp(3)
    A(f'v_max_f32_dpp v{E1}, v{M}, v{M} row_ror:4 row_mask:0xf bank_mask:0xf')
    A(f'v_max_f32_dpp v{E2}, v{E1}, v{E1} row_ror:8 row_mask:0xf bank_mask:0xf')
    A(f'v_max_f32_dpp v{E2}, v{E2}, v{E2} row_bcast:15 row_mask:0xa bank_mask:0xf')
    A(f'v_max_f32_dpp v{E2}, v{E2}, v{E2} row_bcast:31 row_mask:0xc bank_mask:0xf')
    A(f'v_readlane_b32 s60, v{E2}, 63')
    A(f'v_subrev_f32 v{E1}, s60, v{M}')
    A(f'v_exp_f32 v{E1}, v{E1}')
    A(f'v_mul_f32 v{Lr}, v{Lr}, v{E1}')
    A(f'v_add_f32_dpp v{E1}, v{Lr}, v{Lr} row_ror:4 row_mask:0xf bank_mask:0xf')
    A(f'v_add_f32_dpp v{E2}, v{E1}, v{E1} row_ror:8 row_mask:0xf bank_mask:0xf')
    A(f'v_add_f32_dpp v{E2}, v{E2}, v{E2} row_bcast:15 row_mask:0xa bank_mask:0xf')
    A(f'v_add_f32_dpp v{E2}, v{E2}, v{E2} row_bcast:31 row_mask:0xc bank_mask:0xf')
    A(f'v_readlane_b32 s64, v{E2}, 63')
    A(f'v_mov_b32 v{P0}, s60'); A(f'v_mov_b32 v{P0+1}, s74')
    A(f'v_lshlrev_b32 v{U}, 24, v{LANE}')
    A(f'v_mov_b32 v{P0+2}, s64'); A(f'v_mov_b32 v{P0+3}, s75')
    if mlwg:
        A('s_lshl_b32 s39, s38, 4'); A(f'v_mov_b32 v{U}, s39')
        A('s_mov_b64 exec, 1')
        A(f'ds_write_b128 v{U}, v[{P0}:{P0+3}] offset:{L_ML}')
        A(f'ds_add_u32 v2, v{ONE} offset:{L_CNT0 - L_PROG}')
        A('s_mov_b64 exec, -1')
    else:
        A(f'buffer_store_dwordx4 v[{P0}:{P0+3}], v{U}, s[48:51], s65 offen sc1')
    A('s_mov_b64 vcc, 0'); A('s_mov_b32 s7, 0'); A('s_mov_b32 s98, 0')
    CT = M
    A(f'ds_read_b128 v[{CT}:{CT+3}], v2')
    if ctl: A('s_memrealtime s[96:97]')
    A('L_vloop:')
    A('s_add_u32 s59, s59, 1')
    A(f'v_mov_b32 v{PP}, s59')
    A(f'ds_max_u32 v2, v{PP}')
    A('s_cmp_lg_u32 s59, 8'); A('s_cbranch_scc1 L_now')
    wl = [int(c) for c in wlflags] if wlflags else [0] * 8
    assert not wlflags or sum(wl) == 8
    wn = [0]
    def wo_late(n):
        for _ in range(n):
            i = wn[0]; wn[0] += 1
            A(f's_movk_i32 s39, {i*1280}')
            A(f'buffer_load_dwordx4 v[{WO+4*i}:{WO+4*i+3}], v{VWO}, s[52:55], s39 offen {woflags}')
    wo_late(wl[0])
    wait_lds(L_FAST, 1, va=P0, vt=P0 + 1, slp=1)
    A('s_mov_b32 s46, s39'); A('s_lshl_b32 s39, s38, 2'); A(f'v_mov_b32 v{P0}, s39')
    A(f'ds_read_b32 v{E2}, v{P0} offset:{L_W4}')
    A('L_now:')
    beta = [0, 2, 1, 3]
    EX, PK = T01, T23
    for t in range(8):
        R = lambda i: RING + 4 * (4 * t + i)
        A(f'v_subrev_f32 v{EX}, s60, v{S+t}')
        A(f'v_exp_f32 v{EX}, v{EX}')
        A(f'v_mov_b32 v{S+t}, v{S+8+t}')
        A(f'v_cvt_pk_bf16_f32 v{PK}, v{EX}, v{EX}')
        A(f'v_mov_b32 v{S+8+t}, v{S+16+t}')
        A(f'v_mov_b32 v{S+16+t}, v{S+24+t}')
        def build(i):
            dst = A0 if i % 2 == 0 else A1
            for r in range(4):
                n = (2 * r - 4 * beta[i]) % 16
                if n == 0: A(f'v_and_b32 v{dst+r}, v{PK}, v{MASK+r}')
                else: A(f'v_and_b32_dpp v{dst+r}, v{PK}, v{MASK+r} row_ror:{n} row_mask:0xf bank_mask:0xf')
        def mf(i):
            src = A0 if i % 2 == 0 else A1
            A(f'v_mfma_f32_16x16x32_bf16 v[{ACC}:{ACC+3}], v[{src}:{src+3}], v[{R(i)}:{R(i)+3}], v[{ACC}:{ACC+3}]')
        build(0); build(1); mf(0); build(2); mf(1); build(3); mf(2); mf(3)
        A('s_cmp_eq_u32 s59, 8')
        nextwait = 28 - 4 * (t + 1)
        needw = t < 7 and nextwait < (Dhi if ctl else D)
        if t < 7 and (needw or wl[t + 1]):
            A(f's_cbranch_scc0 L_vi{t}')
            wo_late(wl[t + 1])
            if needw: A(f's_waitcnt vmcnt({nextwait + wn[0]})')
            A(f's_branch L_vc{t}')
            A(f'L_vi{t}:')
        else:
            A(f's_cbranch_scc1 L_vc{t}')
        issue(4 * t + 0, D - 1, dyn=ctl)
        if ctl:
            A('s_waitcnt lgkmcnt(0)')
            A(f'v_readfirstlane_b32 s5, v{CT+2}'); A(f'v_readfirstlane_b32 s6, v{CT+3}')
            A('s_lshl_b32 s98, s96, 4'); A('s_sub_u32 s98, s98, s5'); A('s_mul_i32 s5, s6, s7'); A('s_sub_u32 s98, s98, s5')
            A('s_add_u32 s7, s7, 1')
            A('s_cmp_lg_u32 s6, 0'); A('s_cselect_b32 s98, s98, 0')
            A('s_cmp_gt_i32 s98, 0'); A('s_cselect_b64 vcc, -1, 0')
            if lead: A(f's_cmp_lt_i32 s98, {-lead*16}')
        for i in range(1, 4): issue(4 * t + i, D - 1, dyn=ctl)
        if ctl:
            A(f'ds_read_b128 v[{CT}:{CT+3}], v2')
        if ctl: A('s_memrealtime s[96:97]')
        if t < 7: A(f'L_vc{t}:')
    A('s_branch L_vloop')
    A('L_vc7:')
    stamp(4)
    A('s_waitcnt lgkmcnt(0)')
    A('s_nop 4')
    G0 = RING
    def combine(src, lbase, lcnt, skip):
        A(f'ds_write_b128 v{VL}, v[{src}:{src+3}] offset:{lbase}')
        A('s_mov_b64 exec, 1')
        A(f'ds_add_rtn_u32 v{PP}, v2, v{ONE} offset:{lcnt - L_PROG}')
        A('s_mov_b64 exec, -1')
        for k in range(4): A(f'ds_read_b128 v[{G0+4*k}:{G0+4*k+3}], v1 offset:{lbase + 1024*k}')
        A('s_waitcnt lgkmcnt(4)')
        A(f'v_readfirstlane_b32 s39, v{PP}')
        A('s_cmp_lg_u32 s39, 3'); A(f's_cbranch_scc1 {skip}')
        A('s_waitcnt lgkmcnt(2)')
        for r in range(4): A(f'v_add_f32 v{G0+r}, v{G0+r}, v{G0+4+r}')
        A('s_waitcnt lgkmcnt(0)')
        for r in range(4): A(f'v_add_f32 v{G0+8+r}, v{G0+8+r}, v{G0+12+r}')
        for r in range(4): A(f'v_add_f32 v{G0+r}, v{G0+r}, v{G0+8+r}')
        entag(G0, G0, TG)
    for r in range(4): A(f'v_mul_f32 v{A0+r}, v{E2}, v{ACC+r}')
    combine(A0, L_OP, L_CNT1, 'L_owait')
    A('s_cmp_eq_u32 s46, 1'); A('s_cbranch_scc1 L_ofast')
    A(f'buffer_store_dwordx4 v[{G0}:{G0+3}], v{VO}, s[48:51], s66 offen sc1')
    A('s_branch L_opoll')
    A('L_ofast:')
    A(f'buffer_store_dwordx4 v[{G0}:{G0+3}], v{VO}, s[48:51], s66 offen')
    A('s_branch L_opoll')
    A('L_owait:')
    wait_lds(L_CNT1, 4, va=P0, vt=P0 + 1, slp=0)
    A('L_opoll:')
    if not pst: stamp(1)
    X = G0 + 16
    poll([f'buffer_load_dwordx4 v[{X}:{X+3}], v1, s[48:51], s47 offen {oldflags}'], [X], P0, 0)
    if not pst: stamp(5)
    for r in range(4): A(f'v_add_f32_dpp v{X+4+r}, v{X+r}, v{X+r} quad_perm:[1,0,3,2] {DPPF}')
    for r in range(4): A(f'v_add_f32_dpp v{X+r}, v{X+4+r}, v{X+4+r} quad_perm:[2,3,0,1] {DPPF}')
    UU = X + 8
    A(f'v_cvt_pk_bf16_f32 v{UU}, v{X}, v{X+1}'); A(f'v_cvt_pk_bf16_f32 v{UU+1}, v{X+2}, v{X+3}')
    A(f'v_cvt_pk_bf16_f32 v{UU+2}, v{X}, v{X+1}'); A(f'v_cvt_pk_bf16_f32 v{UU+3}, v{X+2}, v{X+3}')
    A(f'v_cvt_pk_bf16_f32 v{UU+4}, v{X}, v{X+1}'); A(f'v_cvt_pk_bf16_f32 v{UU+5}, v{X+2}, v{X+3}')
    A(f'v_mov_b32_dpp v{UU}, v{UU+4} row_half_mirror row_mask:0xf bank_mask:0xa')
    A(f'v_mov_b32_dpp v{UU+1}, v{UU+5} row_half_mirror row_mask:0xf bank_mask:0xa')
    A(f'v_mov_b32_dpp v{UU+2}, v{UU+4} row_half_mirror row_mask:0xf bank_mask:0x5')
    A(f'v_mov_b32_dpp v{UU+3}, v{UU+5} row_half_mirror row_mask:0xf bank_mask:0x5')
    def spb(i):
        dst = A0 if i % 2 == 0 else A1
        for r in range(4):
            A(f'v_perm_b32 v{dst+r}, v{UU+(i>>1)}, v{UU+(i>>1)}, v{SSEL+4*(i&1)+r}')
    spb(0)
    for i in range(8):
        if i < 7: spb(i + 1)
        src = A0 if i % 2 == 0 else A1
        c = '0' if i == 0 else f'v[{ACC}:{ACC+3}]'
        A(f'v_mfma_f32_16x16x32_bf16 v[{ACC}:{ACC+3}], v[{src}:{src+3}], v[{WO+4*i}:{WO+4*i+3}], {c}')
    combine(ACC, L_YP, L_CNT2, 'L_end')
    A(f'buffer_store_dwordx4 v[{G0}:{G0+3}], v{VY}, s[48:51], s99 offen {ystflags}')
    if not pst: stamp(6)
    write_stamps(0)
    A('s_endpgm')

    SEL, HACC, HA0, HA1, XN, XS, XF, VW, VST, BUF, ACC2 = 4, 12, 32, 36, 40, 50, 60, 92, 93, 96, 176
    A('L_helper:')
    common2()
    A('s_cmp_eq_u32 s3, 0'); A('s_cbranch_scc1 L_hq')
    rest_args()
    A('s_cmp_eq_u32 s3, 2'); A('s_cbranch_scc1 L_hp')
    A('s_and_b32 s56, s2, 7'); A('s_lshr_b32 s39, s2, 3'); A('s_and_b32 s39, s39, 8'); A('s_add_u32 s56, s56, s39')
    A('s_cmp_ge_u32 s56, 14'); A('s_cbranch_scc1 L_end')
    A('s_cmp_ge_u32 s2, 128'); A('s_cbranch_scc1 L_hm2')
    A('s_mov_b32 s5, s4')
    A('s_movk_i32 s6, 3456')
    A('s_lshl_b32 s59, s56, 3'); A('s_add_u32 s59, s59, s5'); A('s_lshl_b32 s59, s59, 10'); A(f's_add_u32 s59, s59, {W_H}')
    A('s_lshl_b32 s56, s56, 8'); A(f's_mul_i32 s57, s5, {80*3456}'); A('s_add_u32 s56, s56, s57')
    A(f's_sub_u32 s42, {640*3456}, s56')
    A('s_waitcnt lgkmcnt(0)')
    A('s_add_u32 s40, s20, s56'); A('s_addc_u32 s41, s21, 0')
    A('s_branch L_g1')
    A('L_hq:')
    A('s_mov_b32 s5, s4')
    A('s_movk_i32 s6, 8192')
    A('s_lshl_b32 s59, s34, 13'); A('s_lshl_b32 s39, s5, 10'); A('s_add_u32 s59, s59, s39'); A(f's_add_u32 s59, s59, {W_QP}')
    A('s_lshl_b32 s56, s34, 8'); A(f's_mul_i32 s57, s5, {80*8192}'); A('s_add_u32 s56, s56, s57')
    A(f's_sub_u32 s42, {640*8192}, s56')
    A('s_waitcnt lgkmcnt(0)')
    A('s_add_u32 s40, s14, s56'); A('s_addc_u32 s41, s15, 0')
    rest_args()
    A('L_g1:')
    A('s_mov_b32 s44, s8'); A('s_mov_b32 s45, s9'); A('s_mov_b32 s46, 2560'); A('s_mov_b32 s47, 0x20000')
    A('v_bfe_u32 v12, v1, 3, 1'); A('v_mul_u32_u24 v12, 1280, v12')
    A('v_and_b32 v13, 7, v1'); A('v_lshl_add_u32 v13, v2, 3, v13'); A('v_lshl_add_u32 v13, v13, 3, v12')
    for j in range(5):
        A(f'buffer_load_dwordx2 v[{XS+2*j}:{XS+2*j+1}], v13, s[44:47], 0 offen offset:{j*256}')
    A('v_mul_u32_u24 v14, 40, v2'); A('v_add_u32 v14, v14, v12'); A('s_mul_i32 s39, s5, 160')
    for j in range(5):
        A(f'buffer_load_dwordx2 v[{XN+2*j}:{XN+2*j+1}], v14, s[44:47], s39 offen offset:{j*8}')
    A('s_mul_i32 s39, s6, 20'); A('v_mul_lo_u32 v12, v2, s39'); A(f'v_lshl_add_u32 v{VW}, v3, 4, v12')
    if wdum & 1:
        A(f'v_lshlrev_b32 v{VW}, 4, v1'); A('s_movk_i32 s6, 1024')
        A('s_cmp_eq_u32 s3, 0'); A('s_cselect_b32 s40, s14, s20'); A('s_cselect_b32 s41, s15, s21')
        A('s_mul_i32 s57, s2, 19456'); A('s_add_u32 s40, s40, s57'); A('s_addc_u32 s41, s41, 0'); A('s_mov_b32 s42, 20480')
    A('s_mov_b32 s57, 0')
    A('s_cmp_eq_u32 s3, 0'); A('s_cbranch_scc1 L_nb0'); A('s_barrier'); A('L_nb0:')
    for i in range(20):
        r = BUF + 4 * i
        if i % Dm == 0:
            A('s_cmp_eq_u32 s3, 0'); A(f's_cbranch_scc1 L_nt{i}'); A(f's_waitcnt vmcnt({0 if i == 0 else 1})'); A(f'L_nt{i}:')
        A(f'buffer_load_dwordx4 v[{r}:{r+3}], v{VW}, s[40:43], s57 offen {wflags}')
        if i < 19: A('s_add_u32 s57, s57, s6')
    A('s_cmp_lg_u32 s3, 0'); A('s_cbranch_scc1 L_nb1'); A('s_barrier'); A('L_nb1:')
    A('s_waitcnt lgkmcnt(0)')
    load_tag()
    A('s_mov_b32 s48, s32'); A('s_mov_b32 s49, s33')
    A('v_lshrrev_b32 v12, 1, v2'); A('v_lshlrev_b32 v12, 9, v12'); A('v_lshl_add_u32 v12, v3, 5, v12')
    A('v_and_b32 v13, 1, v2'); A(f'v_lshl_add_u32 v{VST}, v13, 4, v12')
    selectors()
    A('v_mov_b32 v20, 0x3f803f80')
    A('s_waitcnt vmcnt(25)')
    if loc:
        A('s_lshl_b32 s60, s3, 1'); A('s_add_u32 s60, s60, s34')
        hdr_load(24, 28, 's60')
    A(f'v_dot2_f32_bf16 v12, v{XS}, v20, 0'); A(f'v_dot2_f32_bf16 v13, v{XS+1}, v20, 0')
    for j in range(2, 10, 2):
        A(f'v_dot2_f32_bf16 v12, v{XS+j}, v20, v12'); A(f'v_dot2_f32_bf16 v13, v{XS+j+1}, v20, v13')
    for j in range(10):
        A(f'v_lshlrev_b32 v{XF+2*j}, 16, v{XS+j}')
        A(f'v_and_b32 v{XF+2*j+1}, 0xffff0000, v{XS+j}')
    A('v_add_f32 v12, v12, v13')
    red8('v_add_f32', [12], [13]); rows_add(12, 13)
    A(f's_mov_b32 s39, {f2u(1.0/640):#x}')
    A('v_mul_f32 v12, s39, v12')
    A('v_mov_b32 v14, 0'); A('v_mov_b32 v15, 0')
    for j in range(0, 20, 2):
        A(f'v_sub_f32 v22, v{XF+j}, v12'); A(f'v_sub_f32 v23, v{XF+j+1}, v12')
        A('v_fmac_f32 v14, v22, v22'); A('v_fmac_f32 v15, v23, v23')
    A('v_add_f32 v14, v14, v15')
    red8('v_add_f32', [14], [15]); rows_add(14, 15)
    A('v_mul_f32 v14, s39, v14')
    bf16r(12, 12)
    bf16r(14, 14)
    A(f'v_add_f32 v14, {f2u(1e-5):#x}, v14')
    bf16r(14, 14)
    A('v_sqrt_f32 v14, v14')
    bf16r(14, 14)
    A('v_rcp_f32 v14, v14')
    A(f's_waitcnt vmcnt({21 if loc else 20})')
    for j in range(10):
        A(f'v_lshlrev_b32 v{XF+2*j}, 16, v{XN+j}'); A(f'v_and_b32 v{XF+2*j+1}, 0xffff0000, v{XN+j}')
        A(f'v_sub_f32 v{XF+2*j}, v{XF+2*j}, v12'); A(f'v_sub_f32 v{XF+2*j+1}, v{XF+2*j+1}, v12')
        A(f'v_cvt_pk_bf16_f32 v{XN+j}, v{XF+2*j}, v{XF+2*j+1}')
    for j in range(10):
        A(f'v_lshlrev_b32 v{XF+2*j}, 16, v{XN+j}'); A(f'v_and_b32 v{XF+2*j+1}, 0xffff0000, v{XN+j}')
        A(f'v_mul_f32 v{XF+2*j}, v14, v{XF+2*j}'); A(f'v_mul_f32 v{XF+2*j+1}, v14, v{XF+2*j+1}')
        A(f'v_cvt_pk_bf16_f32 v{XN+j}, v{XF+2*j}, v{XF+2*j+1}')
    A('s_waitcnt lgkmcnt(0)')
    make_tag()
    stamp(1)
    tagregs(TG)
    def pb(i, src):
        dst = HA0 if i % 2 == 0 else HA1
        for r in range(4):
            A(f'v_perm_b32 v{dst+r}, v{src+(i>>1)}, v{src+(i>>1)}, v{SEL+4*(i&1)+r}')
    pb(0, XN)
    for i in range(20):
        if i < 19: pb(i + 1, XN)
        if i % 4 == 0: A(f's_waitcnt vmcnt({19 - (i + 3) + (1 if loc else 0)})')
        src = HA0 if i % 2 == 0 else HA1
        c = '0' if i == 0 else f'v[{HACC}:{HACC+3}]'
        A(f'v_mfma_f32_16x16x32_bf16 v[{HACC}:{HACC+3}], v[{src}:{src+3}], v[{BUF+4*i}:{BUF+4*i+3}], {c}')
    entag(16, HACC, TG, rnd=True)
    if noex & 1:
        A('s_cmp_eq_u32 s3, 0'); A('s_cbranch_scc1 L_qd')
    if noex & 2:
        A('s_cmp_lg_u32 s3, 0'); A('s_cbranch_scc1 L_end')
    if loc:
        A('s_waitcnt vmcnt(0)')
        hdr_check(24)
        A('s_cselect_b32 s62, 1, 0')
        A('s_cbranch_scc0 L_g1s')
        A(f'buffer_store_dwordx4 v[16:19], v{VST}, s[48:51], s59 offen')
        A('s_branch L_g1t')
        A('L_g1s:')
    A(f'buffer_store_dwordx4 v[16:19], v{VST}, s[48:51], s59 offen sc1')
    A('L_g1t:')
    stamp(2)
    A('s_cmp_eq_u32 s3, 0'); A('s_cbranch_scc1 L_hq2')
    write_stamps(1)
    A('s_endpgm')
    A('L_hq2:')
    A('v_and_b32 v24, 31, v1'); A('v_lshlrev_b32 v24, 4, v24'); A('v_lshrrev_b32 v25, 5, v1'); A('v_lshl_add_u32 v24, v25, 10, v24')
    A('s_lshl_b32 s56, s34, 13'); A('s_lshl_b32 s39, s36, 9'); A('s_add_u32 s56, s56, s39'); A(f's_add_u32 s56, s56, {W_QP}'); A('s_add_u32 s57, s56, 4096')
    if loc and qsl >= 0:
        A('s_cmp_eq_u32 s62, 1'); A('s_cbranch_scc0 L_qa')
        if qsl: A(f's_sleep {qsl}')
        A('s_branch L_qb')
        A('L_qa:')
    A('s_waitcnt vmcnt(0)')
    A('L_qb:')
    stamp(3)
    A(f's_mov_b32 s67, {SPIN}')
    A('s_movk_i32 s62, 0xf')
    A('L_qw:')
    for j in range(4):
        A(f's_bitcmp1_b32 s62, {j}'); A(f's_cbranch_scc0 L_qs{j}')
        A(f'buffer_load_dwordx4 v[{XF+16+4*j}:{XF+16+4*j+3}], v24, s[48:51], s{56 + (j >> 1)} offen offset:{(j&1)*2048} sc1')
        A(f'L_qs{j}:')
    A('s_waitcnt vmcnt(0)')
    A('s_mov_b32 s62, 0')
    for j in range(4):
        b = XF + 4 * j
        for r in range(4): A(f'v_xor_b32 v{b+r}, v{TG+r}, v{b+16+r}')
        A(f'v_or3_b32 v25, v{b}, v{b+1}, v{b+2}'); A(f'v_or_b32 v25, v25, v{b+3}'); A(f'v_and_b32 v25, v{TG+4}, v25')
        A('v_cmp_ne_u32 vcc, 0, v25')
        A('s_nop 0')
        A('s_cmp_lg_u64 vcc, 0'); A(f's_cselect_b32 s39, {1 << j}, 0'); A('s_or_b32 s62, s62, s39')
    A('s_cbranch_scc0 L_qd')
    A('s_sub_u32 s67, s67, 1'); A('s_cmp_lg_u32 s67, 0'); A('s_cbranch_scc1 L_qw')
    A('L_qd:')
    for r in range(4):
        A(f'v_add_f32 v{XF+r}, v{XF+r}, v{XF+4+r}'); A(f'v_add_f32 v{XF+8+r}, v{XF+8+r}, v{XF+12+r}')
    for r in range(4): A(f'v_add_f32 v{XF+r}, v{XF+r}, v{XF+8+r}')
    A(f'v_permlane32_swap_b32 v{XF}, v{XF+2}'); A(f'v_permlane32_swap_b32 v{XF+1}, v{XF+3}')
    A(f'v_add_f32 v{XF}, v{XF}, v{XF+2}'); A(f'v_add_f32 v{XF+1}, v{XF+1}, v{XF+3}')
    A(f'v_cvt_pk_bf16_f32 v{XF}, v{XF}, v{XF+1}')
    A('v_and_b32 v22, 31, v1'); A('v_lshlrev_b32 v22, 3, v22'); A('v_lshrrev_b32 v23, 5, v1'); A('v_lshl_add_u32 v22, v23, 2, v22')
    A(f'ds_write_b32 v22, v{XF} offset:{L_Q}')
    A('v_mov_b32 v28, 1'); A(f'v_mov_b32 v26, {L_QRDY}')
    A('s_waitcnt lgkmcnt(0)')
    A('ds_write_b32 v26, v28')
    stamp(4)
    A(f's_sub_u32 s61, s2, {C0}')
    A('s_cmp_lt_u32 s61, 80'); A('s_cbranch_scc1 L_gate')
    write_stamps(1)
    A('s_endpgm')
    A('L_gate:')
    A('v_lshrrev_b32 v26, 2, v1'); A('v_min_u32 v19, 13, v26'); A('v_mul_u32_u24 v26, 5120, v26'); A('v_mul_u32_u24 v19, 5120, v19')
    A('v_and_b32 v27, 3, v1'); A('v_lshl_add_u32 v26, v27, 4, v26'); A('v_lshl_add_u32 v19, v27, 4, v19')
    A('v_lshlrev_b32 v27, 3, v27')
    A('v_bfe_u32 v18, v1, 2, 2'); A('v_lshl_add_u32 v27, v18, 1, v27')
    A('s_lshl_b32 s60, s61, 5')
    A('buffer_load_ushort v20, v27, s[44:47], s60 offen')
    A('s_cmp_ge_u32 s61, 40'); A('s_cselect_b32 s58, 40, 0'); A('s_sub_u32 s59, s61, s58')
    A('s_lshl_b32 s57, s59, 5')
    A('s_mov_b32 s52, s26'); A('s_mov_b32 s53, s27'); A('s_mov_b32 s54, 1280'); A('s_mov_b32 s55, 0x20000')
    A('buffer_load_ushort v21, v27, s[52:55], s57 offen')
    A('s_mul_i32 s56, s59, 52'); A('s_lshr_b32 s56, s56, 8'); A('s_mul_i32 s56, s56, 320')
    A('s_lshl_b32 s57, s59, 6'); A('s_add_u32 s56, s56, s57'); A('s_lshl_b32 s58, s58, 3'); A('s_add_u32 s56, s56, s58')
    A(f's_add_u32 s8, s56, {W_G}')
    A(f's_add_u32 s56, s56, {W_Y}'); A(f's_add_u32 s57, s56, {16*5120}')
    A('s_mov_b32 s40, s28'); A('s_mov_b32 s41, s29'); A('s_movk_i32 s42, 2560')
    A('v_mov_b32 v28, s74'); A('v_mov_b32 v29, s75'); A('v_lshlrev_b32 v30, 24, v1')
    A('s_lshl_b32 s58, s61, 24'); A(f's_add_u32 s58, s58, {W_EP}')
    wait_lds(L_PROG, pG)
    if not (noex & 2): poll([f'buffer_load_dwordx4 v[{XF}:{XF+3}], v19, s[48:51], s8 offen sc1'], [XF], 18, sleep)
    A('v_cmp_gt_u32 vcc, 56, v1')
    for r in range(4): A(f'v_cndmask_b32 v{XF+r}, 0, v{XF+r}, vcc')
    col_reduce(XF, XF + 4, 18, 19)
    bf16r(18, 18)
    A('v_lshlrev_b32 v21, 16, v21'); A('v_lshlrev_b32 v20, 16, v20')
    A('v_add_f32 v18, v18, v21')
    bf16r(18, 18)
    A(f'v_mul_f32 v19, {f2u(-1.4426950408889634):#x}, v18')
    A('v_exp_f32 v19, v19')
    A('v_add_f32 v19, 1.0, v19')
    A('v_rcp_f32 v19, v19')
    A('v_mul_f32 v18, v18, v19')
    bf16r(22, 18)
    stamp(5)
    wait_lds(L_PROG, 8)
    wait_lds(L_CNT2, 4, slp=0)
    if ysl: A(f's_sleep {ysl}')
    poll([f'buffer_load_dwordx4 v[{XF}:{XF+3}], v26, s[48:51], s56 offen {yldflags}', f'buffer_load_dwordx4 v[{XF+4}:{XF+7}], v26, s[48:51], s57 offen {yldflags}'], [XF, XF + 4], 18, ysl2)
    stamp(6)
    for r in range(4): A(f'v_add_f32 v{XF+r}, v{XF+r}, v{XF+4+r}')
    col_reduce(XF, XF + 4, 18, 19)
    bf16r(18, 18)
    A('v_mul_f32 v18, v18, v22')
    bf16r(18, 18)
    A('v_add_f32 v18, v18, v20')
    A('v_cvt_pk_bf16_f32 v18, v18, v18')
    A('buffer_store_short v18, v27, s[40:43], s60 offen')
    A('buffer_store_dwordx2 v[28:29], v30, s[48:51], s58 offen')
    stamp(7)
    if fixdur:
        A('s_waitcnt lgkmcnt(0)')
        A(f's_mov_b32 s92, {fixdur}')
        if amp >= 0:
            A(f's_sub_u32 s93, s{76+2*amp}, s76'); A('s_mul_i32 s93, s93, 10'); A('s_add_u32 s92, s92, s93')
        A('L_fix:')
        A('s_memrealtime s[94:95]'); A('s_waitcnt lgkmcnt(0)')
        A('s_sub_u32 s94, s94, s76'); A('s_cmp_lt_u32 s94, s92'); A('s_cbranch_scc1 L_fix')
    write_stamps(2)
    A('s_endpgm')

    A('L_hm2:')
    TG2, B1, UU = 240, 224, 40
    A('s_mov_b32 s5, s56')
    A('s_mov_b32 s6, s4')
    A('s_lshl_b32 s59, s5, 3'); A('s_add_u32 s59, s59, s6'); A('s_mul_i32 s59, s59, 640'); A(f's_add_u32 s59, s59, {W_G}')
    A(f's_mul_i32 s56, s5, {128*1280}'); A('s_mul_i32 s57, s6, 160'); A('s_add_u32 s56, s56, s57')
    A(f's_sub_u32 s42, {1728*1280}, s56')
    A('s_waitcnt lgkmcnt(0)')
    A('s_add_u32 s40, s24, s56'); A('s_addc_u32 s41, s25, 0')
    load_tag()
    A('s_barrier')
    A('s_mov_b32 s48, s32'); A('s_mov_b32 s49, s33')
    A(f'v_mul_u32_u24 v16, {32*1280}, v2'); A('v_lshl_add_u32 v16, v3, 4, v16')
    A('v_mov_b32 v18, 0x40000000'); A('v_cmp_gt_u32 vcc, 10, v3'); A(f'v_cndmask_b32 v{VW}, v18, v16, vcc')
    A('v_lshrrev_b32 v16, 1, v2'); A('v_mul_u32_u24 v16, 320, v16'); A('v_lshl_add_u32 v16, v3, 5, v16')
    A('v_and_b32 v17, 1, v2'); A('v_lshl_add_u32 v16, v17, 4, v16'); A(f'v_cndmask_b32 v{VST}, v18, v16, vcc')
    selectors()
    A('v_and_b32 v94, 7, v3'); A('v_lshlrev_b32 v94, 10, v94'); A('v_lshrrev_b32 v95, 3, v3'); A('v_lshl_add_u32 v94, v95, 9, v94'); A('v_lshl_add_u32 v94, v2, 7, v94')
    A('s_mov_b32 s52, s22'); A('s_mov_b32 s53, s23'); A(f's_mov_b32 s54, {1728*2}'); A('s_mov_b32 s55, 0x20000')
    A('s_waitcnt lgkmcnt(0)')
    make_tag()
    tagregs(TG2)
    if wdum & 2:
        A('v_lshlrev_b32 v16, 4, v1'); A('v_mov_b32 v18, 0x40000000'); A('v_cmp_gt_u32 vcc, 40, v1'); A(f'v_cndmask_b32 v{VW}, v18, v16, vcc')
        A('s_lshl_b32 s39, s5, 3'); A('s_add_u32 s39, s39, s6'); A('s_mul_i32 s39, s39, 19456')
        A('s_add_u32 s40, s24, s39'); A('s_addc_u32 s41, s25, 0'); A('s_mov_b32 s42, 20480')
    A('s_mov_b32 s57, 0')
    for i in range(32):
        if i >= Dw: A(f's_waitcnt vmcnt({Dw - 1})')
        r = BUF + 4 * i
        A(f'buffer_load_dwordx4 v[{r}:{r+3}], v{VW}, s[40:43], s57 offen {woflags}')
        if i < 31: A(f's_addk_i32 s57, {640 if wdum & 2 else 1280}')
    A('s_lshl_b32 s57, s5, 8'); A('v_lshlrev_b32 v20, 6, v2')
    for j in range(4): A(f'buffer_load_dwordx4 v[{B1+4*j}:{B1+4*j+3}], v20, s[52:55], s57 offen offset:{16*j}')
    stamp(1)
    if noex & 2: A('s_endpgm')
    wait_lds(L_PROG, pH)
    A('s_lshl_b32 s56, s5, 13'); A(f's_add_u32 s56, s56, {W_H}')
    poll([f'buffer_load_dwordx4 v[{XF+4*j}:{XF+4*j+3}], v94, s[48:51], s56 offen offset:{16*j} sc1' for j in range(8)], [XF + 4 * j for j in range(8)], 18, sleep)
    for j in range(8): red8('v_add_f32', [XF + 4 * j + r for r in range(4)], [20 + r for r in range(4)])
    A('s_cmp_eq_u32 s5, 13'); A('s_cselect_b32 s39, 2, 4'); A('v_cmp_gt_u32 vcc, s39, v2')
    for j in range(32):
        bf16r(XF + j, XF + j)
        if j % 2 == 0: A(f'v_lshlrev_b32 v18, 16, v{B1+j//2}')
        else: A(f'v_and_b32 v18, 0xffff0000, v{B1+j//2}')
        A(f'v_add_f32 v{XF+j}, v{XF+j}, v18')
        bf16r(XF + j, XF + j)
        A(f'v_max_f32 v{XF+j}, 0, v{XF+j}')
        A(f'v_mul_f32 v{XF+j}, v{XF+j}, v{XF+j}')
        if j % 2 == 1:
            A(f'v_cvt_pk_bf16_f32 v{UU+j//2}, v{XF+j-1}, v{XF+j}'); A(f'v_cndmask_b32 v{UU+j//2}, 0, v{UU+j//2}, vcc')
    pb(0, UU)
    for i in range(32):
        if i < 31: pb(i + 1, UU)
        src = HA0 if i % 2 == 0 else HA1
        c = '0' if i == 0 else f'v[{HACC}:{HACC+3}]'
        A(f'v_mfma_f32_16x16x32_bf16 v[{HACC}:{HACC+3}], v[{src}:{src+3}], v[{BUF+4*i}:{BUF+4*i+3}], {c}')
    entag(20, HACC, TG2, rnd=True)
    A(f'buffer_store_dwordx4 v[20:23], v{VST}, s[48:51], s59 offen sc1')
    stamp(5)
    write_stamps(1)
    A('s_endpgm')
    A('L_hp:')
    if cpf:
        A('s_getpc_b64 s[60:61]')
        A('L_pc:')
        A(f's_sub_u32 s60, s60, L_pc-{NAME}_kernel'); A('s_subb_u32 s61, s61, 0')
        A(f's_mov_b32 s62, L_end-{NAME}_kernel'); A('s_mov_b32 s63, 0x20000')
        A('s_lshr_b32 s39, s2, 3'); A('s_lshl_b32 s39, s39, 10'); A('v_lshlrev_b32 v6, 4, v1')
        A('buffer_load_dwordx4 v[8:11], v6, s[60:63], s39 offen')
    A('v_mov_b32 v4, 0'); A('v_lshlrev_b32 v5, 2, v1')
    A(f'ds_write_b32 v5, v4 offset:{L_PROG}')
    if tlb:
        A('s_lshl_b32 s56, s35, 21'); A('s_lshl_b32 s57, s37, 19'); A('s_add_u32 s56, s56, s57')
        A(f's_mul_i32 s58, s34, {128*1280}')
        A('v_mov_b32 v16, s56'); A('v_mov_b32 v17, s58'); A('v_mov_b32 v18, 0'); A(f'v_mov_b32 v19, {W_Y}'); A('v_mov_b32 v20, 0x200000')
    A('s_waitcnt lgkmcnt(0)')
    if tlb:
        A('s_mov_b64 exec, 1')
        A('global_load_dword v24, v17, s[16:17] nt')
        A('global_load_dword v25, v18, s[20:21] nt')
        A('global_load_dword v26, v18, s[24:25] nt')
        A('global_load_dword v27, v20, s[20:21] nt')
        A('global_load_dword v28, v20, s[24:25] nt')
        if tlb > 1:
            A('global_load_dword v29, v16, s[12:13] nt')
            A('global_load_dword v30, v18, s[32:33] nt')
            A('global_load_dword v31, v19, s[32:33] nt')
            A('global_load_dword v32, v18, s[22:23] nt')
            A('global_load_dword v33, v18, s[26:27] nt')
            A('global_load_dword v34, v18, s[28:29] nt')
        A('s_mov_b64 exec, -1')
    load_tag()
    A('s_mov_b32 s48, s32'); A('s_mov_b32 s49, s33')
    A('v_and_b32 v94, 7, v3'); A('v_lshrrev_b32 v95, 3, v3')
    A('s_getreg_b32 s39, hwreg(HW_REG_XCC_ID, 0, 4)')
    A('v_mov_b32 v20, s39'); A('v_mov_b32 v22, 0'); A('v_lshlrev_b32 v24, 24, v1')
    A('s_lshl_b32 s39, s34, 3'); A('s_add_u32 s39, s39, s4'); A('s_lshl_b32 s39, s39, 4'); A(f's_add_u32 s39, s39, {W_HD}')
    A('s_waitcnt lgkmcnt(0)')
    make_tag()
    A('v_mov_b32 v21, s74'); A('v_mov_b32 v23, s75')
    A('buffer_store_dwordx4 v[20:23], v24, s[48:51], s39 offen')
    A('s_barrier')
    wait_lds(L_PROG, 1)
    hdr_load(40, 30, 's34')
    A('s_waitcnt vmcnt(0)')
    hdr_check(40)
    A('s_cselect_b32 s46, 1, 2')
    if ctl:
        wait_lds(L_PROG, 2, slp=2)
        A('s_memrealtime s[8:9]')
        wait_lds(L_PROG, 4, slp=2)
        A('s_memrealtime s[10:11]')
        A('s_waitcnt lgkmcnt(0)')
        A('v_mov_b32 v20, s8'); A('v_mov_b32 v21, s74'); A('v_mov_b32 v22, s10'); A('v_mov_b32 v23, s75')
        A('v_lshlrev_b32 v24, 24, v1')
        if ts64:
            A('s_lshr_b32 s39, s2, 5'); A('s_lshl_b32 s39, s39, 3'); A('s_and_b32 s12, s2, 7'); A('s_add_u32 s39, s39, s12'); A('s_lshl_b32 s39, s39, 4')
            A('s_lshl_b32 s12, s37, 24'); A('s_add_u32 s39, s39, s12')
            A(f's_add_u32 s39, s39, {W_TS}')
        else:
            A('s_lshl_b32 s39, s2, 4'); A(f's_add_u32 s39, s39, {W_TS}')
        A('buffer_store_dwordx4 v[20:23], v24, s[48:51], s39 offen sc1')
        wait_lds(L_PROG, 5, slp=4)
        A('v_lshlrev_b32 v24, 4, v1'); A(f's_mov_b32 s39, {W_TS}')
        NTS = 1 if ts64 else 4
        for j in range(NTS):
            A(f'buffer_load_dwordx4 v[{XF+4*j}:{XF+4*j+3}], v24, s[48:51], s39 offen offset:{j*1024} sc1')
        A('v_mov_b32 v26, 0'); A('v_mov_b32 v27, 0')
        A('s_sub_u32 s12, s8, s10')
        A('v_mov_b32 v28, s12')
        A('s_waitcnt vmcnt(0)')
        for j in range(NTS):
            b = XF + 4 * j
            A(f'v_cmp_eq_u32 vcc, s74, v{b+1}')
            A(f'v_subrev_u32 v{b}, s10, v{b}'); A(f'v_subrev_u32 v{b+2}, s10, v{b+2}')
            A(f'v_cndmask_b32 v{b}, v28, v{b}, vcc'); A(f'v_cndmask_b32 v{b+2}, 0, v{b+2}, vcc')
            A(f'v_add_u32 v26, v26, v{b}'); A(f'v_add_u32 v27, v27, v{b+2}')
        red8('v_add_u32', [26, 27], [29, 30])
        A(f'v_add_u32_dpp v26, v26, v26 row_ror:8 {DPPF}'); A(f'v_add_u32_dpp v27, v27, v27 row_ror:8 {DPPF}')
        rows_add(26, 29, 'v_add_u32'); rows_add(27, 30, 'v_add_u32')
        A('v_readfirstlane_b32 s12, v26'); A('v_readfirstlane_b32 s13, v27')
        A('s_sub_u32 s14, s13, s12')
        A(f's_mul_i32 s14, s14, {cscale}'); A(f's_ashr_i32 s14, s14, {14 if ts64 else 16}')
        A(f's_ashr_i32 s13, s13, {2 if ts64 else 4}')
        A(f's_add_u32 s15, s10, {cmargin}'); A('s_lshl_b32 s15, s15, 4'); A('s_add_u32 s15, s15, s13')
        A('s_lshl_b32 s12, s14, 3'); A('s_add_u32 s15, s15, s12')
        A('v_mov_b32 v26, s15'); A('v_mov_b32 v27, s14'); A(f'v_mov_b32 v28, {L_CTL}')
        A('ds_write_b64 v28, v[26:27]')
    if mlwg:
        wait_lds(L_CNT0, 4, slp=4)
        A('v_and_b32 v16, 3, v1'); A('v_lshlrev_b32 v16, 4, v16')
        A(f'ds_read_b128 v[20:23], v16 offset:{L_ML}')
        A('v_lshrrev_b32 v17, 2, v1'); A('v_lshl_add_u32 v16, v17, 24, v16')
        A('s_lshl_b32 s39, s35, 8'); A('s_lshl_b32 s56, s37, 6'); A('s_add_u32 s39, s39, s56')
        A('s_waitcnt lgkmcnt(0)')
        A('s_cmp_eq_u32 s46, 1'); A('s_cbranch_scc0 L_mls')
        A('buffer_store_dwordx4 v[20:23], v16, s[48:51], s39 offen')
        A('s_branch L_mlt')
        A('L_mls:')
        A('buffer_store_dwordx4 v[20:23], v16, s[48:51], s39 offen sc1')
        A('L_mlt:')
    wait_lds(L_PROG, pML)
    A('v_lshlrev_b32 v16, 4, v3')
    A('s_lshl_b32 s39, s35, 8')
    polltag(['buffer_load_dwordx4 v[20:23], v16, s[48:51], s39 offen sc1'], [20], 18, sleep)
    A('v_mov_b32 v28, v20')
    red8('v_max_f32', [28], [29])
    A(f'v_max_f32_dpp v28, v28, v28 row_ror:8 {DPPF}')
    A('v_sub_f32 v20, v20, v28')
    A('v_exp_f32 v20, v20')
    A('v_mul_f32 v22, v22, v20')
    red8('v_add_f32', [22], [29])
    A(f'v_add_f32_dpp v22, v22, v22 row_ror:8 {DPPF}')
    A('v_rcp_f32 v22, v22')
    A('v_mul_f32 v44, v20, v22')
    A('s_lshl_b32 s56, s37, 2')
    A('v_subrev_u32 v16, s56, v1'); A('v_lshlrev_b32 v16, 2, v16')
    A('s_lshl_b64 exec, 15, s56')
    A(f'ds_write_b32 v16, v44 offset:{L_W4}')
    A('s_mov_b64 exec, -1')
    A('v_mov_b32 v21, s46'); A(f'v_mov_b32 v23, {L_FAST}')
    A('s_waitcnt lgkmcnt(0)')
    A('ds_write_b32 v23, v21')
    if touch:
        A('v_lshlrev_b32 v16, 4, v1'); A('s_lshl_b32 s39, s34, 12'); A(f's_add_u32 s39, s39, {W_O}')
        wait_lds(L_PROG, 7, va=18, vt=19)
        A('s_lshl_b32 s39, s34, 12'); A(f's_add_u32 s39, s39, {W_O}')
        if touch1:
            A('s_lshl_b32 s56, s4, 9'); A('s_add_u32 s39, s39, s56'); A('v_lshlrev_b32 v16, 3, v1')
            A(f'buffer_load_dwordx2 v[{XF}:{XF+1}], v16, s[48:51], s39 offen')
        else:
            for j in range(4): A(f'buffer_load_dwordx4 v[{XF+4*j}:{XF+4*j+3}], v16, s[48:51], s39 offen offset:{j*1024}')
    stamp(2)
    write_stamps(1)
    A('L_end:')
    A('s_endpgm')
    body = a.finalize()
    out = HEADER
    out += f'; @launch grid=(256,1,1) block=(448,1,1) lds={L_TOTAL}\n'
    out += '.amdgcn_target "amdgcn-amd-amdhsa--gfx950"\n.text\n'
    out += f'.globl {NAME}_kernel\n.p2align 8\n.type {NAME}_kernel,@function\n'
    out += body
    out += f'''.section .rodata,"a"
.p2align 6
.amdhsa_kernel {NAME}_kernel
  .amdhsa_next_free_vgpr 256
  .amdhsa_next_free_sgpr 100
  .amdhsa_accum_offset 256
  .amdhsa_group_segment_fixed_size 0
  .amdhsa_kernarg_size 104
  .amdhsa_user_sgpr_count 2
  .amdhsa_user_sgpr_kernarg_segment_ptr 1
  .amdhsa_system_sgpr_workgroup_id_x 1
.end_amdhsa_kernel
'''
    return out

if __name__ == '__main__':
    ap = argparse.ArgumentParser()
    ap.add_argument('out')
    ap.add_argument('opts', nargs='*')
    args = ap.parse_args()
    kw = {}
    for o in args.opts:
        k, v = o.split('=')
        kw[k] = v if k.endswith('flags') else int(v)
    open(args.out, 'w').write(gen(**kw))
```

```python
import sys, struct, argparse
from asmlib import Asm
NAME = 'recurrent_scan__mha_block_cached__dense_activation_squared_relu__decode'
def f2u(x): return struct.unpack('<I', struct.pack('<f', x))[0]
HEADER = open('cdna_kernels/' + NAME + '.s.ref').read().split('; Override launch')[0]

L_Q, L_PROG, L_FAST, L_CTL, L_QRDY, L_CNT1, L_CNT2, L_W4, L_CNT0, L_ML, L_OP, L_YP, L_TOTAL = 0, 256, 260, 264, 272, 276, 280, 288, 284, 320, 512, 4608, 8704
W_HD = 0xA000
W_ML, W_TS, W_EP, W_H, W_QP, W_O, W_G, W_Y, W_SIZE = 0, 0x8000, 0xC000, 0x10000, 0x40000, 0x80000, 0x100000, 0x200000, 0x400000
N1, N2, C0 = 112, 128, 176

def gen(D=5, D0=4, D0n=14, stamps=0, mimic=0, kvflags='nt', wflags='nt', sleep=32, fixdur=0, amp=-1,
        pH=1, pG=4, pML=6, Dw=8, ctl=1, cmargin=35, cscale=256, Dhi=8, fast=1, prestore=1, yack=0, ysl=18, ysl2=0, ypre=0, yldflags='sc1', ystflags='sc1', D00=6, Dm=10, gsl=28, Dlo=4, lead=60, dryp=0, dryc=0, oldflags='sc1', woflags='nt', wo0=8, wos=3, touch=1, gwait=0, gcnt=0, gearly=0, ts64=1, touch1=1, mlwg=1, pst=0, wdum=0, noex=0, tlb=0, D1=0, D1n=0, ka=1, cpf=1, bj=9, wlflags='41010110', loc=1, qsl=-1, amp2=-1):
    if fixdur: stamps = 1
    a = Asm(); A = a
    SPIN = 0x20000
    cnt = [0]
    def uid():
        cnt[0] += 1; return cnt[0]
    def stamp(i):
        if stamps: A(f's_memrealtime s[{76+2*i}:{77+2*i}]')
    def write_stamps(role):
        if not stamps or fixdur: return
        n = uid()
        A('s_waitcnt lgkmcnt(0)')
        if role == 1:
            wait_lds(L_CNT2, 4)
        A('s_mov_b64 exec, -1')
        A('s_add_u32 s92, s32, 0x10000000'); A('s_addc_u32 s93, s33, 0'); A('s_mov_b32 s94, 0x100000'); A('s_mov_b32 s95, 0x20000')
        A('s_lshl_b32 s39, s2, 8')
        if role != 0:
            A('s_add_u32 s56, s3, 1'); A('s_lshl_b32 s56, s56, 6'); A('s_add_u32 s39, s39, s56')
        A('v_and_b32 v2, 63, v0'); A('v_lshlrev_b32 v2, 24, v2')
        for q in range(4):
            for r in range(4): A(f'v_mov_b32 v{4+4*q+r}, s{76+4*q+r}')
            A(f'buffer_store_dwordx4 v[{4+4*q}:{7+4*q}], v2, s[92:95], s39 offen offset:{16*q}')
        A(f'L_nostamp{n}:')
    def bf16r(dst, src):
        A(f'v_cvt_pk_bf16_f32 v{dst}, v{src}, v{src}')
        A(f'v_lshlrev_b32 v{dst}, 16, v{dst}')
    DPPF = 'row_mask:0xf bank_mask:0xf'
    def red8(op, regs, tmps):
        for r, t in zip(regs, tmps): A(f'{op}_dpp v{t}, v{r}, v{r} quad_perm:[1,0,3,2] {DPPF}')
        for r, t in zip(regs, tmps): A(f'{op}_dpp v{r}, v{t}, v{t} quad_perm:[2,3,0,1] {DPPF}')
        for r, t in zip(regs, tmps): A(f'{op}_dpp v{r}, v{r}, v{r} row_half_mirror {DPPF}')
    def rows_add(r, t, op='v_add_f32'):
        A(f'v_mov_b32 v{t}, v{r}'); A(f'v_permlane16_swap_b32 v{r}, v{t}'); A(f'{op} v{r}, v{r}, v{t}')
        A(f'v_mov_b32 v{t}, v{r}'); A(f'v_permlane32_swap_b32 v{r}, v{t}'); A(f'{op} v{r}, v{r}, v{t}')
    def col_reduce(x, y, t0, t1):
        for r in range(4): A(f'v_add_f32_dpp v{y+r}, v{x+r}, v{x+r} row_ror:4 {DPPF}')
        for r in range(4): A(f'v_add_f32_dpp v{t0}, v{y+r}, v{y+r} row_ror:8 row_mask:0xf bank_mask:{1<<r:#x}')
        rows_add(t0, t1)
    def wait_lds(addr, level, va=16, vt=17, slp=8):
        n = uid()
        A(f's_mov_b32 s67, {SPIN*8}')
        A(f'v_mov_b32 v{va}, {addr}')
        A(f'L_pw{n}:')
        A(f'ds_read_b32 v{vt}, v{va}'); A('s_waitcnt lgkmcnt(0)')
        A(f'v_readfirstlane_b32 s39, v{vt}')
        A(f's_cmp_ge_u32 s39, {level}'); A(f's_cbranch_scc1 L_pd{n}')
        if slp: A(f's_sleep {slp}')
        A('s_sub_u32 s67, s67, 1'); A('s_cmp_lg_u32 s67, 0'); A(f's_cbranch_scc1 L_pw{n}')
        A(f'L_pd{n}:')
    def wait_q(slp=4):
        wait_lds(L_QRDY, 1, slp=slp)
    def spin_tail(n, slp):
        A('s_nop 1')
        A('s_cmp_eq_u64 vcc, 0'); A(f's_cbranch_scc1 L_gd{n}')
        if slp: A(f's_sleep {slp}')
        A('s_sub_u32 s67, s67, 1'); A('s_cmp_lg_u32 s67, 0'); A(f's_cbranch_scc1 L_gw{n}')
        A(f'L_gd{n}:')
    def polltag(loads, bases, t, slp):
        n = uid()
        A(f's_mov_b32 s67, {SPIN}')
        A(f'L_gw{n}:')
        for l in loads: A(l)
        A('s_waitcnt vmcnt(0)')
        for k, b in enumerate(bases):
            A(f'v_xor_b32 v{b+1}, s74, v{b+1}'); A(f'v_xor_b32 v{b+3}, s75, v{b+3}')
            if k == 0: A(f'v_or_b32 v{t}, v{b+1}, v{b+3}')
            else: A(f'v_or3_b32 v{t}, v{t}, v{b+1}, v{b+3}')
        A(f'v_cmp_ne_u32 vcc, 0, v{t}')
        spin_tail(n, slp)
    def untag(quads, t):
        first = True
        for b in quads:
            for r in range(4): A(f'v_xor_b32 v{b+r}, s{70+r}, v{b+r}')
            if first:
                A(f'v_or3_b32 v{t}, v{b}, v{b+1}, v{b+2}'); A(f'v_or_b32 v{t}, v{t}, v{b+3}'); first = False
            else:
                A(f'v_or3_b32 v{t}, v{t}, v{b}, v{b+1}'); A(f'v_or3_b32 v{t}, v{t}, v{b+2}, v{b+3}')
        A(f'v_and_b32 v{t}, 0xfff, v{t}')
    def poll(loads, quads, t, slp, init=True):
        n = uid()
        if init: A(f's_mov_b32 s67, {SPIN}')
        A(f'L_gw{n}:')
        for l in loads: A(l)
        A('s_waitcnt vmcnt(0)')
        untag(quads, t)
        A(f'v_cmp_ne_u32 vcc, 0, v{t}')
        spin_tail(n, slp)
    def tagregs(base):
        for r in range(4): A(f'v_mov_b32 v{base+r}, s{70+r}')
        A(f'v_mov_b32 v{base+4}, 0xfff')
    def entag(dst, src, tb, rnd=False):
        for r in range(4):
            if rnd:
                A(f'v_add_u32 v{dst+r}, 0x800, v{src+r}'); A(f'v_bfi_b32 v{dst+r}, v{tb+4}, v{tb+r}, v{dst+r}')
            else:
                A(f'v_bfi_b32 v{dst+r}, v{tb+4}, v{tb+r}, v{src+r}')
    def selectors(SEL=4, t=12):
        A(f'v_and_b32 v{t}, 7, v3'); A(f'v_lshrrev_b32 v{t+1}, 1, v{t}'); A(f'v_and_b32 v{t}, 1, v{t}')
        A(f'v_mov_b32 v{t+2}, 0x0c0c0c0c')
        A(f'v_cmp_eq_u32 vcc, 1, v{t}')
        A(f'v_mov_b32 v{t+3}, 0x0c0c0100'); A(f'v_mov_b32 v{t+4}, 0x01000c0c'); A(f'v_cndmask_b32 v{t+3}, v{t+3}, v{t+4}, vcc')
        A(f'v_mov_b32 v{t+5}, 0x0c0c0302'); A(f'v_mov_b32 v{t+4}, 0x03020c0c'); A(f'v_cndmask_b32 v{t+5}, v{t+5}, v{t+4}, vcc')
        for r in range(4):
            A(f'v_cmp_eq_u32 vcc, {r}, v{t+1}')
            A(f'v_cndmask_b32 v{SEL+r}, v{t+2}, v{t+3}, vcc')
            A(f'v_cndmask_b32 v{SEL+4+r}, v{t+2}, v{t+5}, vcc')
    def hdr_load(dst, va, line_sreg):
        A(f'v_and_b32 v{va}, 7, v1'); A(f'v_lshlrev_b32 v{va}, 4, v{va}')
        A(f's_lshl_b32 s39, {line_sreg}, 7'); A(f's_add_u32 s39, s39, {W_HD}')
        A(f'buffer_load_dwordx4 v[{dst}:{dst+3}], v{va}, s[48:51], s39 offen sc1')
    def hdr_check(dst):
        A('s_getreg_b32 s39, hwreg(HW_REG_XCC_ID, 0, 4)')
        A(f'v_xor_b32 v{dst}, s39, v{dst}'); A(f'v_xor_b32 v{dst+1}, s74, v{dst+1}'); A(f'v_xor_b32 v{dst+3}, s75, v{dst+3}')
        A(f'v_or3_b32 v{dst}, v{dst}, v{dst+1}, v{dst+3}')
        A(f'v_cmp_ne_u32 vcc, 0, v{dst}')
        A('s_nop 1')
        A('s_cmp_eq_u64 vcc, 0')
    def load_tag():
        A(f's_load_dwordx2 s[74:75], s[32:33], {W_EP}')
    def make_tag():
        A('s_add_u32 s74, s74, 0x7f4a7c15'); A('s_addc_u32 s75, s75, 0x9e3779b9')
        A('s_and_b32 s70, s74, 0xfff'); A('s_bfe_u32 s71, s74, 0xc000c')
        A('s_lshr_b64 s[72:73], s[74:75], 24'); A('s_bfe_u32 s73, s72, 0xc000c'); A('s_and_b32 s72, s72, 0xfff')

    A(f'{NAME}_kernel:')
    def rest_args():
        if ka:
            A('s_load_dwordx8 s[16:23], s[0:1], 32'); A('s_load_dwordx8 s[24:31], s[0:1], 64'); A('s_load_dwordx2 s[32:33], s[0:1], 96')
    if ka:
        A('s_load_dwordx8 s[8:15], s[0:1], 0')
    else:
        A('s_load_dwordx16 s[8:23], s[0:1], 0')
        A('s_load_dwordx8 s[24:31], s[0:1], 64')
        A('s_load_dwordx2 s[32:33], s[0:1], 96')
    stamp(0)
    A('v_readfirstlane_b32 s3, v0')
    A('s_lshr_b32 s35, s2, 6')
    A('s_cmp_ge_u32 s35, 4'); A('s_cbranch_scc1 L_end')
    A('s_and_b32 s34, s2, 7'); A('s_lshl_b32 s34, s34, 2'); A('s_add_u32 s34, s34, s35')
    A('s_and_b32 s39, s2, 32'); A('s_add_u32 s35, s39, s34')
    A('s_lshr_b32 s4, s2, 3'); A('s_and_b32 s37, s4, 3')
    A('s_lshr_b32 s3, s3, 6')
    A('v_and_b32 v1, 63, v0')
    A('s_mov_b32 s43, 0x20000')
    def common2():
        A('s_and_b32 s4, s4, 7'); A('s_lshr_b32 s36, s4, 2')
        A(f's_mov_b32 s50, {W_SIZE}'); A('s_mov_b32 s51, 0x20000')
        A('v_bfe_u32 v2, v0, 4, 2')
        A('v_and_b32 v3, 15, v0')
    A('s_sub_u32 s38, s3, 3'); A('s_cbranch_scc1 L_helper')

    Q, MASK, ACC, A0, A1 = 4, 8, 12, 16, 20
    P0, T01, T23, U, U2, M, Lr, MN, E1, E2, PP, VO, LANE = 24, 28, 29, 30, 31, 32, 33, 34, 35, 36, 37, 38, 39
    S, RING, TG, WO, SSEL, VWO, VY, VL, ONE = 40, 72, 200, 208, 240, 248, 249, 250, 251
    A('s_lshl_b32 s56, s35, 2'); A('s_add_u32 s56, s56, s37'); A('s_lshl_b32 s56, s56, 7'); A('s_add_u32 s56, s56, s38'); A('s_lshl_b32 s56, s56, 12')
    A('s_mov_b32 s42, 0x7d000')
    A('v_lshlrev_b32 v1, 4, v1')
    A('s_and_b32 s57, s2, 31'); A('s_lshl_b32 s57, s57, 14')
    A('s_mov_b32 s58, 0x7ffff')
    A('s_waitcnt lgkmcnt(0)')
    A('s_add_u32 s40, s10, s56'); A('s_addc_u32 s41, s11, 0')
    first = [True]
    def issue(j, wait, dyn=False):
        i = j & 3
        if i == 0:
            if first[0]: first[0] = False
            else: A('s_addk_i32 s57, 0x4000'); A('s_and_b32 s57, s57, s58')
            if dyn and lead: A(f's_cmp_lt_i32 s98, {-lead*16}')
        if wait is not None:
            if dyn:
                n = uid()
                A(f's_waitcnt vmcnt({Dhi-1})'); A(f's_cbranch_vccnz L_dw{n}'); A(f's_waitcnt vmcnt({wait})')
                if lead: A(f's_cbranch_scc0 L_dw{n}'); A(f's_waitcnt vmcnt({Dlo-1})')
                A(f'L_dw{n}:')
            else: A(f's_waitcnt vmcnt({wait})')
        r = RING + 4 * j
        A(f'buffer_load_dwordx4 v[{r}:{r+3}], v1, s[40:43], s57 offen offset:{i*1024} {kvflags}')
    F = D00 if D00 else D0
    seq = []
    def kwait(d):
        n = 0; k = 0
        for x in reversed(seq):
            if x == 'k':
                if k == d - 1: break
                k += 1
            n += 1
        return n
    for j in range(32):
        d = D0 if j < D0n else D
        if j < D1n: d = D1
        if j < F: issue(j, None)
        elif j == F: issue(j, kwait(F))
        else: issue(j, kwait(d))
        seq.append('k')
        if pst and j in (0, F, 12, 22): A(f's_memrealtime s[{76+2*{0:1, F:5, 12:6, 22:7}[j]}:{77+2*{0:1, F:5, 12:6, 22:7}[j]}]')
        if not wlflags and j >= wo0 and (j - wo0) % wos == 0 and (j - wo0) // wos < 8:
            i = (j - wo0) // wos
            A(f's_movk_i32 s39, {i*(640 if wdum & 2 else 1280)}')
            A(f'buffer_load_dwordx4 v[{WO+4*i}:{WO+4*i+3}], v{VWO}, s[52:55], s39 offen {woflags}')
            seq.append('w')
        if j == F - 1:
            rest_args()
            common2()
            A(f'v_and_b32 v{LANE}, 63, v0')
            A('s_add_u32 s44, s12, s56'); A('s_addc_u32 s45, s13, 0')
            A('s_lshl_b32 s39, s34, 2'); A('s_add_u32 s39, s39, s38'); A(f's_mul_i32 s39, s39, {32*1280}'); A('s_mul_i32 s5, s4, 160'); A('s_add_u32 s39, s39, s5')
            A(f'v_mul_u32_u24 v16, {8*1280}, v2'); A('v_lshl_add_u32 v16, v3, 4, v16')
            A('v_mov_b32 v18, 0x40000000'); A('v_cmp_gt_u32 vcc, 10, v3'); A(f'v_cndmask_b32 v{VWO}, v18, v16, vcc')
            A('s_waitcnt lgkmcnt(0)')
            load_tag()
            A('s_add_u32 s52, s16, s39'); A('s_addc_u32 s53, s17, 0'); A(f's_sub_u32 s54, {4096*1280}, s39'); A('s_mov_b32 s55, 0x20000')
            A('s_mov_b32 s48, s32'); A('s_mov_b32 s49, s33')
        if j == bj: A('s_barrier')
        if j == 10:
            A('v_lshrrev_b32 v16, 1, v2'); A('v_mul_u32_u24 v16, 320, v16'); A('v_lshl_add_u32 v16, v3, 5, v16')
            A('v_and_b32 v17, 1, v2'); A('v_lshl_add_u32 v16, v17, 4, v16'); A(f'v_cndmask_b32 v{VY}, v18, v16, vcc')
            A('s_lshl_b32 s99, s34, 3'); A('s_add_u32 s99, s99, s4'); A('s_mul_i32 s99, s99, 640'); A(f's_add_u32 s99, s99, {W_Y}')
            A('v_lshlrev_b32 v16, 8, v3'); A('v_lshl_add_u32 v16, v17, 6, v16')
            A('v_lshrrev_b32 v17, 1, v2'); A(f'v_lshl_add_u32 v{VO}, v17, 24, v16')
            A('s_lshl_b32 s64, s34, 12'); A(f's_add_u32 s64, s64, {W_O}')
            A('s_lshl_b32 s66, s36, 7'); A('s_lshl_b32 s39, s37, 4'); A('s_add_u32 s66, s66, s39'); A('s_add_u32 s66, s66, s64')
            A('s_lshl_b32 s39, s38, 10'); A('s_add_u32 s47, s64, s39')
            A(f'v_add_u32 v{VL}, s39, v1')
            A(f'v_mov_b32 v{ONE}, 1')
        if j == 12:
            selectors(SSEL, 24)
        if j == 14:
            A('v_and_b32 v16, 1, v3'); A('v_lshlrev_b32 v16, 4, v16'); A('v_mov_b32 v17, 0xffff'); A('v_lshlrev_b32 v16, v16, v17')
            A('v_lshrrev_b32 v17, 1, v3')
            for r in range(4):
                A(f'v_cmp_eq_u32 vcc, {r}, v17'); A(f'v_cndmask_b32 v{MASK+r}, 0, v16, vcc')
            A('v_lshlrev_b32 v3, 4, v3')
            A(f'v_mov_b32 v2, {L_PROG}')
            A(f'v_mov_b32 v{M}, 0xff7fffff'); A(f'v_mov_b32 v{Lr}, 0')
            for r in range(4): A(f'v_mov_b32 v{ACC+r}, 0')
            A(f's_mov_b32 s61, {f2u(1.4426950408889634 * 128 ** -0.5):#x}')
            if mimic: A(f's_mov_b32 s62, {f2u(128 ** -0.5):#x}'); A(f's_mov_b32 s63, {f2u(1.4426950408889634):#x}')
        if j == 16:
            A('s_waitcnt lgkmcnt(0)')
            make_tag()
            tagregs(TG)
    wait_q(slp=1)
    stamp(2)
    A(f'ds_read_b128 v[{Q}:{Q+3}], v3 offset:{L_Q}')
    A('s_mov_b32 s59, 0')
    A('s_waitcnt lgkmcnt(0)')
    A('L_kloop:')
    A('s_cmp_eq_u32 s59, 3')
    A('s_cselect_b32 s40, s44, s40'); A('s_cselect_b32 s41, s45, s41')
    A('s_add_u32 s59, s59, 1')
    A(f'v_mov_b32 v{PP}, s59')
    A(f'ds_max_u32 v2, v{PP}')
    for t in range(8):
        R = lambda i: RING + 4 * (4 * t + i)
        for i in range(4): A(f'v_dot2_f32_bf16 v{P0+i}, v{R(i)}, v{Q}, 0')
        for r in range(1, 4):
            for i in range(4): A(f'v_dot2c_f32_bf16 v{P0+i}, v{R(i)+r}, v{Q+r}')
        issue(4 * t + 0, D - 1)
        A(f'v_add_f32_dpp v{T01}, v{P0}, v{P0} row_ror:8 row_mask:0xf bank_mask:0xf')
        A(f'v_add_f32_dpp v{T23}, v{P0+2}, v{P0+2} row_ror:8 row_mask:0xf bank_mask:0xf')
        A(f'v_add_f32_dpp v{T01}, v{P0+1}, v{P0+1} row_ror:8 row_mask:0xf bank_mask:0xc')
        A(f'v_add_f32_dpp v{T23}, v{P0+3}, v{P0+3} row_ror:8 row_mask:0xf bank_mask:0xc')
        A(f'v_mov_b32 v{S+t}, v{S+8+t}')
        A(f'v_add_f32_dpp v{U}, v{T01}, v{T01} row_half_mirror row_mask:0xf bank_mask:0xf')
        A(f'v_add_f32_dpp v{U}, v{T23}, v{T23} row_half_mirror row_mask:0xf bank_mask:0xa')
        A(f'v_mov_b32 v{S+8+t}, v{S+16+t}')
        A(f'v_mov_b32 v{S+16+t}, v{S+24+t}')
        A(f'v_add_f32_dpp v{U2}, v{U}, v{U} quad_perm:[1,0,3,2] row_mask:0xf bank_mask:0xf')
        issue(4 * t + 1, D - 1)
        A(f'v_add_f32_dpp v{U}, v{U2}, v{U2} quad_perm:[2,3,0,1] row_mask:0xf bank_mask:0xf')
        if mimic:
            bf16r(U, U)
            A(f'v_mul_f32 v{U}, s62, v{U}')
            bf16r(U, U)
            A(f'v_mul_f32 v{S+24+t}, s63, v{U}')
        else:
            A(f'v_mul_f32 v{S+24+t}, s61, v{U}')
        A(f'v_max_f32 v{MN}, v{M}, v{S+24+t}')
        A(f'v_sub_f32 v{E1}, v{M}, v{MN}')
        A(f'v_sub_f32 v{E2}, v{S+24+t}, v{MN}')
        A(f'v_exp_f32 v{E1}, v{E1}')
        A(f'v_exp_f32 v{E2}, v{E2}')
        A(f'v_mov_b32 v{M}, v{MN}')
        A(f'v_fma_f32 v{Lr}, v{Lr}, v{E1}, v{E2}')
        issue(4 * t + 2, D - 1)
        issue(4 * t + 3, D - 1)
    A('s_cmp_lt_u32 s59, 4'); A('s_cbranch_scc1 L_kloop')
    stamp(3)
    A(f'v_max_f32_dpp v{E1}, v{M}, v{M} row_ror:4 row_mask:0xf bank_mask:0xf')
    A(f'v_max_f32_dpp v{E2}, v{E1}, v{E1} row_ror:8 row_mask:0xf bank_mask:0xf')
    A(f'v_max_f32_dpp v{E2}, v{E2}, v{E2} row_bcast:15 row_mask:0xa bank_mask:0xf')
    A(f'v_max_f32_dpp v{E2}, v{E2}, v{E2} row_bcast:31 row_mask:0xc bank_mask:0xf')
    A(f'v_readlane_b32 s60, v{E2}, 63')
    A(f'v_subrev_f32 v{E1}, s60, v{M}')
    A(f'v_exp_f32 v{E1}, v{E1}')
    A(f'v_mul_f32 v{Lr}, v{Lr}, v{E1}')
    A(f'v_add_f32_dpp v{E1}, v{Lr}, v{Lr} row_ror:4 row_mask:0xf bank_mask:0xf')
    A(f'v_add_f32_dpp v{E2}, v{E1}, v{E1} row_ror:8 row_mask:0xf bank_mask:0xf')
    A(f'v_add_f32_dpp v{E2}, v{E2}, v{E2} row_bcast:15 row_mask:0xa bank_mask:0xf')
    A(f'v_add_f32_dpp v{E2}, v{E2}, v{E2} row_bcast:31 row_mask:0xc bank_mask:0xf')
    A(f'v_readlane_b32 s64, v{E2}, 63')
    A(f'v_mov_b32 v{P0}, s60'); A(f'v_mov_b32 v{P0+1}, s74')
    A(f'v_lshlrev_b32 v{U}, 24, v{LANE}')
    A(f'v_mov_b32 v{P0+2}, s64'); A(f'v_mov_b32 v{P0+3}, s75')
    if mlwg:
        A('s_lshl_b32 s39, s38, 4'); A(f'v_mov_b32 v{U}, s39')
        A('s_mov_b64 exec, 1')
        A(f'ds_write_b128 v{U}, v[{P0}:{P0+3}] offset:{L_ML}')
        A(f'ds_add_u32 v2, v{ONE} offset:{L_CNT0 - L_PROG}')
        A('s_mov_b64 exec, -1')
    else:
        A(f'buffer_store_dwordx4 v[{P0}:{P0+3}], v{U}, s[48:51], s65 offen sc1')
    A('s_mov_b64 vcc, 0'); A('s_mov_b32 s7, 0'); A('s_mov_b32 s98, 0')
    CT = M
    A(f'ds_read_b128 v[{CT}:{CT+3}], v2')
    if ctl: A('s_memrealtime s[96:97]')
    A('L_vloop:')
    A('s_add_u32 s59, s59, 1')
    A(f'v_mov_b32 v{PP}, s59')
    A(f'ds_max_u32 v2, v{PP}')
    A('s_cmp_lg_u32 s59, 8'); A('s_cbranch_scc1 L_now')
    wl = [int(c) for c in wlflags] if wlflags else [0] * 8
    assert not wlflags or sum(wl) == 8
    wn = [0]
    def wo_late(n):
        for _ in range(n):
            i = wn[0]; wn[0] += 1
            A(f's_movk_i32 s39, {i*1280}')
            A(f'buffer_load_dwordx4 v[{WO+4*i}:{WO+4*i+3}], v{VWO}, s[52:55], s39 offen {woflags}')
    wo_late(wl[0])
    wait_lds(L_FAST, 1, va=P0, vt=P0 + 1, slp=1)
    A('s_mov_b32 s46, s39'); A('s_lshl_b32 s39, s38, 2'); A(f'v_mov_b32 v{P0}, s39')
    A(f'ds_read_b32 v{E2}, v{P0} offset:{L_W4}')
    A('L_now:')
    beta = [0, 2, 1, 3]
    EX, PK = T01, T23
    for t in range(8):
        R = lambda i: RING + 4 * (4 * t + i)
        A(f'v_subrev_f32 v{EX}, s60, v{S+t}')
        A(f'v_exp_f32 v{EX}, v{EX}')
        A(f'v_mov_b32 v{S+t}, v{S+8+t}')
        A(f'v_cvt_pk_bf16_f32 v{PK}, v{EX}, v{EX}')
        A(f'v_mov_b32 v{S+8+t}, v{S+16+t}')
        A(f'v_mov_b32 v{S+16+t}, v{S+24+t}')
        def build(i):
            dst = A0 if i % 2 == 0 else A1
            for r in range(4):
                n = (2 * r - 4 * beta[i]) % 16
                if n == 0: A(f'v_and_b32 v{dst+r}, v{PK}, v{MASK+r}')
                else: A(f'v_and_b32_dpp v{dst+r}, v{PK}, v{MASK+r} row_ror:{n} row_mask:0xf bank_mask:0xf')
        def mf(i):
            src = A0 if i % 2 == 0 else A1
            A(f'v_mfma_f32_16x16x32_bf16 v[{ACC}:{ACC+3}], v[{src}:{src+3}], v[{R(i)}:{R(i)+3}], v[{ACC}:{ACC+3}]')
        build(0); build(1); mf(0); build(2); mf(1); build(3); mf(2); mf(3)
        A('s_cmp_eq_u32 s59, 8')
        nextwait = 28 - 4 * (t + 1)
        needw = t < 7 and nextwait < (Dhi if ctl else D)
        if t < 7 and (needw or wl[t + 1]):
            A(f's_cbranch_scc0 L_vi{t}')
            wo_late(wl[t + 1])
            if needw: A(f's_waitcnt vmcnt({nextwait + wn[0]})')
            A(f's_branch L_vc{t}')
            A(f'L_vi{t}:')
        else:
            A(f's_cbranch_scc1 L_vc{t}')
        issue(4 * t + 0, D - 1, dyn=ctl)
        if ctl:
            A('s_waitcnt lgkmcnt(0)')
            A(f'v_readfirstlane_b32 s5, v{CT+2}'); A(f'v_readfirstlane_b32 s6, v{CT+3}')
            A('s_lshl_b32 s98, s96, 4'); A('s_sub_u32 s98, s98, s5'); A('s_mul_i32 s5, s6, s7'); A('s_sub_u32 s98, s98, s5')
            A('s_add_u32 s7, s7, 1')
            A('s_cmp_lg_u32 s6, 0'); A('s_cselect_b32 s98, s98, 0')
            A('s_cmp_gt_i32 s98, 0'); A('s_cselect_b64 vcc, -1, 0')
            if lead: A(f's_cmp_lt_i32 s98, {-lead*16}')
        for i in range(1, 4): issue(4 * t + i, D - 1, dyn=ctl)
        if ctl:
            A(f'ds_read_b128 v[{CT}:{CT+3}], v2')
        if ctl: A('s_memrealtime s[96:97]')
        if t < 7: A(f'L_vc{t}:')
    A('s_branch L_vloop')
    A('L_vc7:')
    stamp(4)
    A('s_waitcnt lgkmcnt(0)')
    A('s_nop 4')
    G0 = RING
    def combine(src, lbase, lcnt, skip):
        A(f'ds_write_b128 v{VL}, v[{src}:{src+3}] offset:{lbase}')
        A('s_mov_b64 exec, 1')
        A(f'ds_add_rtn_u32 v{PP}, v2, v{ONE} offset:{lcnt - L_PROG}')
        A('s_mov_b64 exec, -1')
        for k in range(4): A(f'ds_read_b128 v[{G0+4*k}:{G0+4*k+3}], v1 offset:{lbase + 1024*k}')
        A('s_waitcnt lgkmcnt(4)')
        A(f'v_readfirstlane_b32 s39, v{PP}')
        A('s_cmp_lg_u32 s39, 3'); A(f's_cbranch_scc1 {skip}')
        A('s_waitcnt lgkmcnt(2)')
        for r in range(4): A(f'v_add_f32 v{G0+r}, v{G0+r}, v{G0+4+r}')
        A('s_waitcnt lgkmcnt(0)')
        for r in range(4): A(f'v_add_f32 v{G0+8+r}, v{G0+8+r}, v{G0+12+r}')
        for r in range(4): A(f'v_add_f32 v{G0+r}, v{G0+r}, v{G0+8+r}')
        entag(G0, G0, TG)
    for r in range(4): A(f'v_mul_f32 v{A0+r}, v{E2}, v{ACC+r}')
    combine(A0, L_OP, L_CNT1, 'L_owait')
    A('s_cmp_eq_u32 s46, 1'); A('s_cbranch_scc1 L_ofast')
    A(f'buffer_store_dwordx4 v[{G0}:{G0+3}], v{VO}, s[48:51], s66 offen sc1')
    A('s_branch L_opoll')
    A('L_ofast:')
    A(f'buffer_store_dwordx4 v[{G0}:{G0+3}], v{VO}, s[48:51], s66 offen')
    A('s_branch L_opoll')
    A('L_owait:')
    wait_lds(L_CNT1, 4, va=P0, vt=P0 + 1, slp=0)
    A('L_opoll:')
    if not pst: stamp(1)
    X = G0 + 16
    poll([f'buffer_load_dwordx4 v[{X}:{X+3}], v1, s[48:51], s47 offen {oldflags}'], [X], P0, 0)
    if not pst: stamp(5)
    for r in range(4): A(f'v_add_f32_dpp v{X+4+r}, v{X+r}, v{X+r} quad_perm:[1,0,3,2] {DPPF}')
    for r in range(4): A(f'v_add_f32_dpp v{X+r}, v{X+4+r}, v{X+4+r} quad_perm:[2,3,0,1] {DPPF}')
    UU = X + 8
    A(f'v_cvt_pk_bf16_f32 v{UU}, v{X}, v{X+1}'); A(f'v_cvt_pk_bf16_f32 v{UU+1}, v{X+2}, v{X+3}')
    A(f'v_cvt_pk_bf16_f32 v{UU+2}, v{X}, v{X+1}'); A(f'v_cvt_pk_bf16_f32 v{UU+3}, v{X+2}, v{X+3}')
    A(f'v_cvt_pk_bf16_f32 v{UU+4}, v{X}, v{X+1}'); A(f'v_cvt_pk_bf16_f32 v{UU+5}, v{X+2}, v{X+3}')
    A(f'v_mov_b32_dpp v{UU}, v{UU+4} row_half_mirror row_mask:0xf bank_mask:0xa')
    A(f'v_mov_b32_dpp v{UU+1}, v{UU+5} row_half_mirror row_mask:0xf bank_mask:0xa')
    A(f'v_mov_b32_dpp v{UU+2}, v{UU+4} row_half_mirror row_mask:0xf bank_mask:0x5')
    A(f'v_mov_b32_dpp v{UU+3}, v{UU+5} row_half_mirror row_mask:0xf bank_mask:0x5')
    def spb(i):
        dst = A0 if i % 2 == 0 else A1
        for r in range(4):
            A(f'v_perm_b32 v{dst+r}, v{UU+(i>>1)}, v{UU+(i>>1)}, v{SSEL+4*(i&1)+r}')
    spb(0)
    for i in range(8):
        if i < 7: spb(i + 1)
        src = A0 if i % 2 == 0 else A1
        c = '0' if i == 0 else f'v[{ACC}:{ACC+3}]'
        A(f'v_mfma_f32_16x16x32_bf16 v[{ACC}:{ACC+3}], v[{src}:{src+3}], v[{WO+4*i}:{WO+4*i+3}], {c}')
    combine(ACC, L_YP, L_CNT2, 'L_end')
    A(f'buffer_store_dwordx4 v[{G0}:{G0+3}], v{VY}, s[48:51], s99 offen {ystflags}')
    if not pst: stamp(6)
    write_stamps(0)
    A('s_endpgm')

    SEL, HACC, HA0, HA1, XN, XS, XF, VW, VST, BUF, ACC2 = 4, 12, 32, 36, 40, 50, 60, 92, 93, 96, 176
    A('L_helper:')
    common2()
    A('s_cmp_eq_u32 s3, 0'); A('s_cbranch_scc1 L_hq')
    rest_args()
    A('s_cmp_eq_u32 s3, 2'); A('s_cbranch_scc1 L_hp')
    A('s_and_b32 s56, s2, 7'); A('s_lshr_b32 s39, s2, 3'); A('s_and_b32 s39, s39, 8'); A('s_add_u32 s56, s56, s39')
    A('s_cmp_ge_u32 s56, 14'); A('s_cbranch_scc1 L_end')
    A('s_cmp_ge_u32 s2, 128'); A('s_cbranch_scc1 L_hm2')
    A('s_mov_b32 s5, s4')
    A('s_movk_i32 s6, 3456')
    A('s_lshl_b32 s59, s56, 3'); A('s_add_u32 s59, s59, s5'); A('s_lshl_b32 s59, s59, 10'); A(f's_add_u32 s59, s59, {W_H}')
    A('s_lshl_b32 s56, s56, 8'); A(f's_mul_i32 s57, s5, {80*3456}'); A('s_add_u32 s56, s56, s57')
    A(f's_sub_u32 s42, {640*3456}, s56')
    A('s_waitcnt lgkmcnt(0)')
    A('s_add_u32 s40, s20, s56'); A('s_addc_u32 s41, s21, 0')
    A('s_branch L_g1')
    A('L_hq:')
    A('s_mov_b32 s5, s4')
    A('s_movk_i32 s6, 8192')
    A('s_lshl_b32 s59, s34, 13'); A('s_lshl_b32 s39, s5, 10'); A('s_add_u32 s59, s59, s39'); A(f's_add_u32 s59, s59, {W_QP}')
    A('s_lshl_b32 s56, s34, 8'); A(f's_mul_i32 s57, s5, {80*8192}'); A('s_add_u32 s56, s56, s57')
    A(f's_sub_u32 s42, {640*8192}, s56')
    A('s_waitcnt lgkmcnt(0)')
    A('s_add_u32 s40, s14, s56'); A('s_addc_u32 s41, s15, 0')
    rest_args()
    A('L_g1:')
    A('s_mov_b32 s44, s8'); A('s_mov_b32 s45, s9'); A('s_mov_b32 s46, 2560'); A('s_mov_b32 s47, 0x20000')
    A('v_bfe_u32 v12, v1, 3, 1'); A('v_mul_u32_u24 v12, 1280, v12')
    A('v_and_b32 v13, 7, v1'); A('v_lshl_add_u32 v13, v2, 3, v13'); A('v_lshl_add_u32 v13, v13, 3, v12')
    for j in range(5):
        A(f'buffer_load_dwordx2 v[{XS+2*j}:{XS+2*j+1}], v13, s[44:47], 0 offen offset:{j*256}')
    A('v_mul_u32_u24 v14, 40, v2'); A('v_add_u32 v14, v14, v12'); A('s_mul_i32 s39, s5, 160')
    for j in range(5):
        A(f'buffer_load_dwordx2 v[{XN+2*j}:{XN+2*j+1}], v14, s[44:47], s39 offen offset:{j*8}')
    A('s_mul_i32 s39, s6, 20'); A('v_mul_lo_u32 v12, v2, s39'); A(f'v_lshl_add_u32 v{VW}, v3, 4, v12')
    if wdum & 1:
        A(f'v_lshlrev_b32 v{VW}, 4, v1'); A('s_movk_i32 s6, 1024')
        A('s_cmp_eq_u32 s3, 0'); A('s_cselect_b32 s40, s14, s20'); A('s_cselect_b32 s41, s15, s21')
        A('s_mul_i32 s57, s2, 19456'); A('s_add_u32 s40, s40, s57'); A('s_addc_u32 s41, s41, 0'); A('s_mov_b32 s42, 20480')
    A('s_mov_b32 s57, 0')
    A('s_cmp_eq_u32 s3, 0'); A('s_cbranch_scc1 L_nb0'); A('s_barrier'); A('L_nb0:')
    for i in range(20):
        r = BUF + 4 * i
        if i % Dm == 0:
            A('s_cmp_eq_u32 s3, 0'); A(f's_cbranch_scc1 L_nt{i}'); A(f's_waitcnt vmcnt({0 if i == 0 else 1})'); A(f'L_nt{i}:')
        A(f'buffer_load_dwordx4 v[{r}:{r+3}], v{VW}, s[40:43], s57 offen {wflags}')
        if i < 19: A('s_add_u32 s57, s57, s6')
    A('s_cmp_lg_u32 s3, 0'); A('s_cbranch_scc1 L_nb1'); A('s_barrier'); A('L_nb1:')
    A('s_waitcnt lgkmcnt(0)')
    load_tag()
    A('s_mov_b32 s48, s32'); A('s_mov_b32 s49, s33')
    A('v_lshrrev_b32 v12, 1, v2'); A('v_lshlrev_b32 v12, 9, v12'); A('v_lshl_add_u32 v12, v3, 5, v12')
    A('v_and_b32 v13, 1, v2'); A(f'v_lshl_add_u32 v{VST}, v13, 4, v12')
    selectors()
    A('v_mov_b32 v20, 0x3f803f80')
    A('s_waitcnt vmcnt(25)')
    if loc:
        A('s_lshl_b32 s60, s3, 1'); A('s_add_u32 s60, s60, s34')
        hdr_load(24, 28, 's60')
    A(f'v_dot2_f32_bf16 v12, v{XS}, v20, 0'); A(f'v_dot2_f32_bf16 v13, v{XS+1}, v20, 0')
    for j in range(2, 10, 2):
        A(f'v_dot2_f32_bf16 v12, v{XS+j}, v20, v12'); A(f'v_dot2_f32_bf16 v13, v{XS+j+1}, v20, v13')
    for j in range(10):
        A(f'v_lshlrev_b32 v{XF+2*j}, 16, v{XS+j}')
        A(f'v_and_b32 v{XF+2*j+1}, 0xffff0000, v{XS+j}')
    A('v_add_f32 v12, v12, v13')
    red8('v_add_f32', [12], [13]); rows_add(12, 13)
    A(f's_mov_b32 s39, {f2u(1.0/640):#x}')
    A('v_mul_f32 v12, s39, v12')
    A('v_mov_b32 v14, 0'); A('v_mov_b32 v15, 0')
    for j in range(0, 20, 2):
        A(f'v_sub_f32 v22, v{XF+j}, v12'); A(f'v_sub_f32 v23, v{XF+j+1}, v12')
        A('v_fmac_f32 v14, v22, v22'); A('v_fmac_f32 v15, v23, v23')
    A('v_add_f32 v14, v14, v15')
    red8('v_add_f32', [14], [15]); rows_add(14, 15)
    A('v_mul_f32 v14, s39, v14')
    bf16r(12, 12)
    bf16r(14, 14)
    A(f'v_add_f32 v14, {f2u(1e-5):#x}, v14')
    bf16r(14, 14)
    A('v_sqrt_f32 v14, v14')
    bf16r(14, 14)
    A('v_rcp_f32 v14, v14')
    A(f's_waitcnt vmcnt({21 if loc else 20})')
    for j in range(10):
        A(f'v_lshlrev_b32 v{XF+2*j}, 16, v{XN+j}'); A(f'v_and_b32 v{XF+2*j+1}, 0xffff0000, v{XN+j}')
        A(f'v_sub_f32 v{XF+2*j}, v{XF+2*j}, v12'); A(f'v_sub_f32 v{XF+2*j+1}, v{XF+2*j+1}, v12')
        A(f'v_cvt_pk_bf16_f32 v{XN+j}, v{XF+2*j}, v{XF+2*j+1}')
    for j in range(10):
        A(f'v_lshlrev_b32 v{XF+2*j}, 16, v{XN+j}'); A(f'v_and_b32 v{XF+2*j+1}, 0xffff0000, v{XN+j}')
        A(f'v_mul_f32 v{XF+2*j}, v14, v{XF+2*j}'); A(f'v_mul_f32 v{XF+2*j+1}, v14, v{XF+2*j+1}')
        A(f'v_cvt_pk_bf16_f32 v{XN+j}, v{XF+2*j}, v{XF+2*j+1}')
    A('s_waitcnt lgkmcnt(0)')
    make_tag()
    stamp(1)
    tagregs(TG)
    def pb(i, src):
        dst = HA0 if i % 2 == 0 else HA1
        for r in range(4):
            A(f'v_perm_b32 v{dst+r}, v{src+(i>>1)}, v{src+(i>>1)}, v{SEL+4*(i&1)+r}')
    pb(0, XN)
    for i in range(20):
        if i < 19: pb(i + 1, XN)
        if i % 4 == 0: A(f's_waitcnt vmcnt({19 - (i + 3) + (1 if loc else 0)})')
        src = HA0 if i % 2 == 0 else HA1
        c = '0' if i == 0 else f'v[{HACC}:{HACC+3}]'
        A(f'v_mfma_f32_16x16x32_bf16 v[{HACC}:{HACC+3}], v[{src}:{src+3}], v[{BUF+4*i}:{BUF+4*i+3}], {c}')
    entag(16, HACC, TG, rnd=True)
    if noex & 1:
        A('s_cmp_eq_u32 s3, 0'); A('s_cbranch_scc1 L_qd')
    if noex & 2:
        A('s_cmp_lg_u32 s3, 0'); A('s_cbranch_scc1 L_end')
    if loc:
        A('s_waitcnt vmcnt(0)')
        hdr_check(24)
        A('s_cselect_b32 s62, 1, 0')
        A('s_cbranch_scc0 L_g1s')
        A(f'buffer_store_dwordx4 v[16:19], v{VST}, s[48:51], s59 offen')
        A('s_branch L_g1t')
        A('L_g1s:')
    A(f'buffer_store_dwordx4 v[16:19], v{VST}, s[48:51], s59 offen sc1')
    A('L_g1t:')
    stamp(2)
    A('s_cmp_eq_u32 s3, 0'); A('s_cbranch_scc1 L_hq2')
    write_stamps(1)
    A('s_endpgm')
    A('L_hq2:')
    A('v_and_b32 v24, 31, v1'); A('v_lshlrev_b32 v24, 4, v24'); A('v_lshrrev_b32 v25, 5, v1'); A('v_lshl_add_u32 v24, v25, 10, v24')
    A('s_lshl_b32 s56, s34, 13'); A('s_lshl_b32 s39, s36, 9'); A('s_add_u32 s56, s56, s39'); A(f's_add_u32 s56, s56, {W_QP}'); A('s_add_u32 s57, s56, 4096')
    if loc and qsl >= 0:
        A('s_cmp_eq_u32 s62, 1'); A('s_cbranch_scc0 L_qa')
        if qsl: A(f's_sleep {qsl}')
        A('s_branch L_qb')
        A('L_qa:')
    A('s_waitcnt vmcnt(0)')
    A('L_qb:')
    stamp(3)
    A(f's_mov_b32 s67, {SPIN}')
    A('s_movk_i32 s62, 0xf')
    A('L_qw:')
    for j in range(4):
        A(f's_bitcmp1_b32 s62, {j}'); A(f's_cbranch_scc0 L_qs{j}')
        A(f'buffer_load_dwordx4 v[{XF+16+4*j}:{XF+16+4*j+3}], v24, s[48:51], s{56 + (j >> 1)} offen offset:{(j&1)*2048} sc1')
        A(f'L_qs{j}:')
    A('s_waitcnt vmcnt(0)')
    A('s_mov_b32 s62, 0')
    for j in range(4):
        b = XF + 4 * j
        for r in range(4): A(f'v_xor_b32 v{b+r}, v{TG+r}, v{b+16+r}')
        A(f'v_or3_b32 v25, v{b}, v{b+1}, v{b+2}'); A(f'v_or_b32 v25, v25, v{b+3}'); A(f'v_and_b32 v25, v{TG+4}, v25')
        A('v_cmp_ne_u32 vcc, 0, v25')
        A('s_nop 0')
        A('s_cmp_lg_u64 vcc, 0'); A(f's_cselect_b32 s39, {1 << j}, 0'); A('s_or_b32 s62, s62, s39')
    A('s_cbranch_scc0 L_qd')
    A('s_sub_u32 s67, s67, 1'); A('s_cmp_lg_u32 s67, 0'); A('s_cbranch_scc1 L_qw')
    A('L_qd:')
    for r in range(4):
        A(f'v_add_f32 v{XF+r}, v{XF+r}, v{XF+4+r}'); A(f'v_add_f32 v{XF+8+r}, v{XF+8+r}, v{XF+12+r}')
    for r in range(4): A(f'v_add_f32 v{XF+r}, v{XF+r}, v{XF+8+r}')
    A(f'v_permlane32_swap_b32 v{XF}, v{XF+2}'); A(f'v_permlane32_swap_b32 v{XF+1}, v{XF+3}')
    A(f'v_add_f32 v{XF}, v{XF}, v{XF+2}'); A(f'v_add_f32 v{XF+1}, v{XF+1}, v{XF+3}')
    A(f'v_cvt_pk_bf16_f32 v{XF}, v{XF}, v{XF+1}')
    A('v_and_b32 v22, 31, v1'); A('v_lshlrev_b32 v22, 3, v22'); A('v_lshrrev_b32 v23, 5, v1'); A('v_lshl_add_u32 v22, v23, 2, v22')
    A(f'ds_write_b32 v22, v{XF} offset:{L_Q}')
    A('v_mov_b32 v28, 1'); A(f'v_mov_b32 v26, {L_QRDY}')
    A('s_waitcnt lgkmcnt(0)')
    A('ds_write_b32 v26, v28')
    stamp(4)
    A(f's_sub_u32 s61, s2, {C0}')
    A('s_cmp_lt_u32 s61, 80'); A('s_cbranch_scc1 L_gate')
    write_stamps(1)
    A('s_endpgm')
    A('L_gate:')
    A('v_lshrrev_b32 v26, 2, v1'); A('v_min_u32 v19, 13, v26'); A('v_mul_u32_u24 v26, 5120, v26'); A('v_mul_u32_u24 v19, 5120, v19')
    A('v_and_b32 v27, 3, v1'); A('v_lshl_add_u32 v26, v27, 4, v26'); A('v_lshl_add_u32 v19, v27, 4, v19')
    A('v_lshlrev_b32 v27, 3, v27')
    A('v_bfe_u32 v18, v1, 2, 2'); A('v_lshl_add_u32 v27, v18, 1, v27')
    A('s_lshl_b32 s60, s61, 5')
    A('buffer_load_ushort v20, v27, s[44:47], s60 offen')
    A('s_cmp_ge_u32 s61, 40'); A('s_cselect_b32 s58, 40, 0'); A('s_sub_u32 s59, s61, s58')
    A('s_lshl_b32 s57, s59, 5')
    A('s_mov_b32 s52, s26'); A('s_mov_b32 s53, s27'); A('s_mov_b32 s54, 1280'); A('s_mov_b32 s55, 0x20000')
    A('buffer_load_ushort v21, v27, s[52:55], s57 offen')
    A('s_mul_i32 s56, s59, 52'); A('s_lshr_b32 s56, s56, 8'); A('s_mul_i32 s56, s56, 320')
    A('s_lshl_b32 s57, s59, 6'); A('s_add_u32 s56, s56, s57'); A('s_lshl_b32 s58, s58, 3'); A('s_add_u32 s56, s56, s58')
    A(f's_add_u32 s8, s56, {W_G}')
    A(f's_add_u32 s56, s56, {W_Y}'); A(f's_add_u32 s57, s56, {16*5120}')
    A('s_mov_b32 s40, s28'); A('s_mov_b32 s41, s29'); A('s_movk_i32 s42, 2560')
    A('v_mov_b32 v28, s74'); A('v_mov_b32 v29, s75'); A('v_lshlrev_b32 v30, 24, v1')
    A('s_lshl_b32 s58, s61, 24'); A(f's_add_u32 s58, s58, {W_EP}')
    wait_lds(L_PROG, pG)
    if not (noex & 2): poll([f'buffer_load_dwordx4 v[{XF}:{XF+3}], v19, s[48:51], s8 offen sc1'], [XF], 18, sleep)
    A('v_cmp_gt_u32 vcc, 56, v1')
    for r in range(4): A(f'v_cndmask_b32 v{XF+r}, 0, v{XF+r}, vcc')
    col_reduce(XF, XF + 4, 18, 19)
    bf16r(18, 18)
    A('v_lshlrev_b32 v21, 16, v21'); A('v_lshlrev_b32 v20, 16, v20')
    A('v_add_f32 v18, v18, v21')
    bf16r(18, 18)
    A(f'v_mul_f32 v19, {f2u(-1.4426950408889634):#x}, v18')
    A('v_exp_f32 v19, v19')
    A('v_add_f32 v19, 1.0, v19')
    A('v_rcp_f32 v19, v19')
    A('v_mul_f32 v18, v18, v19')
    bf16r(22, 18)
    stamp(5)
    if fixdur:
        wait_lds(L_PROG, 5, slp=2); stamp(3)
    wait_lds(L_PROG, 8, slp=2 if fixdur else 8)
    if fixdur: stamp(4)
    wait_lds(L_CNT2, 4, slp=0)
    if ysl: A(f's_sleep {ysl}')
    poll([f'buffer_load_dwordx4 v[{XF}:{XF+3}], v26, s[48:51], s56 offen {yldflags}', f'buffer_load_dwordx4 v[{XF+4}:{XF+7}], v26, s[48:51], s57 offen {yldflags}'], [XF, XF + 4], 18, ysl2)
    stamp(6)
    for r in range(4): A(f'v_add_f32 v{XF+r}, v{XF+r}, v{XF+4+r}')
    col_reduce(XF, XF + 4, 18, 19)
    bf16r(18, 18)
    A('v_mul_f32 v18, v18, v22')
    bf16r(18, 18)
    A('v_add_f32 v18, v18, v20')
    A('v_cvt_pk_bf16_f32 v18, v18, v18')
    A('buffer_store_short v18, v27, s[40:43], s60 offen')
    A('buffer_store_dwordx2 v[28:29], v30, s[48:51], s58 offen')
    stamp(7)
    if fixdur:
        A('s_waitcnt lgkmcnt(0)')
        A(f's_mov_b32 s92, {fixdur}')
        if amp >= 0:
            A(f's_sub_u32 s93, s{76+2*amp}, s76'); A('s_mul_i32 s93, s93, 10'); A('s_add_u32 s92, s92, s93')
        if amp2 >= 0:
            A(f's_sub_u32 s93, s{76+2*amp2}, s76'); A('s_lshr_b32 s93, s93, 6'); A('s_mul_i32 s93, s93, 20000'); A('s_add_u32 s92, s92, s93')
        A('L_fix:')
        A('s_memrealtime s[94:95]'); A('s_waitcnt lgkmcnt(0)')
        A('s_sub_u32 s94, s94, s76'); A('s_cmp_lt_u32 s94, s92'); A('s_cbranch_scc1 L_fix')
    write_stamps(2)
    A('s_endpgm')

    A('L_hm2:')
    TG2, B1, UU = 240, 224, 40
    A('s_mov_b32 s5, s56')
    A('s_mov_b32 s6, s4')
    A('s_lshl_b32 s59, s5, 3'); A('s_add_u32 s59, s59, s6'); A('s_mul_i32 s59, s59, 640'); A(f's_add_u32 s59, s59, {W_G}')
    A(f's_mul_i32 s56, s5, {128*1280}'); A('s_mul_i32 s57, s6, 160'); A('s_add_u32 s56, s56, s57')
    A(f's_sub_u32 s42, {1728*1280}, s56')
    A('s_waitcnt lgkmcnt(0)')
    A('s_add_u32 s40, s24, s56'); A('s_addc_u32 s41, s25, 0')
    load_tag()
    A('s_barrier')
    A('s_mov_b32 s48, s32'); A('s_mov_b32 s49, s33')
    A(f'v_mul_u32_u24 v16, {32*1280}, v2'); A('v_lshl_add_u32 v16, v3, 4, v16')
    A('v_mov_b32 v18, 0x40000000'); A('v_cmp_gt_u32 vcc, 10, v3'); A(f'v_cndmask_b32 v{VW}, v18, v16, vcc')
    A('v_lshrrev_b32 v16, 1, v2'); A('v_mul_u32_u24 v16, 320, v16'); A('v_lshl_add_u32 v16, v3, 5, v16')
    A('v_and_b32 v17, 1, v2'); A('v_lshl_add_u32 v16, v17, 4, v16'); A(f'v_cndmask_b32 v{VST}, v18, v16, vcc')
    selectors()
    A('v_and_b32 v94, 7, v3'); A('v_lshlrev_b32 v94, 10, v94'); A('v_lshrrev_b32 v95, 3, v3'); A('v_lshl_add_u32 v94, v95, 9, v94'); A('v_lshl_add_u32 v94, v2, 7, v94')
    A('s_mov_b32 s52, s22'); A('s_mov_b32 s53, s23'); A(f's_mov_b32 s54, {1728*2}'); A('s_mov_b32 s55, 0x20000')
    A('s_waitcnt lgkmcnt(0)')
    make_tag()
    tagregs(TG2)
    if wdum & 2:
        A('v_lshlrev_b32 v16, 4, v1'); A('v_mov_b32 v18, 0x40000000'); A('v_cmp_gt_u32 vcc, 40, v1'); A(f'v_cndmask_b32 v{VW}, v18, v16, vcc')
        A('s_lshl_b32 s39, s5, 3'); A('s_add_u32 s39, s39, s6'); A('s_mul_i32 s39, s39, 19456')
        A('s_add_u32 s40, s24, s39'); A('s_addc_u32 s41, s25, 0'); A('s_mov_b32 s42, 20480')
    A('s_mov_b32 s57, 0')
    for i in range(32):
        if i >= Dw: A(f's_waitcnt vmcnt({Dw - 1})')
        r = BUF + 4 * i
        A(f'buffer_load_dwordx4 v[{r}:{r+3}], v{VW}, s[40:43], s57 offen {woflags}')
        if i < 31: A(f's_addk_i32 s57, {640 if wdum & 2 else 1280}')
    A('s_lshl_b32 s57, s5, 8'); A('v_lshlrev_b32 v20, 6, v2')
    for j in range(4): A(f'buffer_load_dwordx4 v[{B1+4*j}:{B1+4*j+3}], v20, s[52:55], s57 offen offset:{16*j}')
    stamp(1)
    if noex & 2: A('s_endpgm')
    wait_lds(L_PROG, pH)
    A('s_lshl_b32 s56, s5, 13'); A(f's_add_u32 s56, s56, {W_H}')
    poll([f'buffer_load_dwordx4 v[{XF+4*j}:{XF+4*j+3}], v94, s[48:51], s56 offen offset:{16*j} sc1' for j in range(8)], [XF + 4 * j for j in range(8)], 18, sleep)
    for j in range(8): red8('v_add_f32', [XF + 4 * j + r for r in range(4)], [20 + r for r in range(4)])
    A('s_cmp_eq_u32 s5, 13'); A('s_cselect_b32 s39, 2, 4'); A('v_cmp_gt_u32 vcc, s39, v2')
    for j in range(32):
        bf16r(XF + j, XF + j)
        if j % 2 == 0: A(f'v_lshlrev_b32 v18, 16, v{B1+j//2}')
        else: A(f'v_and_b32 v18, 0xffff0000, v{B1+j//2}')
        A(f'v_add_f32 v{XF+j}, v{XF+j}, v18')
        bf16r(XF + j, XF + j)
        A(f'v_max_f32 v{XF+j}, 0, v{XF+j}')
        A(f'v_mul_f32 v{XF+j}, v{XF+j}, v{XF+j}')
        if j % 2 == 1:
            A(f'v_cvt_pk_bf16_f32 v{UU+j//2}, v{XF+j-1}, v{XF+j}'); A(f'v_cndmask_b32 v{UU+j//2}, 0, v{UU+j//2}, vcc')
    pb(0, UU)
    for i in range(32):
        if i < 31: pb(i + 1, UU)
        src = HA0 if i % 2 == 0 else HA1
        c = '0' if i == 0 else f'v[{HACC}:{HACC+3}]'
        A(f'v_mfma_f32_16x16x32_bf16 v[{HACC}:{HACC+3}], v[{src}:{src+3}], v[{BUF+4*i}:{BUF+4*i+3}], {c}')
    entag(20, HACC, TG2, rnd=True)
    A(f'buffer_store_dwordx4 v[20:23], v{VST}, s[48:51], s59 offen sc1')
    stamp(5)
    write_stamps(1)
    A('s_endpgm')
    A('L_hp:')
    if cpf:
        A('s_getpc_b64 s[60:61]')
        A('L_pc:')
        A(f's_sub_u32 s60, s60, L_pc-{NAME}_kernel'); A('s_subb_u32 s61, s61, 0')
        A(f's_mov_b32 s62, L_end-{NAME}_kernel'); A('s_mov_b32 s63, 0x20000')
        A('s_lshr_b32 s39, s2, 3'); A('s_lshl_b32 s39, s39, 10'); A('v_lshlrev_b32 v6, 4, v1')
        A('buffer_load_dwordx4 v[8:11], v6, s[60:63], s39 offen')
    A('v_mov_b32 v4, 0'); A('v_lshlrev_b32 v5, 2, v1')
    A(f'ds_write_b32 v5, v4 offset:{L_PROG}')
    if tlb:
        A('s_lshl_b32 s56, s35, 21'); A('s_lshl_b32 s57, s37, 19'); A('s_add_u32 s56, s56, s57')
        A(f's_mul_i32 s58, s34, {128*1280}')
        A('v_mov_b32 v16, s56'); A('v_mov_b32 v17, s58'); A('v_mov_b32 v18, 0'); A(f'v_mov_b32 v19, {W_Y}'); A('v_mov_b32 v20, 0x200000')
    A('s_waitcnt lgkmcnt(0)')
    if tlb:
        A('s_mov_b64 exec, 1')
        A('global_load_dword v24, v17, s[16:17] nt')
        A('global_load_dword v25, v18, s[20:21] nt')
        A('global_load_dword v26, v18, s[24:25] nt')
        A('global_load_dword v27, v20, s[20:21] nt')
        A('global_load_dword v28, v20, s[24:25] nt')
        if tlb > 1:
            A('global_load_dword v29, v16, s[12:13] nt')
            A('global_load_dword v30, v18, s[32:33] nt')
            A('global_load_dword v31, v19, s[32:33] nt')
            A('global_load_dword v32, v18, s[22:23] nt')
            A('global_load_dword v33, v18, s[26:27] nt')
            A('global_load_dword v34, v18, s[28:29] nt')
        A('s_mov_b64 exec, -1')
    load_tag()
    A('s_mov_b32 s48, s32'); A('s_mov_b32 s49, s33')
    A('v_and_b32 v94, 7, v3'); A('v_lshrrev_b32 v95, 3, v3')
    A('s_getreg_b32 s39, hwreg(HW_REG_XCC_ID, 0, 4)')
    A('v_mov_b32 v20, s39'); A('v_mov_b32 v22, 0'); A('v_lshlrev_b32 v24, 24, v1')
    A('s_lshl_b32 s39, s34, 3'); A('s_add_u32 s39, s39, s4'); A('s_lshl_b32 s39, s39, 4'); A(f's_add_u32 s39, s39, {W_HD}')
    A('s_waitcnt lgkmcnt(0)')
    make_tag()
    A('v_mov_b32 v21, s74'); A('v_mov_b32 v23, s75')
    A('buffer_store_dwordx4 v[20:23], v24, s[48:51], s39 offen')
    A('s_barrier')
    wait_lds(L_PROG, 1)
    hdr_load(40, 30, 's34')
    A('s_waitcnt vmcnt(0)')
    hdr_check(40)
    A('s_cselect_b32 s46, 1, 2')
    if ctl:
        wait_lds(L_PROG, 2, slp=2)
        A('s_memrealtime s[8:9]')
        wait_lds(L_PROG, 4, slp=2)
        A('s_memrealtime s[10:11]')
        A('s_waitcnt lgkmcnt(0)')
        A('v_mov_b32 v20, s8'); A('v_mov_b32 v21, s74'); A('v_mov_b32 v22, s10'); A('v_mov_b32 v23, s75')
        A('v_lshlrev_b32 v24, 24, v1')
        if ts64:
            A('s_lshr_b32 s39, s2, 5'); A('s_lshl_b32 s39, s39, 3'); A('s_and_b32 s12, s2, 7'); A('s_add_u32 s39, s39, s12'); A('s_lshl_b32 s39, s39, 4')
            A('s_lshl_b32 s12, s37, 24'); A('s_add_u32 s39, s39, s12')
            A(f's_add_u32 s39, s39, {W_TS}')
        else:
            A('s_lshl_b32 s39, s2, 4'); A(f's_add_u32 s39, s39, {W_TS}')
        A('buffer_store_dwordx4 v[20:23], v24, s[48:51], s39 offen sc1')
        wait_lds(L_PROG, 5, slp=4)
        A('v_lshlrev_b32 v24, 4, v1'); A(f's_mov_b32 s39, {W_TS}')
        NTS = 1 if ts64 else 4
        for j in range(NTS):
            A(f'buffer_load_dwordx4 v[{XF+4*j}:{XF+4*j+3}], v24, s[48:51], s39 offen offset:{j*1024} sc1')
        A('v_mov_b32 v26, 0'); A('v_mov_b32 v27, 0')
        A('s_sub_u32 s12, s8, s10')
        A('v_mov_b32 v28, s12')
        A('s_waitcnt vmcnt(0)')
        for j in range(NTS):
            b = XF + 4 * j
            A(f'v_cmp_eq_u32 vcc, s74, v{b+1}')
            A(f'v_subrev_u32 v{b}, s10, v{b}'); A(f'v_subrev_u32 v{b+2}, s10, v{b+2}')
            A(f'v_cndmask_b32 v{b}, v28, v{b}, vcc'); A(f'v_cndmask_b32 v{b+2}, 0, v{b+2}, vcc')
            A(f'v_add_u32 v26, v26, v{b}'); A(f'v_add_u32 v27, v27, v{b+2}')
        red8('v_add_u32', [26, 27], [29, 30])
        A(f'v_add_u32_dpp v26, v26, v26 row_ror:8 {DPPF}'); A(f'v_add_u32_dpp v27, v27, v27 row_ror:8 {DPPF}')
        rows_add(26, 29, 'v_add_u32'); rows_add(27, 30, 'v_add_u32')
        A('v_readfirstlane_b32 s12, v26'); A('v_readfirstlane_b32 s13, v27')
        A('s_sub_u32 s14, s13, s12')
        A(f's_mul_i32 s14, s14, {cscale}'); A(f's_ashr_i32 s14, s14, {14 if ts64 else 16}')
        A(f's_ashr_i32 s13, s13, {2 if ts64 else 4}')
        A(f's_add_u32 s15, s10, {cmargin}'); A('s_lshl_b32 s15, s15, 4'); A('s_add_u32 s15, s15, s13')
        A('s_lshl_b32 s12, s14, 3'); A('s_add_u32 s15, s15, s12')
        A('v_mov_b32 v26, s15'); A('v_mov_b32 v27, s14'); A(f'v_mov_b32 v28, {L_CTL}')
        A('ds_write_b64 v28, v[26:27]')
    if mlwg:
        wait_lds(L_CNT0, 4, slp=4)
        A('v_and_b32 v16, 3, v1'); A('v_lshlrev_b32 v16, 4, v16')
        A(f'ds_read_b128 v[20:23], v16 offset:{L_ML}')
        A('v_lshrrev_b32 v17, 2, v1'); A('v_lshl_add_u32 v16, v17, 24, v16')
        A('s_lshl_b32 s39, s35, 8'); A('s_lshl_b32 s56, s37, 6'); A('s_add_u32 s39, s39, s56')
        A('s_waitcnt lgkmcnt(0)')
        A('s_cmp_eq_u32 s46, 1'); A('s_cbranch_scc0 L_mls')
        A('buffer_store_dwordx4 v[20:23], v16, s[48:51], s39 offen')
        A('s_branch L_mlt')
        A('L_mls:')
        A('buffer_store_dwordx4 v[20:23], v16, s[48:51], s39 offen sc1')
        A('L_mlt:')
    wait_lds(L_PROG, pML)
    A('v_lshlrev_b32 v16, 4, v3')
    A('s_lshl_b32 s39, s35, 8')
    polltag(['buffer_load_dwordx4 v[20:23], v16, s[48:51], s39 offen sc1'], [20], 18, sleep)
    A('v_mov_b32 v28, v20')
    red8('v_max_f32', [28], [29])
    A(f'v_max_f32_dpp v28, v28, v28 row_ror:8 {DPPF}')
    A('v_sub_f32 v20, v20, v28')
    A('v_exp_f32 v20, v20')
    A('v_mul_f32 v22, v22, v20')
    red8('v_add_f32', [22], [29])
    A(f'v_add_f32_dpp v22, v22, v22 row_ror:8 {DPPF}')
    A('v_rcp_f32 v22, v22')
    A('v_mul_f32 v44, v20, v22')
    A('s_lshl_b32 s56, s37, 2')
    A('v_subrev_u32 v16, s56, v1'); A('v_lshlrev_b32 v16, 2, v16')
    A('s_lshl_b64 exec, 15, s56')
    A(f'ds_write_b32 v16, v44 offset:{L_W4}')
    A('s_mov_b64 exec, -1')
    A('v_mov_b32 v21, s46'); A(f'v_mov_b32 v23, {L_FAST}')
    A('s_waitcnt lgkmcnt(0)')
    A('ds_write_b32 v23, v21')
    if touch:
        A('v_lshlrev_b32 v16, 4, v1'); A('s_lshl_b32 s39, s34, 12'); A(f's_add_u32 s39, s39, {W_O}')
        wait_lds(L_PROG, 7, va=18, vt=19)
        A('s_lshl_b32 s39, s34, 12'); A(f's_add_u32 s39, s39, {W_O}')
        if touch1:
            A('s_lshl_b32 s56, s4, 9'); A('s_add_u32 s39, s39, s56'); A('v_lshlrev_b32 v16, 3, v1')
            A(f'buffer_load_dwordx2 v[{XF}:{XF+1}], v16, s[48:51], s39 offen')
        else:
            for j in range(4): A(f'buffer_load_dwordx4 v[{XF+4*j}:{XF+4*j+3}], v16, s[48:51], s39 offen offset:{j*1024}')
    stamp(2)
    write_stamps(1)
    A('L_end:')
    A('s_endpgm')
    body = a.finalize()
    out = HEADER
    out += f'; @launch grid=(256,1,1) block=(448,1,1) lds={L_TOTAL}\n'
    out += '.amdgcn_target "amdgcn-amd-amdhsa--gfx950"\n.text\n'
    out += f'.globl {NAME}_kernel\n.p2align 8\n.type {NAME}_kernel,@function\n'
    out += body
    out += f'''.section .rodata,"a"
.p2align 6
.amdhsa_kernel {NAME}_kernel
  .amdhsa_next_free_vgpr 256
  .amdhsa_next_free_sgpr 100
  .amdhsa_accum_offset 256
  .amdhsa_group_segment_fixed_size 0
  .amdhsa_kernarg_size 104
  .amdhsa_user_sgpr_count 2
  .amdhsa_user_sgpr_kernarg_segment_ptr 1
  .amdhsa_system_sgpr_workgroup_id_x 1
.end_amdhsa_kernel
'''
    return out

if __name__ == '__main__':
    ap = argparse.ArgumentParser()
    ap.add_argument('out')
    ap.add_argument('opts', nargs='*')
    args = ap.parse_args()
    kw = {}
    for o in args.opts:
        k, v = o.split('=')
        kw[k] = v if k.endswith('flags') else int(v)
    open(args.out, 'w').write(gen(**kw))
```

```python
import sys, struct, argparse
from asmlib import Asm
NAME = 'recurrent_scan__mha_block_cached__dense_activation_squared_relu__decode'
def f2u(x): return struct.unpack('<I', struct.pack('<f', x))[0]
HEADER = open('cdna_kernels/' + NAME + '.s.ref').read().split('; Override launch')[0]

L_Q, L_PROG, L_FAST, L_CTL, L_QRDY, L_CNT1, L_CNT2, L_W4, L_CNT0, L_ML, L_OP, L_YP, L_TOTAL = 0, 256, 260, 264, 272, 276, 280, 288, 284, 320, 512, 4608, 8704
W_HD = 0xA000
W_ML, W_TS, W_EP, W_H, W_QP, W_O, W_G, W_Y, W_SIZE = 0, 0x8000, 0xC000, 0x10000, 0x40000, 0x80000, 0x100000, 0x200000, 0x400000
N1, N2, C0 = 112, 128, 176

def gen(D=5, D0=4, D0n=14, stamps=0, mimic=0, kvflags='nt', wflags='nt', sleep=32, fixdur=0, amp=-1,
        pH=1, pG=4, pML=6, Dw=8, ctl=1, cmargin=45, cscale=256, Dhi=8, fast=1, prestore=1, yack=0, ysl=18, ysl2=0, ypre=0, yldflags='sc1', ystflags='sc1', D00=6, Dm=10, gsl=28, Dlo=4, lead=60, dryp=0, dryc=0, oldflags='sc1', woflags='nt', wo0=8, wos=3, touch=1, gwait=0, gcnt=0, gearly=0, ts64=1, touch1=1, mlwg=1, pst=0, wdum=0, noex=0, tlb=0, D1=0, D1n=0, ka=1, cpf=1, bj=9, wlflags='41010110', loc=1, qsl=-1, amp2=-1, Dmid=6, far=50, prio=1, hco=1, lastg=1, kpflags='0000'):
    if fixdur: stamps = 1
    a = Asm(); A = a
    SPIN = 0x20000
    cnt = [0]
    def uid():
        cnt[0] += 1; return cnt[0]
    def stamp(i):
        if stamps: A(f's_memrealtime s[{76+2*i}:{77+2*i}]')
    def write_stamps(role):
        if not stamps or fixdur: return
        n = uid()
        A('s_waitcnt lgkmcnt(0)')
        if role == 1:
            wait_lds(L_CNT2, 4)
        A('s_mov_b64 exec, -1')
        A('s_add_u32 s92, s32, 0x10000000'); A('s_addc_u32 s93, s33, 0'); A('s_mov_b32 s94, 0x100000'); A('s_mov_b32 s95, 0x20000')
        A('s_lshl_b32 s39, s2, 8')
        if role != 0:
            A('s_add_u32 s56, s3, 1'); A('s_lshl_b32 s56, s56, 6'); A('s_add_u32 s39, s39, s56')
        A('v_and_b32 v2, 63, v0'); A('v_lshlrev_b32 v2, 24, v2')
        for q in range(4):
            for r in range(4): A(f'v_mov_b32 v{4+4*q+r}, s{76+4*q+r}')
            A(f'buffer_store_dwordx4 v[{4+4*q}:{7+4*q}], v2, s[92:95], s39 offen offset:{16*q}')
        A(f'L_nostamp{n}:')
    def bf16r(dst, src):
        A(f'v_cvt_pk_bf16_f32 v{dst}, v{src}, v{src}')
        A(f'v_lshlrev_b32 v{dst}, 16, v{dst}')
    DPPF = 'row_mask:0xf bank_mask:0xf'
    def red8(op, regs, tmps):
        for r, t in zip(regs, tmps): A(f'{op}_dpp v{t}, v{r}, v{r} quad_perm:[1,0,3,2] {DPPF}')
        for r, t in zip(regs, tmps): A(f'{op}_dpp v{r}, v{t}, v{t} quad_perm:[2,3,0,1] {DPPF}')
        for r, t in zip(regs, tmps): A(f'{op}_dpp v{r}, v{r}, v{r} row_half_mirror {DPPF}')
    def rows_add(r, t, op='v_add_f32'):
        A(f'v_mov_b32 v{t}, v{r}'); A(f'v_permlane16_swap_b32 v{r}, v{t}'); A(f'{op} v{r}, v{r}, v{t}')
        A(f'v_mov_b32 v{t}, v{r}'); A(f'v_permlane32_swap_b32 v{r}, v{t}'); A(f'{op} v{r}, v{r}, v{t}')
    def col_reduce(x, y, t0, t1):
        for r in range(4): A(f'v_add_f32_dpp v{y+r}, v{x+r}, v{x+r} row_ror:4 {DPPF}')
        for r in range(4): A(f'v_add_f32_dpp v{t0}, v{y+r}, v{y+r} row_ror:8 row_mask:0xf bank_mask:{1<<r:#x}')
        rows_add(t0, t1)
    def wait_lds(addr, level, va=16, vt=17, slp=8):
        n = uid()
        A(f's_mov_b32 s67, {SPIN*8}')
        A(f'v_mov_b32 v{va}, {addr}')
        A(f'L_pw{n}:')
        A(f'ds_read_b32 v{vt}, v{va}'); A('s_waitcnt lgkmcnt(0)')
        A(f'v_readfirstlane_b32 s39, v{vt}')
        A(f's_cmp_ge_u32 s39, {level}'); A(f's_cbranch_scc1 L_pd{n}')
        if slp: A(f's_sleep {slp}')
        A('s_sub_u32 s67, s67, 1'); A('s_cmp_lg_u32 s67, 0'); A(f's_cbranch_scc1 L_pw{n}')
        A(f'L_pd{n}:')
    def wait_q(slp=4):
        wait_lds(L_QRDY, 1, slp=slp)
    def spin_tail(n, slp):
        A('s_nop 1')
        A('s_cmp_eq_u64 vcc, 0'); A(f's_cbranch_scc1 L_gd{n}')
        if slp: A(f's_sleep {slp}')
        A('s_sub_u32 s67, s67, 1'); A('s_cmp_lg_u32 s67, 0'); A(f's_cbranch_scc1 L_gw{n}')
        A(f'L_gd{n}:')
    def polltag(loads, bases, t, slp):
        n = uid()
        A(f's_mov_b32 s67, {SPIN}')
        A(f'L_gw{n}:')
        for l in loads: A(l)
        A('s_waitcnt vmcnt(0)')
        for k, b in enumerate(bases):
            A(f'v_xor_b32 v{b+1}, s74, v{b+1}'); A(f'v_xor_b32 v{b+3}, s75, v{b+3}')
            if k == 0: A(f'v_or_b32 v{t}, v{b+1}, v{b+3}')
            else: A(f'v_or3_b32 v{t}, v{t}, v{b+1}, v{b+3}')
        A(f'v_cmp_ne_u32 vcc, 0, v{t}')
        spin_tail(n, slp)
    def untag(quads, t):
        first = True
        for b in quads:
            for r in range(4): A(f'v_xor_b32 v{b+r}, s{70+r}, v{b+r}')
            if first:
                A(f'v_or3_b32 v{t}, v{b}, v{b+1}, v{b+2}'); A(f'v_or_b32 v{t}, v{t}, v{b+3}'); first = False
            else:
                A(f'v_or3_b32 v{t}, v{t}, v{b}, v{b+1}'); A(f'v_or3_b32 v{t}, v{t}, v{b+2}, v{b+3}')
        A(f'v_and_b32 v{t}, 0xfff, v{t}')
    def poll(loads, quads, t, slp, init=True):
        n = uid()
        if init: A(f's_mov_b32 s67, {SPIN}')
        A(f'L_gw{n}:')
        for l in loads: A(l)
        A('s_waitcnt vmcnt(0)')
        untag(quads, t)
        A(f'v_cmp_ne_u32 vcc, 0, v{t}')
        spin_tail(n, slp)
    def tagregs(base):
        for r in range(4): A(f'v_mov_b32 v{base+r}, s{70+r}')
        A(f'v_mov_b32 v{base+4}, 0xfff')
    def entag(dst, src, tb, rnd=False):
        for r in range(4):
            if rnd:
                A(f'v_add_u32 v{dst+r}, 0x800, v{src+r}'); A(f'v_bfi_b32 v{dst+r}, v{tb+4}, v{tb+r}, v{dst+r}')
            else:
                A(f'v_bfi_b32 v{dst+r}, v{tb+4}, v{tb+r}, v{src+r}')
    def selectors(SEL=4, t=12):
        A(f'v_and_b32 v{t}, 7, v3'); A(f'v_lshrrev_b32 v{t+1}, 1, v{t}'); A(f'v_and_b32 v{t}, 1, v{t}')
        A(f'v_mov_b32 v{t+2}, 0x0c0c0c0c')
        A(f'v_cmp_eq_u32 vcc, 1, v{t}')
        A(f'v_mov_b32 v{t+3}, 0x0c0c0100'); A(f'v_mov_b32 v{t+4}, 0x01000c0c'); A(f'v_cndmask_b32 v{t+3}, v{t+3}, v{t+4}, vcc')
        A(f'v_mov_b32 v{t+5}, 0x0c0c0302'); A(f'v_mov_b32 v{t+4}, 0x03020c0c'); A(f'v_cndmask_b32 v{t+5}, v{t+5}, v{t+4}, vcc')
        for r in range(4):
            A(f'v_cmp_eq_u32 vcc, {r}, v{t+1}')
            A(f'v_cndmask_b32 v{SEL+r}, v{t+2}, v{t+3}, vcc')
            A(f'v_cndmask_b32 v{SEL+4+r}, v{t+2}, v{t+5}, vcc')
    def hdr_load(dst, va, line_sreg):
        A(f'v_and_b32 v{va}, 7, v1'); A(f'v_lshlrev_b32 v{va}, 4, v{va}')
        A(f's_lshl_b32 s39, {line_sreg}, 7'); A(f's_add_u32 s39, s39, {W_HD}')
        A(f'buffer_load_dwordx4 v[{dst}:{dst+3}], v{va}, s[48:51], s39 offen sc1')
    def hdr_check(dst):
        A('s_getreg_b32 s39, hwreg(HW_REG_XCC_ID, 0, 4)')
        A(f'v_xor_b32 v{dst}, s39, v{dst}'); A(f'v_xor_b32 v{dst+1}, s74, v{dst+1}'); A(f'v_xor_b32 v{dst+3}, s75, v{dst+3}')
        A(f'v_or3_b32 v{dst}, v{dst}, v{dst+1}, v{dst+3}')
        A(f'v_cmp_ne_u32 vcc, 0, v{dst}')
        A('s_nop 1')
        A('s_cmp_eq_u64 vcc, 0')
    def load_tag():
        A(f's_load_dwordx2 s[74:75], s[32:33], {W_EP}')
    def make_tag():
        A('s_add_u32 s74, s74, 0x7f4a7c15'); A('s_addc_u32 s75, s75, 0x9e3779b9')
        A('s_and_b32 s70, s74, 0xfff'); A('s_bfe_u32 s71, s74, 0xc000c')
        A('s_lshr_b64 s[72:73], s[74:75], 24'); A('s_bfe_u32 s73, s72, 0xc000c'); A('s_and_b32 s72, s72, 0xfff')

    A(f'{NAME}_kernel:')
    def rest_args():
        if ka:
            A('s_load_dwordx8 s[16:23], s[0:1], 32'); A('s_load_dwordx8 s[24:31], s[0:1], 64'); A('s_load_dwordx2 s[32:33], s[0:1], 96')
    if ka:
        A('s_load_dwordx8 s[8:15], s[0:1], 0')
    else:
        A('s_load_dwordx16 s[8:23], s[0:1], 0')
        A('s_load_dwordx8 s[24:31], s[0:1], 64')
        A('s_load_dwordx2 s[32:33], s[0:1], 96')
    stamp(0)
    A('v_readfirstlane_b32 s3, v0')
    A('s_lshr_b32 s35, s2, 6')
    A('s_cmp_ge_u32 s35, 4'); A('s_cbranch_scc1 L_end')
    A('s_and_b32 s34, s2, 7'); A('s_lshl_b32 s34, s34, 2'); A('s_add_u32 s34, s34, s35')
    A('s_and_b32 s39, s2, 32'); A('s_add_u32 s35, s39, s34')
    A('s_lshr_b32 s4, s2, 3'); A('s_and_b32 s37, s4, 3')
    A('s_lshr_b32 s3, s3, 6')
    A('v_and_b32 v1, 63, v0')
    A('s_mov_b32 s43, 0x20000')
    def common2():
        A('s_and_b32 s4, s4, 7'); A('s_lshr_b32 s36, s4, 2')
        A(f's_mov_b32 s50, {W_SIZE}'); A('s_mov_b32 s51, 0x20000')
        A('v_bfe_u32 v2, v0, 4, 2')
        A('v_and_b32 v3, 15, v0')
    A('s_sub_u32 s38, s3, 3'); A('s_cbranch_scc1 L_helper')

    Q, MASK, ACC, A0, A1 = 4, 8, 12, 16, 20
    P0, T01, T23, U, U2, M, Lr, MN, E1, E2, PP, VO, LANE = 24, 28, 29, 30, 31, 32, 33, 34, 35, 36, 37, 38, 39
    S, RING, TG, WO, SSEL, VWO, VY, VL, ONE = 40, 72, 200, 208, 240, 248, 249, 250, 251
    A('s_lshl_b32 s56, s35, 2'); A('s_add_u32 s56, s56, s37'); A('s_lshl_b32 s56, s56, 7'); A('s_add_u32 s56, s56, s38'); A('s_lshl_b32 s56, s56, 12')
    A('s_mov_b32 s42, 0x7d000')
    A('v_lshlrev_b32 v1, 4, v1')
    A('s_and_b32 s57, s2, 31'); A('s_lshl_b32 s57, s57, 14')
    A('s_mov_b32 s58, 0x7ffff')
    A('s_waitcnt lgkmcnt(0)')
    A('s_add_u32 s40, s10, s56'); A('s_addc_u32 s41, s11, 0')
    first = [True]
    def issue(j, wait, dyn=False):
        i = j & 3
        if i == 0:
            if first[0]: first[0] = False
            else: A('s_addk_i32 s57, 0x4000'); A('s_and_b32 s57, s57, s58')
            if dyn: A('s_cmp_lg_u32 s98, 0')
        if wait is not None:
            if dyn:
                n = uid()
                A(f's_waitcnt vmcnt({Dhi-1})')
                if far:
                    A(f's_cbranch_vccz L_dl{n}'); A(f's_cbranch_scc1 L_dw{n}'); A(f's_waitcnt vmcnt({Dmid-1})'); A(f's_branch L_dw{n}'); A(f'L_dl{n}:')
                else:
                    A(f's_cbranch_vccnz L_dw{n}')
                A(f's_waitcnt vmcnt({wait})')
                A(f's_cbranch_scc0 L_dw{n}'); A(f's_waitcnt vmcnt({Dlo-1})')
                A(f'L_dw{n}:')
            else: A(f's_waitcnt vmcnt({wait})')
        r = RING + 4 * j
        A(f'buffer_load_dwordx4 v[{r}:{r+3}], v1, s[40:43], s57 offen offset:{i*1024} {kvflags}')
    F = D00 if D00 else D0
    seq = []
    def kwait(d):
        n = 0; k = 0
        for x in reversed(seq):
            if x == 'k':
                if k == d - 1: break
                k += 1
            n += 1
        return n
    for j in range(32):
        d = D0 if j < D0n else D
        if j < D1n: d = D1
        if j < F: issue(j, None)
        elif j == F: issue(j, kwait(F))
        else: issue(j, kwait(d))
        seq.append('k')
        if pst and j in (0, F, 12, 22): A(f's_memrealtime s[{76+2*{0:1, F:5, 12:6, 22:7}[j]}:{77+2*{0:1, F:5, 12:6, 22:7}[j]}]')
        NEARLY = 8 - sum(int(c) for c in wlflags)
        if j >= wo0 and (j - wo0) % wos == 0 and (j - wo0) // wos < NEARLY:
            i = (j - wo0) // wos
            A(f's_movk_i32 s39, {i*(640 if wdum & 2 else 1280)}')
            A(f'buffer_load_dwordx4 v[{WO+4*i}:{WO+4*i+3}], v{VWO}, s[52:55], s39 offen {woflags}')
            seq.append('w')
        if j == F - 1:
            rest_args()
            common2()
            A(f'v_and_b32 v{LANE}, 63, v0')
            A('s_add_u32 s44, s12, s56'); A('s_addc_u32 s45, s13, 0')
            A('s_lshl_b32 s39, s34, 2'); A('s_add_u32 s39, s39, s38'); A(f's_mul_i32 s39, s39, {32*1280}'); A('s_mul_i32 s5, s4, 160'); A('s_add_u32 s39, s39, s5')
            A(f'v_mul_u32_u24 v16, {8*1280}, v2'); A('v_lshl_add_u32 v16, v3, 4, v16')
            A('v_mov_b32 v18, 0x40000000'); A('v_cmp_gt_u32 vcc, 10, v3'); A(f'v_cndmask_b32 v{VWO}, v18, v16, vcc')
            A('s_waitcnt lgkmcnt(0)')
            load_tag()
            A('s_add_u32 s52, s16, s39'); A('s_addc_u32 s53, s17, 0'); A(f's_sub_u32 s54, {4096*1280}, s39'); A('s_mov_b32 s55, 0x20000')
            A('s_mov_b32 s48, s32'); A('s_mov_b32 s49, s33')
        if j == bj: A('s_barrier')
        if j == 10:
            A('v_lshrrev_b32 v16, 1, v2'); A('v_mul_u32_u24 v16, 320, v16'); A('v_lshl_add_u32 v16, v3, 5, v16')
            A('v_and_b32 v17, 1, v2'); A('v_lshl_add_u32 v16, v17, 4, v16'); A(f'v_cndmask_b32 v{VY}, v18, v16, vcc')
            A('s_lshl_b32 s99, s34, 3'); A('s_add_u32 s99, s99, s4'); A('s_mul_i32 s99, s99, 640'); A(f's_add_u32 s99, s99, {W_Y}')
            A('v_lshlrev_b32 v16, 8, v3'); A('v_lshl_add_u32 v16, v17, 6, v16')
            A('v_lshrrev_b32 v17, 1, v2'); A(f'v_lshl_add_u32 v{VO}, v17, 24, v16')
            A('s_lshl_b32 s64, s34, 12'); A(f's_add_u32 s64, s64, {W_O}')
            A('s_lshl_b32 s66, s36, 7'); A('s_lshl_b32 s39, s37, 4'); A('s_add_u32 s66, s66, s39'); A('s_add_u32 s66, s66, s64')
            A('s_lshl_b32 s39, s38, 10'); A('s_add_u32 s47, s64, s39')
            A(f'v_add_u32 v{VL}, s39, v1')
            A(f'v_mov_b32 v{ONE}, 1')
        if j == 12:
            if prio: A(f's_setprio {prio}')
            selectors(SSEL, 24)
        if j == 14:
            A('v_and_b32 v16, 1, v3'); A('v_lshlrev_b32 v16, 4, v16'); A('v_mov_b32 v17, 0xffff'); A('v_lshlrev_b32 v16, v16, v17')
            A('v_lshrrev_b32 v17, 1, v3')
            for r in range(4):
                A(f'v_cmp_eq_u32 vcc, {r}, v17'); A(f'v_cndmask_b32 v{MASK+r}, 0, v16, vcc')
            A('v_lshlrev_b32 v3, 4, v3')
            A(f'v_mov_b32 v2, {L_PROG}')
            A(f'v_mov_b32 v{M}, 0xff7fffff'); A(f'v_mov_b32 v{Lr}, 0')
            for r in range(4): A(f'v_mov_b32 v{ACC+r}, 0')
            A(f's_mov_b32 s61, {f2u(1.4426950408889634 * 128 ** -0.5):#x}')
            if mimic: A(f's_mov_b32 s62, {f2u(128 ** -0.5):#x}'); A(f's_mov_b32 s63, {f2u(1.4426950408889634):#x}')
        if j == 16:
            A('s_waitcnt lgkmcnt(0)')
            make_tag()
            tagregs(TG)
    wait_q(slp=1)
    stamp(2)
    A(f'ds_read_b128 v[{Q}:{Q+3}], v3 offset:{L_Q}')
    A('s_mov_b32 s59, 0')
    A('s_waitcnt lgkmcnt(0)')
    A('L_kloop:')
    A('s_cmp_eq_u32 s59, 3')
    A('s_cselect_b32 s40, s44, s40'); A('s_cselect_b32 s41, s45, s41')
    A('s_add_u32 s59, s59, 1')
    A(f'v_mov_b32 v{PP}, s59')
    A(f'ds_max_u32 v2, v{PP}')
    for t in range(8):
        R = lambda i: RING + 4 * (4 * t + i)
        for i in range(4): A(f'v_dot2_f32_bf16 v{P0+i}, v{R(i)}, v{Q}, 0')
        for r in range(1, 4):
            for i in range(4): A(f'v_dot2c_f32_bf16 v{P0+i}, v{R(i)+r}, v{Q+r}')
        issue(4 * t + 0, D - 1 + int(kpflags[0]))
        A(f'v_add_f32_dpp v{T01}, v{P0}, v{P0} row_ror:8 row_mask:0xf bank_mask:0xf')
        A(f'v_add_f32_dpp v{T23}, v{P0+2}, v{P0+2} row_ror:8 row_mask:0xf bank_mask:0xf')
        A(f'v_add_f32_dpp v{T01}, v{P0+1}, v{P0+1} row_ror:8 row_mask:0xf bank_mask:0xc')
        A(f'v_add_f32_dpp v{T23}, v{P0+3}, v{P0+3} row_ror:8 row_mask:0xf bank_mask:0xc')
        A(f'v_mov_b32 v{S+t}, v{S+8+t}')
        A(f'v_add_f32_dpp v{U}, v{T01}, v{T01} row_half_mirror row_mask:0xf bank_mask:0xf')
        A(f'v_add_f32_dpp v{U}, v{T23}, v{T23} row_half_mirror row_mask:0xf bank_mask:0xa')
        A(f'v_mov_b32 v{S+8+t}, v{S+16+t}')
        A(f'v_mov_b32 v{S+16+t}, v{S+24+t}')
        A(f'v_add_f32_dpp v{U2}, v{U}, v{U} quad_perm:[1,0,3,2] row_mask:0xf bank_mask:0xf')
        issue(4 * t + 1, D - 1 + int(kpflags[1]))
        A(f'v_add_f32_dpp v{U}, v{U2}, v{U2} quad_perm:[2,3,0,1] row_mask:0xf bank_mask:0xf')
        if mimic:
            bf16r(U, U)
            A(f'v_mul_f32 v{U}, s62, v{U}')
            bf16r(U, U)
            A(f'v_mul_f32 v{S+24+t}, s63, v{U}')
        else:
            A(f'v_mul_f32 v{S+24+t}, s61, v{U}')
        A(f'v_max_f32 v{MN}, v{M}, v{S+24+t}')
        A(f'v_sub_f32 v{E1}, v{M}, v{MN}')
        A(f'v_sub_f32 v{E2}, v{S+24+t}, v{MN}')
        A(f'v_exp_f32 v{E1}, v{E1}')
        A(f'v_exp_f32 v{E2}, v{E2}')
        A(f'v_mov_b32 v{M}, v{MN}')
        A(f'v_fma_f32 v{Lr}, v{Lr}, v{E1}, v{E2}')
        issue(4 * t + 2, D - 1 + int(kpflags[2]))
        issue(4 * t + 3, D - 1 + int(kpflags[3]))
    A('s_cmp_lt_u32 s59, 4'); A('s_cbranch_scc1 L_kloop')
    stamp(3)
    A(f'v_max_f32_dpp v{E1}, v{M}, v{M} row_ror:4 row_mask:0xf bank_mask:0xf')
    A(f'v_max_f32_dpp v{E2}, v{E1}, v{E1} row_ror:8 row_mask:0xf bank_mask:0xf')
    A(f'v_max_f32_dpp v{E2}, v{E2}, v{E2} row_bcast:15 row_mask:0xa bank_mask:0xf')
    A(f'v_max_f32_dpp v{E2}, v{E2}, v{E2} row_bcast:31 row_mask:0xc bank_mask:0xf')
    A(f'v_readlane_b32 s60, v{E2}, 63')
    A(f'v_subrev_f32 v{E1}, s60, v{M}')
    A(f'v_exp_f32 v{E1}, v{E1}')
    A(f'v_mul_f32 v{Lr}, v{Lr}, v{E1}')
    A(f'v_add_f32_dpp v{E1}, v{Lr}, v{Lr} row_ror:4 row_mask:0xf bank_mask:0xf')
    A(f'v_add_f32_dpp v{E2}, v{E1}, v{E1} row_ror:8 row_mask:0xf bank_mask:0xf')
    A(f'v_add_f32_dpp v{E2}, v{E2}, v{E2} row_bcast:15 row_mask:0xa bank_mask:0xf')
    A(f'v_add_f32_dpp v{E2}, v{E2}, v{E2} row_bcast:31 row_mask:0xc bank_mask:0xf')
    A(f'v_readlane_b32 s64, v{E2}, 63')
    A(f'v_mov_b32 v{P0}, s60'); A(f'v_mov_b32 v{P0+1}, s74')
    A(f'v_lshlrev_b32 v{U}, 24, v{LANE}')
    A(f'v_mov_b32 v{P0+2}, s64'); A(f'v_mov_b32 v{P0+3}, s75')
    if mlwg:
        A('s_lshl_b32 s39, s38, 4'); A(f'v_mov_b32 v{U}, s39')
        A('s_mov_b64 exec, 1')
        A(f'ds_write_b128 v{U}, v[{P0}:{P0+3}] offset:{L_ML}')
        A(f'ds_add_u32 v2, v{ONE} offset:{L_CNT0 - L_PROG}')
        A('s_mov_b64 exec, -1')
    else:
        A(f'buffer_store_dwordx4 v[{P0}:{P0+3}], v{U}, s[48:51], s65 offen sc1')
    A('s_mov_b64 vcc, 0'); A('s_mov_b32 s7, 0'); A('s_mov_b32 s98, 0')
    CT = M
    A(f'ds_read_b128 v[{CT}:{CT+3}], v2')
    if ctl: A('s_memrealtime s[96:97]')
    A('L_vloop:')
    A('s_add_u32 s59, s59, 1')
    A(f'v_mov_b32 v{PP}, s59')
    A(f'ds_max_u32 v2, v{PP}')
    A('s_cmp_lg_u32 s59, 8'); A('s_cbranch_scc1 L_now')
    wl = [int(c) for c in wlflags] if wlflags else [0] * 8
    wn = [0]
    def wo_late(n):
        for _ in range(n):
            i = NEARLY + wn[0]; wn[0] += 1
            A(f's_movk_i32 s39, {i*1280}')
            A(f'buffer_load_dwordx4 v[{WO+4*i}:{WO+4*i+3}], v{VWO}, s[52:55], s39 offen {woflags}')
    wo_late(wl[0])
    wait_lds(L_FAST, 1, va=P0, vt=P0 + 1, slp=1)
    A('s_mov_b32 s46, s39'); A('s_lshl_b32 s39, s38, 2'); A(f'v_mov_b32 v{P0}, s39')
    A(f'ds_read_b32 v{E2}, v{P0} offset:{L_W4}')
    A('L_now:')
    beta = [0, 2, 1, 3]
    EX, PK = T01, T23
    for t in range(8):
        R = lambda i: RING + 4 * (4 * t + i)
        A(f'v_subrev_f32 v{EX}, s60, v{S+t}')
        A(f'v_exp_f32 v{EX}, v{EX}')
        A(f'v_mov_b32 v{S+t}, v{S+8+t}')
        A(f'v_cvt_pk_bf16_f32 v{PK}, v{EX}, v{EX}')
        A(f'v_mov_b32 v{S+8+t}, v{S+16+t}')
        A(f'v_mov_b32 v{S+16+t}, v{S+24+t}')
        def build(i):
            dst = A0 if i % 2 == 0 else A1
            for r in range(4):
                n = (2 * r - 4 * beta[i]) % 16
                if n == 0: A(f'v_and_b32 v{dst+r}, v{PK}, v{MASK+r}')
                else: A(f'v_and_b32_dpp v{dst+r}, v{PK}, v{MASK+r} row_ror:{n} row_mask:0xf bank_mask:0xf')
        def mf(i):
            src = A0 if i % 2 == 0 else A1
            A(f'v_mfma_f32_16x16x32_bf16 v[{ACC}:{ACC+3}], v[{src}:{src+3}], v[{R(i)}:{R(i)+3}], v[{ACC}:{ACC+3}]')
        build(0); build(1); mf(0); build(2); mf(1); build(3); mf(2); mf(3)
        A('s_cmp_eq_u32 s59, 8')
        nextwait = 28 - 4 * (t + 1)
        needw = t < 7 and nextwait < (Dhi if ctl else D)
        if t < 7 and (needw or wl[t + 1]):
            A(f's_cbranch_scc0 L_vi{t}')
            wo_late(wl[t + 1])
            if lastg and t == 6:
                A('s_branch L_last')
            else:
                if needw: A(f's_waitcnt vmcnt({nextwait + wn[0]})')
                A(f's_branch L_vc{t}')
            A(f'L_vi{t}:')
        else:
            A(f's_cbranch_scc1 L_vc{t}')
        issue(4 * t + 0, D - 1, dyn=ctl)
        if ctl:
            A('s_waitcnt lgkmcnt(0)')
            A(f'v_readfirstlane_b32 s5, v{CT+2}'); A(f'v_readfirstlane_b32 s6, v{CT+3}')
            A('s_lshl_b32 s98, s96, 4'); A('s_sub_u32 s98, s98, s5'); A('s_mul_i32 s5, s6, s7'); A('s_sub_u32 s98, s98, s5')
            A('s_add_u32 s7, s7, 1')
            A('s_cmp_lg_u32 s6, 0'); A('s_cselect_b32 s98, s98, 0')
            A('s_cmp_gt_i32 s98, 0'); A('s_cselect_b64 vcc, -1, 0')
            A(f's_add_u32 s98, s98, {lead*16}'); A(f's_cmp_gt_u32 s98, {(lead+far)*16}'); A('s_cselect_b32 s98, 1, 0')
        for i in range(1, 4): issue(4 * t + i, D - 1, dyn=ctl)
        if ctl:
            A(f'ds_read_b128 v[{CT}:{CT+3}], v2')
        if ctl: A('s_memrealtime s[96:97]')
        if t < 7: A(f'L_vc{t}:')
    A('s_branch L_vloop')
    if lastg:
        A('L_last:')
        A(f'v_subrev_f32 v{EX}, s60, v{S+7}')
        A(f'v_exp_f32 v{EX}, v{EX}')
        A(f'v_cvt_pk_bf16_f32 v{PK}, v{EX}, v{EX}')
        for i in range(4):
            for r in range(4):
                n = (2 * r - 4 * beta[i]) % 16
                if n == 0: A(f'v_and_b32 v{RING+4*i+r}, v{PK}, v{MASK+r}')
                else: A(f'v_and_b32_dpp v{RING+4*i+r}, v{PK}, v{MASK+r} row_ror:{n} row_mask:0xf bank_mask:0xf')
        A('s_waitcnt lgkmcnt(0)')
        for i in range(4):
            A(f's_waitcnt vmcnt({3 - i + wn[0]})')
            A(f'v_mfma_f32_16x16x32_bf16 v[{ACC}:{ACC+3}], v[{RING+4*i}:{RING+4*i+3}], v[{RING+4*(28+i)}:{RING+4*(28+i)+3}], v[{ACC}:{ACC+3}]')
        A('s_nop 1')
    A('L_vc7:')
    stamp(4)
    A('s_waitcnt lgkmcnt(0)')
    A('s_nop 4')
    G0 = RING
    def combine(src, lbase, lcnt, skip):
        A(f'ds_write_b128 v{VL}, v[{src}:{src+3}] offset:{lbase}')
        A('s_mov_b64 exec, 1')
        A(f'ds_add_rtn_u32 v{PP}, v2, v{ONE} offset:{lcnt - L_PROG}')
        A('s_mov_b64 exec, -1')
        for k in range(4): A(f'ds_read_b128 v[{G0+4*k}:{G0+4*k+3}], v1 offset:{lbase + 1024*k}')
        A('s_waitcnt lgkmcnt(4)')
        A(f'v_readfirstlane_b32 s39, v{PP}')
        A('s_cmp_lg_u32 s39, 3'); A(f's_cbranch_scc1 {skip}')
        A('s_waitcnt lgkmcnt(2)')
        for r in range(4): A(f'v_add_f32 v{G0+r}, v{G0+r}, v{G0+4+r}')
        A('s_waitcnt lgkmcnt(0)')
        for r in range(4): A(f'v_add_f32 v{G0+8+r}, v{G0+8+r}, v{G0+12+r}')
        for r in range(4): A(f'v_add_f32 v{G0+r}, v{G0+r}, v{G0+8+r}')
        entag(G0, G0, TG)
    for r in range(4): A(f'v_mul_f32 v{A0+r}, v{E2}, v{ACC+r}')
    combine(A0, L_OP, L_CNT1, 'L_owait')
    A('s_cmp_eq_u32 s46, 1'); A('s_cbranch_scc1 L_ofast')
    A(f'buffer_store_dwordx4 v[{G0}:{G0+3}], v{VO}, s[48:51], s66 offen sc1')
    A('s_branch L_opoll')
    A('L_ofast:')
    A(f'buffer_store_dwordx4 v[{G0}:{G0+3}], v{VO}, s[48:51], s66 offen')
    A('s_branch L_opoll')
    A('L_owait:')
    wait_lds(L_CNT1, 4, va=P0, vt=P0 + 1, slp=0)
    A('L_opoll:')
    if not pst: stamp(1)
    X = G0 + 16
    poll([f'buffer_load_dwordx4 v[{X}:{X+3}], v1, s[48:51], s47 offen {oldflags}'], [X], P0, 0)
    if not pst: stamp(5)
    for r in range(4): A(f'v_add_f32_dpp v{X+4+r}, v{X+r}, v{X+r} quad_perm:[1,0,3,2] {DPPF}')
    for r in range(4): A(f'v_add_f32_dpp v{X+r}, v{X+4+r}, v{X+4+r} quad_perm:[2,3,0,1] {DPPF}')
    UU = X + 8
    A(f'v_cvt_pk_bf16_f32 v{UU}, v{X}, v{X+1}'); A(f'v_cvt_pk_bf16_f32 v{UU+1}, v{X+2}, v{X+3}')
    A(f'v_cvt_pk_bf16_f32 v{UU+2}, v{X}, v{X+1}'); A(f'v_cvt_pk_bf16_f32 v{UU+3}, v{X+2}, v{X+3}')
    A(f'v_cvt_pk_bf16_f32 v{UU+4}, v{X}, v{X+1}'); A(f'v_cvt_pk_bf16_f32 v{UU+5}, v{X+2}, v{X+3}')
    A(f'v_mov_b32_dpp v{UU}, v{UU+4} row_half_mirror row_mask:0xf bank_mask:0xa')
    A(f'v_mov_b32_dpp v{UU+1}, v{UU+5} row_half_mirror row_mask:0xf bank_mask:0xa')
    A(f'v_mov_b32_dpp v{UU+2}, v{UU+4} row_half_mirror row_mask:0xf bank_mask:0x5')
    A(f'v_mov_b32_dpp v{UU+3}, v{UU+5} row_half_mirror row_mask:0xf bank_mask:0x5')
    def spb(i):
        dst = A0 if i % 2 == 0 else A1
        for r in range(4):
            A(f'v_perm_b32 v{dst+r}, v{UU+(i>>1)}, v{UU+(i>>1)}, v{SSEL+4*(i&1)+r}')
    spb(0)
    for i in range(8):
        if i < 7: spb(i + 1)
        src = A0 if i % 2 == 0 else A1
        c = '0' if i == 0 else f'v[{ACC}:{ACC+3}]'
        A(f'v_mfma_f32_16x16x32_bf16 v[{ACC}:{ACC+3}], v[{src}:{src+3}], v[{WO+4*i}:{WO+4*i+3}], {c}')
    combine(ACC, L_YP, L_CNT2, 'L_end')
    A(f'buffer_store_dwordx4 v[{G0}:{G0+3}], v{VY}, s[48:51], s99 offen {ystflags}')
    if not pst: stamp(6)
    if yack:
        A('s_mov_b64 exec, 1')
        A('s_waitcnt vmcnt(0)')
        A(f'ds_add_u32 v2, v{ONE} offset:{L_CNT2 - L_PROG}')
    write_stamps(0)
    A('s_endpgm')

    SEL, HACC, HA0, HA1, XN, XS, XF, VW, VST, BUF, ACC2 = 4, 12, 32, 36, 40, 50, 60, 92, 93, 96, 176
    A('L_helper:')
    common2()
    A('s_cmp_eq_u32 s3, 0'); A('s_cbranch_scc1 L_hq')
    rest_args()
    A('s_cmp_eq_u32 s3, 2'); A('s_cbranch_scc1 L_hp')
    A('s_and_b32 s56, s2, 7'); A('s_lshr_b32 s39, s2, 3'); A('s_and_b32 s39, s39, 8'); A('s_add_u32 s56, s56, s39')
    A('s_cmp_ge_u32 s56, 14'); A('s_cbranch_scc1 L_end')
    A('s_cmp_ge_u32 s2, 128'); A('s_cbranch_scc1 L_hm2')
    A('s_mov_b32 s5, s4')
    A('s_movk_i32 s6, 3456')
    if hco:
        A('s_lshl_b32 s59, s56, 13'); A('s_lshl_b32 s39, s5, 4'); A('s_add_u32 s59, s59, s39'); A(f's_add_u32 s59, s59, {W_H}')
    else:
        A('s_lshl_b32 s59, s56, 3'); A('s_add_u32 s59, s59, s5'); A('s_lshl_b32 s59, s59, 10'); A(f's_add_u32 s59, s59, {W_H}')
    A('s_lshl_b32 s56, s56, 8'); A(f's_mul_i32 s57, s5, {80*3456}'); A('s_add_u32 s56, s56, s57')
    A(f's_sub_u32 s42, {640*3456}, s56')
    A('s_waitcnt lgkmcnt(0)')
    A('s_add_u32 s40, s20, s56'); A('s_addc_u32 s41, s21, 0')
    A('s_branch L_g1')
    A('L_hq:')
    A('s_mov_b32 s5, s4')
    A('s_movk_i32 s6, 8192')
    A('s_lshl_b32 s59, s34, 13'); A('s_lshl_b32 s39, s5, 10'); A('s_add_u32 s59, s59, s39'); A(f's_add_u32 s59, s59, {W_QP}')
    A('s_lshl_b32 s56, s34, 8'); A(f's_mul_i32 s57, s5, {80*8192}'); A('s_add_u32 s56, s56, s57')
    A(f's_sub_u32 s42, {640*8192}, s56')
    A('s_waitcnt lgkmcnt(0)')
    A('s_add_u32 s40, s14, s56'); A('s_addc_u32 s41, s15, 0')
    rest_args()
    A('L_g1:')
    A('s_mov_b32 s44, s8'); A('s_mov_b32 s45, s9'); A('s_mov_b32 s46, 2560'); A('s_mov_b32 s47, 0x20000')
    A('v_bfe_u32 v12, v1, 3, 1'); A('v_mul_u32_u24 v12, 1280, v12')
    A('v_and_b32 v13, 7, v1'); A('v_lshl_add_u32 v13, v2, 3, v13'); A('v_lshl_add_u32 v13, v13, 3, v12')
    for j in range(5):
        A(f'buffer_load_dwordx2 v[{XS+2*j}:{XS+2*j+1}], v13, s[44:47], 0 offen offset:{j*256}')
    A('v_mul_u32_u24 v14, 40, v2'); A('v_add_u32 v14, v14, v12'); A('s_mul_i32 s39, s5, 160')
    for j in range(5):
        A(f'buffer_load_dwordx2 v[{XN+2*j}:{XN+2*j+1}], v14, s[44:47], s39 offen offset:{j*8}')
    A('s_mul_i32 s39, s6, 20'); A('v_mul_lo_u32 v12, v2, s39'); A(f'v_lshl_add_u32 v{VW}, v3, 4, v12')
    if wdum & 1:
        A(f'v_lshlrev_b32 v{VW}, 4, v1'); A('s_movk_i32 s6, 1024')
        A('s_cmp_eq_u32 s3, 0'); A('s_cselect_b32 s40, s14, s20'); A('s_cselect_b32 s41, s15, s21')
        A('s_mul_i32 s57, s2, 19456'); A('s_add_u32 s40, s40, s57'); A('s_addc_u32 s41, s41, 0'); A('s_mov_b32 s42, 20480')
    A('s_mov_b32 s57, 0')
    A('s_cmp_eq_u32 s3, 0'); A('s_cbranch_scc1 L_nb0'); A('s_barrier'); A('L_nb0:')
    for i in range(20):
        r = BUF + 4 * i
        if i % Dm == 0:
            A('s_cmp_eq_u32 s3, 0'); A(f's_cbranch_scc1 L_nt{i}'); A(f's_waitcnt vmcnt({0 if i == 0 else 1})'); A(f'L_nt{i}:')
        A(f'buffer_load_dwordx4 v[{r}:{r+3}], v{VW}, s[40:43], s57 offen {wflags}')
        if i < 19: A('s_add_u32 s57, s57, s6')
    A('s_cmp_lg_u32 s3, 0'); A('s_cbranch_scc1 L_nb1'); A('s_barrier'); A('L_nb1:')
    A('s_waitcnt lgkmcnt(0)')
    load_tag()
    A('s_mov_b32 s48, s32'); A('s_mov_b32 s49, s33')
    A('v_lshrrev_b32 v12, 1, v2'); A('v_lshlrev_b32 v12, 9, v12'); A('v_lshl_add_u32 v12, v3, 5, v12')
    A('v_and_b32 v13, 1, v2'); A(f'v_lshl_add_u32 v{VST}, v13, 4, v12')
    if hco:
        A('s_cmp_eq_u32 s3, 0'); A('s_cbranch_scc1 L_vst')
        A('v_and_b32 v12, 3, v3'); A('v_lshl_add_u32 v12, v12, 1, v13'); A('v_lshlrev_b32 v12, 10, v12')
        A('v_lshrrev_b32 v13, 2, v3'); A('v_lshl_add_u32 v12, v13, 8, v12')
        A('v_lshrrev_b32 v13, 1, v2'); A(f'v_lshl_add_u32 v{VST}, v13, 7, v12')
        A('L_vst:')
    selectors()
    A('v_mov_b32 v20, 0x3f803f80')
    A('s_waitcnt vmcnt(25)')
    if loc:
        A('s_lshl_b32 s60, s3, 1'); A('s_add_u32 s60, s60, s34')
        hdr_load(24, 28, 's60')
    A(f'v_dot2_f32_bf16 v12, v{XS}, v20, 0'); A(f'v_dot2_f32_bf16 v13, v{XS+1}, v20, 0')
    for j in range(2, 10, 2):
        A(f'v_dot2_f32_bf16 v12, v{XS+j}, v20, v12'); A(f'v_dot2_f32_bf16 v13, v{XS+j+1}, v20, v13')
    for j in range(10):
        A(f'v_lshlrev_b32 v{XF+2*j}, 16, v{XS+j}')
        A(f'v_and_b32 v{XF+2*j+1}, 0xffff0000, v{XS+j}')
    A('v_add_f32 v12, v12, v13')
    red8('v_add_f32', [12], [13]); rows_add(12, 13)
    A(f's_mov_b32 s39, {f2u(1.0/640):#x}')
    A('v_mul_f32 v12, s39, v12')
    A('v_mov_b32 v14, 0'); A('v_mov_b32 v15, 0')
    for j in range(0, 20, 2):
        A(f'v_sub_f32 v22, v{XF+j}, v12'); A(f'v_sub_f32 v23, v{XF+j+1}, v12')
        A('v_fmac_f32 v14, v22, v22'); A('v_fmac_f32 v15, v23, v23')
    A('v_add_f32 v14, v14, v15')
    red8('v_add_f32', [14], [15]); rows_add(14, 15)
    A('v_mul_f32 v14, s39, v14')
    bf16r(12, 12)
    bf16r(14, 14)
    A(f'v_add_f32 v14, {f2u(1e-5):#x}, v14')
    bf16r(14, 14)
    A('v_sqrt_f32 v14, v14')
    bf16r(14, 14)
    A('v_rcp_f32 v14, v14')
    A(f's_waitcnt vmcnt({21 if loc else 20})')
    for j in range(10):
        A(f'v_lshlrev_b32 v{XF+2*j}, 16, v{XN+j}'); A(f'v_and_b32 v{XF+2*j+1}, 0xffff0000, v{XN+j}')
        A(f'v_sub_f32 v{XF+2*j}, v{XF+2*j}, v12'); A(f'v_sub_f32 v{XF+2*j+1}, v{XF+2*j+1}, v12')
        A(f'v_cvt_pk_bf16_f32 v{XN+j}, v{XF+2*j}, v{XF+2*j+1}')
    for j in range(10):
        A(f'v_lshlrev_b32 v{XF+2*j}, 16, v{XN+j}'); A(f'v_and_b32 v{XF+2*j+1}, 0xffff0000, v{XN+j}')
        A(f'v_mul_f32 v{XF+2*j}, v14, v{XF+2*j}'); A(f'v_mul_f32 v{XF+2*j+1}, v14, v{XF+2*j+1}')
        A(f'v_cvt_pk_bf16_f32 v{XN+j}, v{XF+2*j}, v{XF+2*j+1}')
    A('s_waitcnt lgkmcnt(0)')
    make_tag()
    stamp(1)
    tagregs(TG)
    def pb(i, src):
        dst = HA0 if i % 2 == 0 else HA1
        for r in range(4):
            A(f'v_perm_b32 v{dst+r}, v{src+(i>>1)}, v{src+(i>>1)}, v{SEL+4*(i&1)+r}')
    pb(0, XN)
    for i in range(20):
        if i < 19: pb(i + 1, XN)
        if i % 4 == 0: A(f's_waitcnt vmcnt({19 - (i + 3) + (1 if loc else 0)})')
        src = HA0 if i % 2 == 0 else HA1
        c = '0' if i == 0 else f'v[{HACC}:{HACC+3}]'
        A(f'v_mfma_f32_16x16x32_bf16 v[{HACC}:{HACC+3}], v[{src}:{src+3}], v[{BUF+4*i}:{BUF+4*i+3}], {c}')
    entag(16, HACC, TG, rnd=True)
    if noex & 1:
        A('s_cmp_eq_u32 s3, 0'); A('s_cbranch_scc1 L_qd')
    if noex & 2:
        A('s_cmp_lg_u32 s3, 0'); A('s_cbranch_scc1 L_end')
    if loc:
        A('s_waitcnt vmcnt(0)')
        hdr_check(24)
        A('s_cselect_b32 s62, 1, 0')
        A('s_cbranch_scc0 L_g1s')
        A(f'buffer_store_dwordx4 v[16:19], v{VST}, s[48:51], s59 offen')
        A('s_branch L_g1t')
        A('L_g1s:')
    A(f'buffer_store_dwordx4 v[16:19], v{VST}, s[48:51], s59 offen sc1')
    A('L_g1t:')
    stamp(2)
    A('s_cmp_eq_u32 s3, 0'); A('s_cbranch_scc1 L_hq2')
    write_stamps(1)
    A('s_endpgm')
    A('L_hq2:')
    A('v_and_b32 v24, 31, v1'); A('v_lshlrev_b32 v24, 4, v24'); A('v_lshrrev_b32 v25, 5, v1'); A('v_lshl_add_u32 v24, v25, 10, v24')
    A('s_lshl_b32 s56, s34, 13'); A('s_lshl_b32 s39, s36, 9'); A('s_add_u32 s56, s56, s39'); A(f's_add_u32 s56, s56, {W_QP}'); A('s_add_u32 s57, s56, 4096')
    if loc and qsl >= 0:
        A('s_cmp_eq_u32 s62, 1'); A('s_cbranch_scc0 L_qa')
        if qsl: A(f's_sleep {qsl}')
        A('s_branch L_qb')
        A('L_qa:')
    A('s_waitcnt vmcnt(0)')
    A('L_qb:')
    stamp(3)
    A(f's_mov_b32 s67, {SPIN}')
    A('s_movk_i32 s62, 0xf')
    A('L_qw:')
    for j in range(4):
        A(f's_bitcmp1_b32 s62, {j}'); A(f's_cbranch_scc0 L_qs{j}')
        A(f'buffer_load_dwordx4 v[{XF+16+4*j}:{XF+16+4*j+3}], v24, s[48:51], s{56 + (j >> 1)} offen offset:{(j&1)*2048} sc1')
        A(f'L_qs{j}:')
    A('s_waitcnt vmcnt(0)')
    A('s_mov_b32 s62, 0')
    for j in range(4):
        b = XF + 4 * j
        for r in range(4): A(f'v_xor_b32 v{b+r}, v{TG+r}, v{b+16+r}')
        A(f'v_or3_b32 v25, v{b}, v{b+1}, v{b+2}'); A(f'v_or_b32 v25, v25, v{b+3}'); A(f'v_and_b32 v25, v{TG+4}, v25')
        A('v_cmp_ne_u32 vcc, 0, v25')
        A('s_nop 0')
        A('s_cmp_lg_u64 vcc, 0'); A(f's_cselect_b32 s39, {1 << j}, 0'); A('s_or_b32 s62, s62, s39')
    A('s_cbranch_scc0 L_qd')
    A('s_sub_u32 s67, s67, 1'); A('s_cmp_lg_u32 s67, 0'); A('s_cbranch_scc1 L_qw')
    A('L_qd:')
    for r in range(4):
        A(f'v_add_f32 v{XF+r}, v{XF+r}, v{XF+4+r}'); A(f'v_add_f32 v{XF+8+r}, v{XF+8+r}, v{XF+12+r}')
    for r in range(4): A(f'v_add_f32 v{XF+r}, v{XF+r}, v{XF+8+r}')
    A(f'v_permlane32_swap_b32 v{XF}, v{XF+2}'); A(f'v_permlane32_swap_b32 v{XF+1}, v{XF+3}')
    A(f'v_add_f32 v{XF}, v{XF}, v{XF+2}'); A(f'v_add_f32 v{XF+1}, v{XF+1}, v{XF+3}')
    A(f'v_cvt_pk_bf16_f32 v{XF}, v{XF}, v{XF+1}')
    A('v_and_b32 v22, 31, v1'); A('v_lshlrev_b32 v22, 3, v22'); A('v_lshrrev_b32 v23, 5, v1'); A('v_lshl_add_u32 v22, v23, 2, v22')
    A(f'ds_write_b32 v22, v{XF} offset:{L_Q}')
    A('v_mov_b32 v28, 1'); A(f'v_mov_b32 v26, {L_QRDY}')
    A('s_waitcnt lgkmcnt(0)')
    A('ds_write_b32 v26, v28')
    stamp(4)
    A(f's_sub_u32 s61, s2, {C0}')
    A('s_cmp_lt_u32 s61, 80'); A('s_cbranch_scc1 L_gate')
    write_stamps(1)
    A('s_endpgm')
    A('L_gate:')
    A('v_lshrrev_b32 v26, 2, v1'); A('v_min_u32 v19, 13, v26'); A('v_mul_u32_u24 v26, 5120, v26'); A('v_mul_u32_u24 v19, 5120, v19')
    A('v_and_b32 v27, 3, v1'); A('v_lshl_add_u32 v26, v27, 4, v26'); A('v_lshl_add_u32 v19, v27, 4, v19')
    A('v_lshlrev_b32 v27, 3, v27')
    A('v_bfe_u32 v18, v1, 2, 2'); A('v_lshl_add_u32 v27, v18, 1, v27')
    A('s_lshl_b32 s60, s61, 5')
    A('buffer_load_ushort v20, v27, s[44:47], s60 offen')
    A('s_cmp_ge_u32 s61, 40'); A('s_cselect_b32 s58, 40, 0'); A('s_sub_u32 s59, s61, s58')
    A('s_lshl_b32 s57, s59, 5')
    A('s_mov_b32 s52, s26'); A('s_mov_b32 s53, s27'); A('s_mov_b32 s54, 1280'); A('s_mov_b32 s55, 0x20000')
    A('buffer_load_ushort v21, v27, s[52:55], s57 offen')
    A('s_mul_i32 s56, s59, 52'); A('s_lshr_b32 s56, s56, 8'); A('s_mul_i32 s56, s56, 320')
    A('s_lshl_b32 s57, s59, 6'); A('s_add_u32 s56, s56, s57'); A('s_lshl_b32 s58, s58, 3'); A('s_add_u32 s56, s56, s58')
    A(f's_add_u32 s8, s56, {W_G}')
    A(f's_add_u32 s56, s56, {W_Y}'); A(f's_add_u32 s57, s56, {16*5120}')
    A('s_mov_b32 s40, s28'); A('s_mov_b32 s41, s29'); A('s_movk_i32 s42, 2560')
    A('v_mov_b32 v28, s74'); A('v_mov_b32 v29, s75'); A('v_lshlrev_b32 v30, 24, v1')
    A('s_lshl_b32 s58, s61, 24'); A(f's_add_u32 s58, s58, {W_EP}')
    wait_lds(L_PROG, pG)
    if not (noex & 2): poll([f'buffer_load_dwordx4 v[{XF}:{XF+3}], v19, s[48:51], s8 offen sc1'], [XF], 18, sleep)
    A('v_cmp_gt_u32 vcc, 56, v1')
    for r in range(4): A(f'v_cndmask_b32 v{XF+r}, 0, v{XF+r}, vcc')
    col_reduce(XF, XF + 4, 18, 19)
    bf16r(18, 18)
    A('v_lshlrev_b32 v21, 16, v21'); A('v_lshlrev_b32 v20, 16, v20')
    A('v_add_f32 v18, v18, v21')
    bf16r(18, 18)
    A(f'v_mul_f32 v19, {f2u(-1.4426950408889634):#x}, v18')
    A('v_exp_f32 v19, v19')
    A('v_add_f32 v19, 1.0, v19')
    A('v_rcp_f32 v19, v19')
    A('v_mul_f32 v18, v18, v19')
    bf16r(22, 18)
    stamp(5)
    if fixdur:
        wait_lds(L_PROG, 5, slp=2); stamp(3)
    wait_lds(L_PROG, 8, slp=2 if fixdur else 8)
    if fixdur: stamp(4)
    wait_lds(L_CNT2, 5 if yack else 4, slp=0)
    if ysl: A(f's_sleep {ysl}')
    poll([f'buffer_load_dwordx4 v[{XF}:{XF+3}], v26, s[48:51], s56 offen {yldflags}', f'buffer_load_dwordx4 v[{XF+4}:{XF+7}], v26, s[48:51], s57 offen {yldflags}'], [XF, XF + 4], 18, ysl2)
    stamp(6)
    for r in range(4): A(f'v_add_f32 v{XF+r}, v{XF+r}, v{XF+4+r}')
    col_reduce(XF, XF + 4, 18, 19)
    bf16r(18, 18)
    A('v_mul_f32 v18, v18, v22')
    bf16r(18, 18)
    A('v_add_f32 v18, v18, v20')
    A('v_cvt_pk_bf16_f32 v18, v18, v18')
    A('buffer_store_short v18, v27, s[40:43], s60 offen')
    A('buffer_store_dwordx2 v[28:29], v30, s[48:51], s58 offen')
    stamp(7)
    if fixdur:
        A('s_waitcnt lgkmcnt(0)')
        A(f's_mov_b32 s92, {fixdur}')
        if amp >= 0:
            A(f's_sub_u32 s93, s{76+2*amp}, s76'); A('s_mul_i32 s93, s93, 10'); A('s_add_u32 s92, s92, s93')
        if amp2 >= 0:
            A(f's_sub_u32 s93, s{76+2*amp2}, s76'); A('s_lshr_b32 s93, s93, 6'); A('s_mul_i32 s93, s93, 20000'); A('s_add_u32 s92, s92, s93')
        A('L_fix:')
        A('s_memrealtime s[94:95]'); A('s_waitcnt lgkmcnt(0)')
        A('s_sub_u32 s94, s94, s76'); A('s_cmp_lt_u32 s94, s92'); A('s_cbranch_scc1 L_fix')
    write_stamps(2)
    A('s_endpgm')

    A('L_hm2:')
    TG2, B1, UU = 240, 224, 40
    A('s_mov_b32 s5, s56')
    A('s_mov_b32 s6, s4')
    A('s_lshl_b32 s59, s5, 3'); A('s_add_u32 s59, s59, s6'); A('s_mul_i32 s59, s59, 640'); A(f's_add_u32 s59, s59, {W_G}')
    A(f's_mul_i32 s56, s5, {128*1280}'); A('s_mul_i32 s57, s6, 160'); A('s_add_u32 s56, s56, s57')
    A(f's_sub_u32 s42, {1728*1280}, s56')
    A('s_waitcnt lgkmcnt(0)')
    A('s_add_u32 s40, s24, s56'); A('s_addc_u32 s41, s25, 0')
    load_tag()
    A('s_barrier')
    A('s_mov_b32 s48, s32'); A('s_mov_b32 s49, s33')
    A(f'v_mul_u32_u24 v16, {32*1280}, v2'); A('v_lshl_add_u32 v16, v3, 4, v16')
    A('v_mov_b32 v18, 0x40000000'); A('v_cmp_gt_u32 vcc, 10, v3'); A(f'v_cndmask_b32 v{VW}, v18, v16, vcc')
    A('v_lshrrev_b32 v16, 1, v2'); A('v_mul_u32_u24 v16, 320, v16'); A('v_lshl_add_u32 v16, v3, 5, v16')
    A('v_and_b32 v17, 1, v2'); A('v_lshl_add_u32 v16, v17, 4, v16'); A(f'v_cndmask_b32 v{VST}, v18, v16, vcc')
    selectors()
    A('v_and_b32 v94, 7, v3'); A('v_lshlrev_b32 v94, 10, v94'); A('v_lshrrev_b32 v95, 3, v3'); A('v_lshl_add_u32 v94, v95, 9, v94'); A('v_lshl_add_u32 v94, v2, 7, v94')
    A('s_mov_b32 s52, s22'); A('s_mov_b32 s53, s23'); A(f's_mov_b32 s54, {1728*2}'); A('s_mov_b32 s55, 0x20000')
    A('s_waitcnt lgkmcnt(0)')
    make_tag()
    tagregs(TG2)
    if wdum & 2:
        A('v_lshlrev_b32 v16, 4, v1'); A('v_mov_b32 v18, 0x40000000'); A('v_cmp_gt_u32 vcc, 40, v1'); A(f'v_cndmask_b32 v{VW}, v18, v16, vcc')
        A('s_lshl_b32 s39, s5, 3'); A('s_add_u32 s39, s39, s6'); A('s_mul_i32 s39, s39, 19456')
        A('s_add_u32 s40, s24, s39'); A('s_addc_u32 s41, s25, 0'); A('s_mov_b32 s42, 20480')
    A('s_mov_b32 s57, 0')
    for i in range(32):
        if i >= Dw: A(f's_waitcnt vmcnt({Dw - 1})')
        r = BUF + 4 * i
        A(f'buffer_load_dwordx4 v[{r}:{r+3}], v{VW}, s[40:43], s57 offen {woflags}')
        if i < 31: A(f's_addk_i32 s57, {640 if wdum & 2 else 1280}')
    A('s_lshl_b32 s57, s5, 8'); A('v_lshlrev_b32 v20, 6, v2')
    for j in range(4): A(f'buffer_load_dwordx4 v[{B1+4*j}:{B1+4*j+3}], v20, s[52:55], s57 offen offset:{16*j}')
    stamp(1)
    if noex & 2: A('s_endpgm')
    wait_lds(L_PROG, pH)
    A('s_lshl_b32 s56, s5, 13'); A(f's_add_u32 s56, s56, {W_H}')
    if hco:
        A('v_lshlrev_b32 v94, 4, v1'); A('s_add_u32 s57, s56, 4096')
        poll([f'buffer_load_dwordx4 v[{XF+4*j}:{XF+4*j+3}], v94, s[48:51], s{56 + (j >> 2)} offen offset:{1024*(j&3)} sc1' for j in range(8)], [XF + 4 * j for j in range(8)], 18, sleep)
    else:
        poll([f'buffer_load_dwordx4 v[{XF+4*j}:{XF+4*j+3}], v94, s[48:51], s56 offen offset:{16*j} sc1' for j in range(8)], [XF + 4 * j for j in range(8)], 18, sleep)
    for j in range(8): red8('v_add_f32', [XF + 4 * j + r for r in range(4)], [20 + r for r in range(4)])
    A('s_cmp_eq_u32 s5, 13'); A('s_cselect_b32 s39, 2, 4'); A('v_cmp_gt_u32 vcc, s39, v2')
    for j in range(32):
        bf16r(XF + j, XF + j)
        if j % 2 == 0: A(f'v_lshlrev_b32 v18, 16, v{B1+j//2}')
        else: A(f'v_and_b32 v18, 0xffff0000, v{B1+j//2}')
        A(f'v_add_f32 v{XF+j}, v{XF+j}, v18')
        bf16r(XF + j, XF + j)
        A(f'v_max_f32 v{XF+j}, 0, v{XF+j}')
        A(f'v_mul_f32 v{XF+j}, v{XF+j}, v{XF+j}')
        if j % 2 == 1:
            A(f'v_cvt_pk_bf16_f32 v{UU+j//2}, v{XF+j-1}, v{XF+j}'); A(f'v_cndmask_b32 v{UU+j//2}, 0, v{UU+j//2}, vcc')
    pb(0, UU)
    for i in range(32):
        if i < 31: pb(i + 1, UU)
        src = HA0 if i % 2 == 0 else HA1
        c = '0' if i == 0 else f'v[{HACC}:{HACC+3}]'
        A(f'v_mfma_f32_16x16x32_bf16 v[{HACC}:{HACC+3}], v[{src}:{src+3}], v[{BUF+4*i}:{BUF+4*i+3}], {c}')
    entag(20, HACC, TG2, rnd=True)
    A(f'buffer_store_dwordx4 v[20:23], v{VST}, s[48:51], s59 offen sc1')
    stamp(5)
    write_stamps(1)
    A('s_endpgm')
    A('L_hp:')
    if cpf:
        A('s_getpc_b64 s[60:61]')
        A('L_pc:')
        A(f's_sub_u32 s60, s60, L_pc-{NAME}_kernel'); A('s_subb_u32 s61, s61, 0')
        A(f's_mov_b32 s62, L_end-{NAME}_kernel'); A('s_mov_b32 s63, 0x20000')
        A('s_lshr_b32 s39, s2, 3'); A('s_lshl_b32 s39, s39, 10'); A('v_lshlrev_b32 v6, 4, v1')
        A('buffer_load_dwordx4 v[8:11], v6, s[60:63], s39 offen')
    A('v_mov_b32 v4, 0'); A('v_lshlrev_b32 v5, 2, v1')
    A(f'ds_write_b32 v5, v4 offset:{L_PROG}')
    if tlb:
        A('s_lshl_b32 s56, s35, 21'); A('s_lshl_b32 s57, s37, 19'); A('s_add_u32 s56, s56, s57')
        A(f's_mul_i32 s58, s34, {128*1280}')
        A('v_mov_b32 v16, s56'); A('v_mov_b32 v17, s58'); A('v_mov_b32 v18, 0'); A(f'v_mov_b32 v19, {W_Y}'); A('v_mov_b32 v20, 0x200000')
    A('s_waitcnt lgkmcnt(0)')
    if tlb:
        A('s_mov_b64 exec, 1')
        A('global_load_dword v24, v17, s[16:17] nt')
        A('global_load_dword v25, v18, s[20:21] nt')
        A('global_load_dword v26, v18, s[24:25] nt')
        A('global_load_dword v27, v20, s[20:21] nt')
        A('global_load_dword v28, v20, s[24:25] nt')
        if tlb > 1:
            A('global_load_dword v29, v16, s[12:13] nt')
            A('global_load_dword v30, v18, s[32:33] nt')
            A('global_load_dword v31, v19, s[32:33] nt')
            A('global_load_dword v32, v18, s[22:23] nt')
            A('global_load_dword v33, v18, s[26:27] nt')
            A('global_load_dword v34, v18, s[28:29] nt')
        A('s_mov_b64 exec, -1')
    load_tag()
    A('s_mov_b32 s48, s32'); A('s_mov_b32 s49, s33')
    A('v_and_b32 v94, 7, v3'); A('v_lshrrev_b32 v95, 3, v3')
    A('s_getreg_b32 s39, hwreg(HW_REG_XCC_ID, 0, 4)')
    A('v_mov_b32 v20, s39'); A('v_mov_b32 v22, 0'); A('v_lshlrev_b32 v24, 24, v1')
    A('s_lshl_b32 s39, s34, 3'); A('s_add_u32 s39, s39, s4'); A('s_lshl_b32 s39, s39, 4'); A(f's_add_u32 s39, s39, {W_HD}')
    A('s_waitcnt lgkmcnt(0)')
    make_tag()
    A('v_mov_b32 v21, s74'); A('v_mov_b32 v23, s75')
    A('buffer_store_dwordx4 v[20:23], v24, s[48:51], s39 offen')
    A('s_barrier')
    wait_lds(L_PROG, 1)
    hdr_load(40, 30, 's34')
    A('s_waitcnt vmcnt(0)')
    hdr_check(40)
    A('s_cselect_b32 s46, 1, 2')
    if ctl:
        wait_lds(L_PROG, 2, slp=2)
        A('s_memrealtime s[8:9]')
        wait_lds(L_PROG, 4, slp=2)
        A('s_memrealtime s[10:11]')
        A('s_waitcnt lgkmcnt(0)')
        A('v_mov_b32 v20, s8'); A('v_mov_b32 v21, s74'); A('v_mov_b32 v22, s10'); A('v_mov_b32 v23, s75')
        A('v_lshlrev_b32 v24, 24, v1')
        if ts64:
            A('s_lshr_b32 s39, s2, 5'); A('s_lshl_b32 s39, s39, 3'); A('s_and_b32 s12, s2, 7'); A('s_add_u32 s39, s39, s12'); A('s_lshl_b32 s39, s39, 4')
            A('s_lshl_b32 s12, s37, 24'); A('s_add_u32 s39, s39, s12')
            A(f's_add_u32 s39, s39, {W_TS}')
        else:
            A('s_lshl_b32 s39, s2, 4'); A(f's_add_u32 s39, s39, {W_TS}')
        A('buffer_store_dwordx4 v[20:23], v24, s[48:51], s39 offen sc1')
        wait_lds(L_PROG, 5, slp=4)
        A('v_lshlrev_b32 v24, 4, v1'); A(f's_mov_b32 s39, {W_TS}')
        NTS = 1 if ts64 else 4
        for j in range(NTS):
            A(f'buffer_load_dwordx4 v[{XF+4*j}:{XF+4*j+3}], v24, s[48:51], s39 offen offset:{j*1024} sc1')
        A('v_mov_b32 v26, 0'); A('v_mov_b32 v27, 0')
        A('s_sub_u32 s12, s8, s10')
        A('v_mov_b32 v28, s12')
        A('s_waitcnt vmcnt(0)')
        for j in range(NTS):
            b = XF + 4 * j
            A(f'v_cmp_eq_u32 vcc, s74, v{b+1}')
            A(f'v_subrev_u32 v{b}, s10, v{b}'); A(f'v_subrev_u32 v{b+2}, s10, v{b+2}')
            A(f'v_cndmask_b32 v{b}, v28, v{b}, vcc'); A(f'v_cndmask_b32 v{b+2}, 0, v{b+2}, vcc')
            A(f'v_add_u32 v26, v26, v{b}'); A(f'v_add_u32 v27, v27, v{b+2}')
        red8('v_add_u32', [26, 27], [29, 30])
        A(f'v_add_u32_dpp v26, v26, v26 row_ror:8 {DPPF}'); A(f'v_add_u32_dpp v27, v27, v27 row_ror:8 {DPPF}')
        rows_add(26, 29, 'v_add_u32'); rows_add(27, 30, 'v_add_u32')
        A('v_readfirstlane_b32 s12, v26'); A('v_readfirstlane_b32 s13, v27')
        A('s_sub_u32 s14, s13, s12')
        A(f's_mul_i32 s14, s14, {cscale}'); A(f's_ashr_i32 s14, s14, {14 if ts64 else 16}')
        A(f's_ashr_i32 s13, s13, {2 if ts64 else 4}')
        A(f's_add_u32 s15, s10, {cmargin}'); A('s_lshl_b32 s15, s15, 4'); A('s_add_u32 s15, s15, s13')
        A('s_lshl_b32 s12, s14, 3'); A('s_add_u32 s15, s15, s12')
        A('v_mov_b32 v26, s15'); A('v_mov_b32 v27, s14'); A(f'v_mov_b32 v28, {L_CTL}')
        A('ds_write_b64 v28, v[26:27]')
    if mlwg:
        wait_lds(L_CNT0, 4, slp=4)
        A('v_and_b32 v16, 3, v1'); A('v_lshlrev_b32 v16, 4, v16')
        A(f'ds_read_b128 v[20:23], v16 offset:{L_ML}')
        A('v_lshrrev_b32 v17, 2, v1'); A('v_lshl_add_u32 v16, v17, 24, v16')
        A('s_lshl_b32 s39, s35, 8'); A('s_lshl_b32 s56, s37, 6'); A('s_add_u32 s39, s39, s56')
        A('s_waitcnt lgkmcnt(0)')
        A('s_cmp_eq_u32 s46, 1'); A('s_cbranch_scc0 L_mls')
        A('buffer_store_dwordx4 v[20:23], v16, s[48:51], s39 offen')
        A('s_branch L_mlt')
        A('L_mls:')
        A('buffer_store_dwordx4 v[20:23], v16, s[48:51], s39 offen sc1')
        A('L_mlt:')
    wait_lds(L_PROG, pML)
    A('v_lshlrev_b32 v16, 4, v3')
    A('s_lshl_b32 s39, s35, 8')
    polltag(['buffer_load_dwordx4 v[20:23], v16, s[48:51], s39 offen sc1'], [20], 18, sleep)
    A('v_mov_b32 v28, v20')
    red8('v_max_f32', [28], [29])
    A(f'v_max_f32_dpp v28, v28, v28 row_ror:8 {DPPF}')
    A('v_sub_f32 v20, v20, v28')
    A('v_exp_f32 v20, v20')
    A('v_mul_f32 v22, v22, v20')
    red8('v_add_f32', [22], [29])
    A(f'v_add_f32_dpp v22, v22, v22 row_ror:8 {DPPF}')
    A('v_rcp_f32 v22, v22')
    A('v_mul_f32 v44, v20, v22')
    A('s_lshl_b32 s56, s37, 2')
    A('v_subrev_u32 v16, s56, v1'); A('v_lshlrev_b32 v16, 2, v16')
    A('s_lshl_b64 exec, 15, s56')
    A(f'ds_write_b32 v16, v44 offset:{L_W4}')
    A('s_mov_b64 exec, -1')
    A('v_mov_b32 v21, s46'); A(f'v_mov_b32 v23, {L_FAST}')
    A('s_waitcnt lgkmcnt(0)')
    A('ds_write_b32 v23, v21')
    if touch:
        A('v_lshlrev_b32 v16, 4, v1'); A('s_lshl_b32 s39, s34, 12'); A(f's_add_u32 s39, s39, {W_O}')
        wait_lds(L_PROG, 7, va=18, vt=19)
        A('s_lshl_b32 s39, s34, 12'); A(f's_add_u32 s39, s39, {W_O}')
        if touch1:
            A('s_lshl_b32 s56, s4, 9'); A('s_add_u32 s39, s39, s56'); A('v_lshlrev_b32 v16, 3, v1')
            A(f'buffer_load_dwordx2 v[{XF}:{XF+1}], v16, s[48:51], s39 offen')
        else:
            for j in range(4): A(f'buffer_load_dwordx4 v[{XF+4*j}:{XF+4*j+3}], v16, s[48:51], s39 offen offset:{j*1024}')
    stamp(2)
    write_stamps(1)
    A('L_end:')
    A('s_endpgm')
    body = a.finalize()
    out = HEADER
    out += f'; @launch grid=(256,1,1) block=(448,1,1) lds={L_TOTAL}\n'
    out += '.amdgcn_target "amdgcn-amd-amdhsa--gfx950"\n.text\n'
    out += f'.globl {NAME}_kernel\n.p2align 8\n.type {NAME}_kernel,@function\n'
    out += body
    out += f'''.section .rodata,"a"
.p2align 6
.amdhsa_kernel {NAME}_kernel
  .amdhsa_next_free_vgpr 256
  .amdhsa_next_free_sgpr 100
  .amdhsa_accum_offset 256
  .amdhsa_group_segment_fixed_size 0
  .amdhsa_kernarg_size 104
  .amdhsa_user_sgpr_count 2
  .amdhsa_user_sgpr_kernarg_segment_ptr 1
  .amdhsa_system_sgpr_workgroup_id_x 1
.end_amdhsa_kernel
'''
    return out

if __name__ == '__main__':
    ap = argparse.ArgumentParser()
    ap.add_argument('out')
    ap.add_argument('opts', nargs='*')
    args = ap.parse_args()
    kw = {}
    for o in args.opts:
        k, v = o.split('=')
        kw[k] = v if k.endswith('flags') else int(v)
    open(args.out, 'w').write(gen(**kw))
```

```python
import sys, struct, argparse
from asmlib import Asm
NAME = 'recurrent_scan__mha_block_cached__dense_activation_squared_relu__decode'
def f2u(x): return struct.unpack('<I', struct.pack('<f', x))[0]
HEADER = open('cdna_kernels/' + NAME + '.s.ref').read().split('; Override launch')[0]

L_Q, L_PROG, L_FAST, L_CTL, L_QRDY, L_CNT1, L_CNT2, L_W4, L_CNT0, L_ML, L_OP, L_YP, L_TOTAL = 0, 256, 260, 264, 272, 276, 280, 288, 284, 320, 512, 4608, 8704
W_HD = 0xA000
W_ML, W_TS, W_EP, W_H, W_QP, W_O, W_G, W_Y, W_SIZE = 0, 0x8000, 0xC000, 0x10000, 0x40000, 0x80000, 0x100000, 0x200000, 0x400000
N1, N2, C0 = 112, 128, 176

def gen(D=5, D0=4, D0n=14, stamps=0, mimic=0, kvflags='nt', wflags='nt', sleep=32, fixdur=0, amp=-1,
        pH=1, pG=4, pML=6, Dw=8, ctl=1, cmargin=0, cscale=256, Dhi=8, fast=1, prestore=1, yack=0, ysl=18, ysl2=0, ypre=0, yldflags='sc1', ystflags='sc1', D00=6, Dm=10, gsl=28, Dlo=4, lead=60, dryp=0, dryc=0, oldflags='sc1', woflags='nt', wo0=8, wos=3, touch=1, gwait=0, gcnt=0, gearly=0, ts64=1, touch1=1, mlwg=1, pst=0, wdum=0, noex=0, tlb=0, D1=0, D1n=0, ka=1, cpf=1, bj=9, wlflags='41010110', loc=1, qsl=-1, amp2=-1, Dmid=6, far=50, prio=1, hco=1, lastg=1, kpflags='0000'):
    if fixdur: stamps = 1
    a = Asm(); A = a
    SPIN = 0x20000
    cnt = [0]
    def uid():
        cnt[0] += 1; return cnt[0]
    def stamp(i):
        if stamps: A(f's_memrealtime s[{76+2*i}:{77+2*i}]')
    def write_stamps(role):
        if not stamps or fixdur: return
        n = uid()
        A('s_waitcnt lgkmcnt(0)')
        if role == 1:
            wait_lds(L_CNT2, 4)
        A('s_mov_b64 exec, -1')
        A('s_add_u32 s92, s32, 0x10000000'); A('s_addc_u32 s93, s33, 0'); A('s_mov_b32 s94, 0x100000'); A('s_mov_b32 s95, 0x20000')
        A('s_lshl_b32 s39, s2, 8')
        if role != 0:
            A('s_add_u32 s56, s3, 1'); A('s_lshl_b32 s56, s56, 6'); A('s_add_u32 s39, s39, s56')
        A('v_and_b32 v2, 63, v0'); A('v_lshlrev_b32 v2, 24, v2')
        for q in range(4):
            for r in range(4): A(f'v_mov_b32 v{4+4*q+r}, s{76+4*q+r}')
            A(f'buffer_store_dwordx4 v[{4+4*q}:{7+4*q}], v2, s[92:95], s39 offen offset:{16*q}')
        A(f'L_nostamp{n}:')
    def bf16r(dst, src):
        A(f'v_cvt_pk_bf16_f32 v{dst}, v{src}, v{src}')
        A(f'v_lshlrev_b32 v{dst}, 16, v{dst}')
    DPPF = 'row_mask:0xf bank_mask:0xf'
    def red8(op, regs, tmps):
        for r, t in zip(regs, tmps): A(f'{op}_dpp v{t}, v{r}, v{r} quad_perm:[1,0,3,2] {DPPF}')
        for r, t in zip(regs, tmps): A(f'{op}_dpp v{r}, v{t}, v{t} quad_perm:[2,3,0,1] {DPPF}')
        for r, t in zip(regs, tmps): A(f'{op}_dpp v{r}, v{r}, v{r} row_half_mirror {DPPF}')
    def rows_add(r, t, op='v_add_f32'):
        A(f'v_mov_b32 v{t}, v{r}'); A(f'v_permlane16_swap_b32 v{r}, v{t}'); A(f'{op} v{r}, v{r}, v{t}')
        A(f'v_mov_b32 v{t}, v{r}'); A(f'v_permlane32_swap_b32 v{r}, v{t}'); A(f'{op} v{r}, v{r}, v{t}')
    def col_reduce(x, y, t0, t1):
        for r in range(4): A(f'v_add_f32_dpp v{y+r}, v{x+r}, v{x+r} row_ror:4 {DPPF}')
        for r in range(4): A(f'v_add_f32_dpp v{t0}, v{y+r}, v{y+r} row_ror:8 row_mask:0xf bank_mask:{1<<r:#x}')
        rows_add(t0, t1)
    def wait_lds(addr, level, va=16, vt=17, slp=8):
        n = uid()
        A(f's_mov_b32 s67, {SPIN*8}')
        A(f'v_mov_b32 v{va}, {addr}')
        A(f'L_pw{n}:')
        A(f'ds_read_b32 v{vt}, v{va}'); A('s_waitcnt lgkmcnt(0)')
        A(f'v_readfirstlane_b32 s39, v{vt}')
        A(f's_cmp_ge_u32 s39, {level}'); A(f's_cbranch_scc1 L_pd{n}')
        if slp: A(f's_sleep {slp}')
        A('s_sub_u32 s67, s67, 1'); A('s_cmp_lg_u32 s67, 0'); A(f's_cbranch_scc1 L_pw{n}')
        A(f'L_pd{n}:')
    def wait_q(slp=4):
        wait_lds(L_QRDY, 1, slp=slp)
    def spin_tail(n, slp):
        A('s_nop 1')
        A('s_cmp_eq_u64 vcc, 0'); A(f's_cbranch_scc1 L_gd{n}')
        if slp: A(f's_sleep {slp}')
        A('s_sub_u32 s67, s67, 1'); A('s_cmp_lg_u32 s67, 0'); A(f's_cbranch_scc1 L_gw{n}')
        A(f'L_gd{n}:')
    def polltag(loads, bases, t, slp):
        n = uid()
        A(f's_mov_b32 s67, {SPIN}')
        A(f'L_gw{n}:')
        for l in loads: A(l)
        A('s_waitcnt vmcnt(0)')
        for k, b in enumerate(bases):
            A(f'v_xor_b32 v{b+1}, s74, v{b+1}'); A(f'v_xor_b32 v{b+3}, s75, v{b+3}')
            if k == 0: A(f'v_or_b32 v{t}, v{b+1}, v{b+3}')
            else: A(f'v_or3_b32 v{t}, v{t}, v{b+1}, v{b+3}')
        A(f'v_cmp_ne_u32 vcc, 0, v{t}')
        spin_tail(n, slp)
    def untag(quads, t):
        first = True
        for b in quads:
            for r in range(4): A(f'v_xor_b32 v{b+r}, s{70+r}, v{b+r}')
            if first:
                A(f'v_or3_b32 v{t}, v{b}, v{b+1}, v{b+2}'); A(f'v_or_b32 v{t}, v{t}, v{b+3}'); first = False
            else:
                A(f'v_or3_b32 v{t}, v{t}, v{b}, v{b+1}'); A(f'v_or3_b32 v{t}, v{t}, v{b+2}, v{b+3}')
        A(f'v_and_b32 v{t}, 0xfff, v{t}')
    def poll(loads, quads, t, slp, init=True):
        n = uid()
        if init: A(f's_mov_b32 s67, {SPIN}')
        A(f'L_gw{n}:')
        for l in loads: A(l)
        A('s_waitcnt vmcnt(0)')
        untag(quads, t)
        A(f'v_cmp_ne_u32 vcc, 0, v{t}')
        spin_tail(n, slp)
    def tagregs(base):
        for r in range(4): A(f'v_mov_b32 v{base+r}, s{70+r}')
        A(f'v_mov_b32 v{base+4}, 0xfff')
    def entag(dst, src, tb, rnd=False):
        for r in range(4):
            if rnd:
                A(f'v_add_u32 v{dst+r}, 0x800, v{src+r}'); A(f'v_bfi_b32 v{dst+r}, v{tb+4}, v{tb+r}, v{dst+r}')
            else:
                A(f'v_bfi_b32 v{dst+r}, v{tb+4}, v{tb+r}, v{src+r}')
    def selectors(SEL=4, t=12):
        A(f'v_and_b32 v{t}, 7, v3'); A(f'v_lshrrev_b32 v{t+1}, 1, v{t}'); A(f'v_and_b32 v{t}, 1, v{t}')
        A(f'v_mov_b32 v{t+2}, 0x0c0c0c0c')
        A(f'v_cmp_eq_u32 vcc, 1, v{t}')
        A(f'v_mov_b32 v{t+3}, 0x0c0c0100'); A(f'v_mov_b32 v{t+4}, 0x01000c0c'); A(f'v_cndmask_b32 v{t+3}, v{t+3}, v{t+4}, vcc')
        A(f'v_mov_b32 v{t+5}, 0x0c0c0302'); A(f'v_mov_b32 v{t+4}, 0x03020c0c'); A(f'v_cndmask_b32 v{t+5}, v{t+5}, v{t+4}, vcc')
        for r in range(4):
            A(f'v_cmp_eq_u32 vcc, {r}, v{t+1}')
            A(f'v_cndmask_b32 v{SEL+r}, v{t+2}, v{t+3}, vcc')
            A(f'v_cndmask_b32 v{SEL+4+r}, v{t+2}, v{t+5}, vcc')
    def hdr_load(dst, va, line_sreg):
        A(f'v_and_b32 v{va}, 7, v1'); A(f'v_lshlrev_b32 v{va}, 4, v{va}')
        A(f's_lshl_b32 s39, {line_sreg}, 7'); A(f's_add_u32 s39, s39, {W_HD}')
        A(f'buffer_load_dwordx4 v[{dst}:{dst+3}], v{va}, s[48:51], s39 offen sc1')
    def hdr_check(dst):
        A('s_getreg_b32 s39, hwreg(HW_REG_XCC_ID, 0, 4)')
        A(f'v_xor_b32 v{dst}, s39, v{dst}'); A(f'v_xor_b32 v{dst+1}, s74, v{dst+1}'); A(f'v_xor_b32 v{dst+3}, s75, v{dst+3}')
        A(f'v_or3_b32 v{dst}, v{dst}, v{dst+1}, v{dst+3}')
        A(f'v_cmp_ne_u32 vcc, 0, v{dst}')
        A('s_nop 1')
        A('s_cmp_eq_u64 vcc, 0')
    def load_tag():
        A(f's_load_dwordx2 s[74:75], s[32:33], {W_EP}')
    def make_tag():
        A('s_add_u32 s74, s74, 0x7f4a7c15'); A('s_addc_u32 s75, s75, 0x9e3779b9')
        A('s_and_b32 s70, s74, 0xfff'); A('s_bfe_u32 s71, s74, 0xc000c')
        A('s_lshr_b64 s[72:73], s[74:75], 24'); A('s_bfe_u32 s73, s72, 0xc000c'); A('s_and_b32 s72, s72, 0xfff')

    A(f'{NAME}_kernel:')
    def rest_args():
        if ka:
            A('s_load_dwordx8 s[16:23], s[0:1], 32'); A('s_load_dwordx8 s[24:31], s[0:1], 64'); A('s_load_dwordx2 s[32:33], s[0:1], 96')
    if ka:
        A('s_load_dwordx8 s[8:15], s[0:1], 0')
    else:
        A('s_load_dwordx16 s[8:23], s[0:1], 0')
        A('s_load_dwordx8 s[24:31], s[0:1], 64')
        A('s_load_dwordx2 s[32:33], s[0:1], 96')
    stamp(0)
    A('v_readfirstlane_b32 s3, v0')
    A('s_lshr_b32 s35, s2, 6')
    A('s_cmp_ge_u32 s35, 4'); A('s_cbranch_scc1 L_end')
    A('s_and_b32 s34, s2, 7'); A('s_lshl_b32 s34, s34, 2'); A('s_add_u32 s34, s34, s35')
    A('s_and_b32 s39, s2, 32'); A('s_add_u32 s35, s39, s34')
    A('s_lshr_b32 s4, s2, 3'); A('s_and_b32 s37, s4, 3')
    A('s_lshr_b32 s3, s3, 6')
    A('v_and_b32 v1, 63, v0')
    A('s_mov_b32 s43, 0x20000')
    def common2():
        A('s_and_b32 s4, s4, 7'); A('s_lshr_b32 s36, s4, 2')
        A(f's_mov_b32 s50, {W_SIZE}'); A('s_mov_b32 s51, 0x20000')
        A('v_bfe_u32 v2, v0, 4, 2')
        A('v_and_b32 v3, 15, v0')
    A('s_sub_u32 s38, s3, 3'); A('s_cbranch_scc1 L_helper')

    Q, MASK, ACC, A0, A1 = 4, 8, 12, 16, 20
    P0, T01, T23, U, U2, M, Lr, MN, E1, E2, PP, VO, LANE = 24, 28, 29, 30, 31, 32, 33, 34, 35, 36, 37, 38, 39
    S, RING, TG, WO, SSEL, VWO, VY, VL, ONE = 40, 72, 200, 208, 240, 248, 249, 250, 251
    A('s_lshl_b32 s56, s35, 2'); A('s_add_u32 s56, s56, s37'); A('s_lshl_b32 s56, s56, 7'); A('s_add_u32 s56, s56, s38'); A('s_lshl_b32 s56, s56, 12')
    A('s_mov_b32 s42, 0x7d000')
    A('v_lshlrev_b32 v1, 4, v1')
    A('s_and_b32 s57, s2, 31'); A('s_lshl_b32 s57, s57, 14')
    A('s_mov_b32 s58, 0x7ffff')
    A('s_waitcnt lgkmcnt(0)')
    A('s_add_u32 s40, s10, s56'); A('s_addc_u32 s41, s11, 0')
    first = [True]
    def issue(j, wait, dyn=False):
        i = j & 3
        if i == 0:
            if first[0]: first[0] = False
            else: A('s_addk_i32 s57, 0x4000'); A('s_and_b32 s57, s57, s58')
            if dyn: A('s_cmp_lg_u32 s98, 0')
        if wait is not None:
            if dyn:
                n = uid()
                A(f's_waitcnt vmcnt({Dhi-1})')
                if far:
                    A(f's_cbranch_vccz L_dl{n}'); A(f's_cbranch_scc1 L_dw{n}'); A(f's_waitcnt vmcnt({Dmid-1})'); A(f's_branch L_dw{n}'); A(f'L_dl{n}:')
                else:
                    A(f's_cbranch_vccnz L_dw{n}')
                A(f's_waitcnt vmcnt({wait})')
                A(f's_cbranch_scc0 L_dw{n}'); A(f's_waitcnt vmcnt({Dlo-1})')
                A(f'L_dw{n}:')
            else: A(f's_waitcnt vmcnt({wait})')
        r = RING + 4 * j
        A(f'buffer_load_dwordx4 v[{r}:{r+3}], v1, s[40:43], s57 offen offset:{i*1024} {kvflags}')
    F = D00 if D00 else D0
    seq = []
    def kwait(d):
        n = 0; k = 0
        for x in reversed(seq):
            if x == 'k':
                if k == d - 1: break
                k += 1
            n += 1
        return n
    for j in range(32):
        d = D0 if j < D0n else D
        if j < D1n: d = D1
        if j < F: issue(j, None)
        elif j == F: issue(j, kwait(F))
        else: issue(j, kwait(d))
        seq.append('k')
        if pst and j in (0, F, 12): A(f's_memrealtime s[{76+2*{0:1, F:5, 12:6}[j]}:{77+2*{0:1, F:5, 12:6}[j]}]')
        NEARLY = 8 - sum(int(c) for c in wlflags)
        if j >= wo0 and (j - wo0) % wos == 0 and (j - wo0) // wos < NEARLY:
            i = (j - wo0) // wos
            A(f's_movk_i32 s39, {i*(640 if wdum & 2 else 1280)}')
            A(f'buffer_load_dwordx4 v[{WO+4*i}:{WO+4*i+3}], v{VWO}, s[52:55], s39 offen {woflags}')
            seq.append('w')
        if j == F - 1:
            rest_args()
            common2()
            A(f'v_and_b32 v{LANE}, 63, v0')
            A('s_add_u32 s44, s12, s56'); A('s_addc_u32 s45, s13, 0')
            A('s_lshl_b32 s39, s34, 2'); A('s_add_u32 s39, s39, s38'); A(f's_mul_i32 s39, s39, {32*1280}'); A('s_mul_i32 s5, s4, 160'); A('s_add_u32 s39, s39, s5')
            A(f'v_mul_u32_u24 v16, {8*1280}, v2'); A('v_lshl_add_u32 v16, v3, 4, v16')
            A('v_mov_b32 v18, 0x40000000'); A('v_cmp_gt_u32 vcc, 10, v3'); A(f'v_cndmask_b32 v{VWO}, v18, v16, vcc')
            A('s_waitcnt lgkmcnt(0)')
            load_tag()
            A('s_add_u32 s52, s16, s39'); A('s_addc_u32 s53, s17, 0'); A(f's_sub_u32 s54, {4096*1280}, s39'); A('s_mov_b32 s55, 0x20000')
            A('s_mov_b32 s48, s32'); A('s_mov_b32 s49, s33')
        if j == bj: A('s_barrier')
        if j == 10:
            A('v_lshrrev_b32 v16, 1, v2'); A('v_mul_u32_u24 v16, 320, v16'); A('v_lshl_add_u32 v16, v3, 5, v16')
            A('v_and_b32 v17, 1, v2'); A('v_lshl_add_u32 v16, v17, 4, v16'); A(f'v_cndmask_b32 v{VY}, v18, v16, vcc')
            A('s_lshl_b32 s99, s34, 3'); A('s_add_u32 s99, s99, s4'); A('s_mul_i32 s99, s99, 640'); A(f's_add_u32 s99, s99, {W_Y}')
            A('v_lshlrev_b32 v16, 8, v3'); A('v_lshl_add_u32 v16, v17, 6, v16')
            A('v_lshrrev_b32 v17, 1, v2'); A(f'v_lshl_add_u32 v{VO}, v17, 24, v16')
            A('s_lshl_b32 s64, s34, 12'); A(f's_add_u32 s64, s64, {W_O}')
            A('s_lshl_b32 s66, s36, 7'); A('s_lshl_b32 s39, s37, 4'); A('s_add_u32 s66, s66, s39'); A('s_add_u32 s66, s66, s64')
            A('s_lshl_b32 s39, s38, 10'); A('s_add_u32 s47, s64, s39')
            A(f'v_add_u32 v{VL}, s39, v1')
            A(f'v_mov_b32 v{ONE}, 1')
        if j == 12:
            if prio: A(f's_setprio {prio}')
            selectors(SSEL, 24)
        if j == 14:
            A('v_and_b32 v16, 1, v3'); A('v_lshlrev_b32 v16, 4, v16'); A('v_mov_b32 v17, 0xffff'); A('v_lshlrev_b32 v16, v16, v17')
            A('v_lshrrev_b32 v17, 1, v3')
            for r in range(4):
                A(f'v_cmp_eq_u32 vcc, {r}, v17'); A(f'v_cndmask_b32 v{MASK+r}, 0, v16, vcc')
            A('v_lshlrev_b32 v3, 4, v3')
            A(f'v_mov_b32 v2, {L_PROG}')
            A(f'v_mov_b32 v{M}, 0xff7fffff'); A(f'v_mov_b32 v{Lr}, 0')
            for r in range(4): A(f'v_mov_b32 v{ACC+r}, 0')
            A(f's_mov_b32 s61, {f2u(1.4426950408889634 * 128 ** -0.5):#x}')
            if mimic: A(f's_mov_b32 s62, {f2u(128 ** -0.5):#x}'); A(f's_mov_b32 s63, {f2u(1.4426950408889634):#x}')
        if j == 16:
            A('s_waitcnt lgkmcnt(0)')
            make_tag()
            tagregs(TG)
    if pst: stamp(7)
    wait_q(slp=1)
    stamp(2)
    A(f'ds_read_b128 v[{Q}:{Q+3}], v3 offset:{L_Q}')
    A('s_mov_b32 s59, 0')
    A('s_waitcnt lgkmcnt(0)')
    A('L_kloop:')
    A('s_cmp_eq_u32 s59, 3')
    A('s_cselect_b32 s40, s44, s40'); A('s_cselect_b32 s41, s45, s41')
    A('s_add_u32 s59, s59, 1')
    A(f'v_mov_b32 v{PP}, s59')
    A(f'ds_max_u32 v2, v{PP}')
    for t in range(8):
        R = lambda i: RING + 4 * (4 * t + i)
        for i in range(4): A(f'v_dot2_f32_bf16 v{P0+i}, v{R(i)}, v{Q}, 0')
        for r in range(1, 4):
            for i in range(4): A(f'v_dot2c_f32_bf16 v{P0+i}, v{R(i)+r}, v{Q+r}')
        issue(4 * t + 0, D - 1 + int(kpflags[0]))
        A(f'v_add_f32_dpp v{T01}, v{P0}, v{P0} row_ror:8 row_mask:0xf bank_mask:0xf')
        A(f'v_add_f32_dpp v{T23}, v{P0+2}, v{P0+2} row_ror:8 row_mask:0xf bank_mask:0xf')
        A(f'v_add_f32_dpp v{T01}, v{P0+1}, v{P0+1} row_ror:8 row_mask:0xf bank_mask:0xc')
        A(f'v_add_f32_dpp v{T23}, v{P0+3}, v{P0+3} row_ror:8 row_mask:0xf bank_mask:0xc')
        A(f'v_mov_b32 v{S+t}, v{S+8+t}')
        A(f'v_add_f32_dpp v{U}, v{T01}, v{T01} row_half_mirror row_mask:0xf bank_mask:0xf')
        A(f'v_add_f32_dpp v{U}, v{T23}, v{T23} row_half_mirror row_mask:0xf bank_mask:0xa')
        A(f'v_mov_b32 v{S+8+t}, v{S+16+t}')
        A(f'v_mov_b32 v{S+16+t}, v{S+24+t}')
        A(f'v_add_f32_dpp v{U2}, v{U}, v{U} quad_perm:[1,0,3,2] row_mask:0xf bank_mask:0xf')
        issue(4 * t + 1, D - 1 + int(kpflags[1]))
        A(f'v_add_f32_dpp v{U}, v{U2}, v{U2} quad_perm:[2,3,0,1] row_mask:0xf bank_mask:0xf')
        if mimic:
            bf16r(U, U)
            A(f'v_mul_f32 v{U}, s62, v{U}')
            bf16r(U, U)
            A(f'v_mul_f32 v{S+24+t}, s63, v{U}')
        else:
            A(f'v_mul_f32 v{S+24+t}, s61, v{U}')
        A(f'v_max_f32 v{MN}, v{M}, v{S+24+t}')
        A(f'v_sub_f32 v{E1}, v{M}, v{MN}')
        A(f'v_sub_f32 v{E2}, v{S+24+t}, v{MN}')
        A(f'v_exp_f32 v{E1}, v{E1}')
        A(f'v_exp_f32 v{E2}, v{E2}')
        A(f'v_mov_b32 v{M}, v{MN}')
        A(f'v_fma_f32 v{Lr}, v{Lr}, v{E1}, v{E2}')
        issue(4 * t + 2, D - 1 + int(kpflags[2]))
        issue(4 * t + 3, D - 1 + int(kpflags[3]))
    A('s_cmp_lt_u32 s59, 4'); A('s_cbranch_scc1 L_kloop')
    stamp(3)
    A(f'v_max_f32_dpp v{E1}, v{M}, v{M} row_ror:4 row_mask:0xf bank_mask:0xf')
    A(f'v_max_f32_dpp v{E2}, v{E1}, v{E1} row_ror:8 row_mask:0xf bank_mask:0xf')
    A(f'v_max_f32_dpp v{E2}, v{E2}, v{E2} row_bcast:15 row_mask:0xa bank_mask:0xf')
    A(f'v_max_f32_dpp v{E2}, v{E2}, v{E2} row_bcast:31 row_mask:0xc bank_mask:0xf')
    A(f'v_readlane_b32 s60, v{E2}, 63')
    A(f'v_subrev_f32 v{E1}, s60, v{M}')
    A(f'v_exp_f32 v{E1}, v{E1}')
    A(f'v_mul_f32 v{Lr}, v{Lr}, v{E1}')
    A(f'v_add_f32_dpp v{E1}, v{Lr}, v{Lr} row_ror:4 row_mask:0xf bank_mask:0xf')
    A(f'v_add_f32_dpp v{E2}, v{E1}, v{E1} row_ror:8 row_mask:0xf bank_mask:0xf')
    A(f'v_add_f32_dpp v{E2}, v{E2}, v{E2} row_bcast:15 row_mask:0xa bank_mask:0xf')
    A(f'v_add_f32_dpp v{E2}, v{E2}, v{E2} row_bcast:31 row_mask:0xc bank_mask:0xf')
    A(f'v_readlane_b32 s64, v{E2}, 63')
    A(f'v_mov_b32 v{P0}, s60'); A(f'v_mov_b32 v{P0+1}, s74')
    A(f'v_lshlrev_b32 v{U}, 24, v{LANE}')
    A(f'v_mov_b32 v{P0+2}, s64'); A(f'v_mov_b32 v{P0+3}, s75')
    if mlwg:
        A('s_lshl_b32 s39, s38, 4'); A(f'v_mov_b32 v{U}, s39')
        A('s_mov_b64 exec, 1')
        A(f'ds_write_b128 v{U}, v[{P0}:{P0+3}] offset:{L_ML}')
        A(f'ds_add_u32 v2, v{ONE} offset:{L_CNT0 - L_PROG}')
        A('s_mov_b64 exec, -1')
    else:
        A(f'buffer_store_dwordx4 v[{P0}:{P0+3}], v{U}, s[48:51], s65 offen sc1')
    A('s_mov_b64 vcc, 0'); A('s_mov_b32 s7, 0'); A('s_mov_b32 s98, 0')
    CT = M
    A(f'ds_read_b128 v[{CT}:{CT+3}], v2')
    if ctl: A('s_memrealtime s[96:97]')
    A('L_vloop:')
    A('s_add_u32 s59, s59, 1')
    A(f'v_mov_b32 v{PP}, s59')
    A(f'ds_max_u32 v2, v{PP}')
    A('s_cmp_lg_u32 s59, 8'); A('s_cbranch_scc1 L_now')
    wl = [int(c) for c in wlflags] if wlflags else [0] * 8
    wn = [0]
    def wo_late(n):
        for _ in range(n):
            i = NEARLY + wn[0]; wn[0] += 1
            A(f's_movk_i32 s39, {i*1280}')
            A(f'buffer_load_dwordx4 v[{WO+4*i}:{WO+4*i+3}], v{VWO}, s[52:55], s39 offen {woflags}')
    wo_late(wl[0])
    wait_lds(L_FAST, 1, va=P0, vt=P0 + 1, slp=1)
    A('s_mov_b32 s46, s39'); A('s_lshl_b32 s39, s38, 2'); A(f'v_mov_b32 v{P0}, s39')
    A(f'ds_read_b32 v{E2}, v{P0} offset:{L_W4}')
    A('L_now:')
    beta = [0, 2, 1, 3]
    EX, PK = T01, T23
    for t in range(8):
        R = lambda i: RING + 4 * (4 * t + i)
        A(f'v_subrev_f32 v{EX}, s60, v{S+t}')
        A(f'v_exp_f32 v{EX}, v{EX}')
        A(f'v_mov_b32 v{S+t}, v{S+8+t}')
        A(f'v_cvt_pk_bf16_f32 v{PK}, v{EX}, v{EX}')
        A(f'v_mov_b32 v{S+8+t}, v{S+16+t}')
        A(f'v_mov_b32 v{S+16+t}, v{S+24+t}')
        def build(i):
            dst = A0 if i % 2 == 0 else A1
            for r in range(4):
                n = (2 * r - 4 * beta[i]) % 16
                if n == 0: A(f'v_and_b32 v{dst+r}, v{PK}, v{MASK+r}')
                else: A(f'v_and_b32_dpp v{dst+r}, v{PK}, v{MASK+r} row_ror:{n} row_mask:0xf bank_mask:0xf')
        def mf(i):
            src = A0 if i % 2 == 0 else A1
            A(f'v_mfma_f32_16x16x32_bf16 v[{ACC}:{ACC+3}], v[{src}:{src+3}], v[{R(i)}:{R(i)+3}], v[{ACC}:{ACC+3}]')
        build(0); build(1); mf(0); build(2); mf(1); build(3); mf(2); mf(3)
        A('s_cmp_eq_u32 s59, 8')
        nextwait = 28 - 4 * (t + 1)
        needw = t < 7 and nextwait < (Dhi if ctl else D)
        if t < 7 and (needw or wl[t + 1]):
            A(f's_cbranch_scc0 L_vi{t}')
            wo_late(wl[t + 1])
            if lastg and t == 6:
                A('s_branch L_last')
            else:
                if needw: A(f's_waitcnt vmcnt({nextwait + wn[0]})')
                A(f's_branch L_vc{t}')
            A(f'L_vi{t}:')
        else:
            A(f's_cbranch_scc1 L_vc{t}')
        issue(4 * t + 0, D - 1, dyn=ctl)
        if ctl:
            A('s_waitcnt lgkmcnt(0)')
            A(f'v_readfirstlane_b32 s5, v{CT+2}'); A(f'v_readfirstlane_b32 s6, v{CT+3}')
            A('s_lshl_b32 s98, s96, 4'); A('s_sub_u32 s98, s98, s5'); A('s_mul_i32 s5, s6, s7'); A('s_sub_u32 s98, s98, s5')
            A('s_add_u32 s7, s7, 1')
            A('s_cmp_lg_u32 s6, 0'); A('s_cselect_b32 s98, s98, 0')
            A('s_cmp_gt_i32 s98, 0'); A('s_cselect_b64 vcc, -1, 0')
            A(f's_add_u32 s98, s98, {lead*16}'); A(f's_cmp_gt_u32 s98, {(lead+far)*16}'); A('s_cselect_b32 s98, 1, 0')
        for i in range(1, 4): issue(4 * t + i, D - 1, dyn=ctl)
        if ctl:
            A(f'ds_read_b128 v[{CT}:{CT+3}], v2')
        if ctl: A('s_memrealtime s[96:97]')
        if t < 7: A(f'L_vc{t}:')
    A('s_branch L_vloop')
    if lastg:
        A('L_last:')
        A(f'v_subrev_f32 v{EX}, s60, v{S+7}')
        A(f'v_exp_f32 v{EX}, v{EX}')
        A(f'v_cvt_pk_bf16_f32 v{PK}, v{EX}, v{EX}')
        for i in range(4):
            for r in range(4):
                n = (2 * r - 4 * beta[i]) % 16
                if n == 0: A(f'v_and_b32 v{RING+4*i+r}, v{PK}, v{MASK+r}')
                else: A(f'v_and_b32_dpp v{RING+4*i+r}, v{PK}, v{MASK+r} row_ror:{n} row_mask:0xf bank_mask:0xf')
        A('s_waitcnt lgkmcnt(0)')
        for i in range(4):
            A(f's_waitcnt vmcnt({3 - i + wn[0]})')
            A(f'v_mfma_f32_16x16x32_bf16 v[{ACC}:{ACC+3}], v[{RING+4*i}:{RING+4*i+3}], v[{RING+4*(28+i)}:{RING+4*(28+i)+3}], v[{ACC}:{ACC+3}]')
        A('s_nop 1')
    A('L_vc7:')
    stamp(4)
    A('s_waitcnt lgkmcnt(0)')
    A('s_nop 4')
    G0 = RING
    def combine(src, lbase, lcnt, skip):
        A(f'ds_write_b128 v{VL}, v[{src}:{src+3}] offset:{lbase}')
        A('s_mov_b64 exec, 1')
        A(f'ds_add_rtn_u32 v{PP}, v2, v{ONE} offset:{lcnt - L_PROG}')
        A('s_mov_b64 exec, -1')
        for k in range(4): A(f'ds_read_b128 v[{G0+4*k}:{G0+4*k+3}], v1 offset:{lbase + 1024*k}')
        A('s_waitcnt lgkmcnt(4)')
        A(f'v_readfirstlane_b32 s39, v{PP}')
        A('s_cmp_lg_u32 s39, 3'); A(f's_cbranch_scc1 {skip}')
        A('s_waitcnt lgkmcnt(2)')
        for r in range(4): A(f'v_add_f32 v{G0+r}, v{G0+r}, v{G0+4+r}')
        A('s_waitcnt lgkmcnt(0)')
        for r in range(4): A(f'v_add_f32 v{G0+8+r}, v{G0+8+r}, v{G0+12+r}')
        for r in range(4): A(f'v_add_f32 v{G0+r}, v{G0+r}, v{G0+8+r}')
        entag(G0, G0, TG)
    for r in range(4): A(f'v_mul_f32 v{A0+r}, v{E2}, v{ACC+r}')
    combine(A0, L_OP, L_CNT1, 'L_owait')
    A('s_cmp_eq_u32 s46, 1'); A('s_cbranch_scc1 L_ofast')
    A(f'buffer_store_dwordx4 v[{G0}:{G0+3}], v{VO}, s[48:51], s66 offen sc1')
    A('s_branch L_opoll')
    A('L_ofast:')
    A(f'buffer_store_dwordx4 v[{G0}:{G0+3}], v{VO}, s[48:51], s66 offen')
    A('s_branch L_opoll')
    A('L_owait:')
    wait_lds(L_CNT1, 4, va=P0, vt=P0 + 1, slp=0)
    A('L_opoll:')
    if not pst: stamp(1)
    X = G0 + 16
    poll([f'buffer_load_dwordx4 v[{X}:{X+3}], v1, s[48:51], s47 offen {oldflags}'], [X], P0, 0)
    if not pst: stamp(5)
    for r in range(4): A(f'v_add_f32_dpp v{X+4+r}, v{X+r}, v{X+r} quad_perm:[1,0,3,2] {DPPF}')
    for r in range(4): A(f'v_add_f32_dpp v{X+r}, v{X+4+r}, v{X+4+r} quad_perm:[2,3,0,1] {DPPF}')
    UU = X + 8
    A(f'v_cvt_pk_bf16_f32 v{UU}, v{X}, v{X+1}'); A(f'v_cvt_pk_bf16_f32 v{UU+1}, v{X+2}, v{X+3}')
    A(f'v_cvt_pk_bf16_f32 v{UU+2}, v{X}, v{X+1}'); A(f'v_cvt_pk_bf16_f32 v{UU+3}, v{X+2}, v{X+3}')
    A(f'v_cvt_pk_bf16_f32 v{UU+4}, v{X}, v{X+1}'); A(f'v_cvt_pk_bf16_f32 v{UU+5}, v{X+2}, v{X+3}')
    A(f'v_mov_b32_dpp v{UU}, v{UU+4} row_half_mirror row_mask:0xf bank_mask:0xa')
    A(f'v_mov_b32_dpp v{UU+1}, v{UU+5} row_half_mirror row_mask:0xf bank_mask:0xa')
    A(f'v_mov_b32_dpp v{UU+2}, v{UU+4} row_half_mirror row_mask:0xf bank_mask:0x5')
    A(f'v_mov_b32_dpp v{UU+3}, v{UU+5} row_half_mirror row_mask:0xf bank_mask:0x5')
    def spb(i):
        dst = A0 if i % 2 == 0 else A1
        for r in range(4):
            A(f'v_perm_b32 v{dst+r}, v{UU+(i>>1)}, v{UU+(i>>1)}, v{SSEL+4*(i&1)+r}')
    spb(0)
    for i in range(8):
        if i < 7: spb(i + 1)
        src = A0 if i % 2 == 0 else A1
        c = '0' if i == 0 else f'v[{ACC}:{ACC+3}]'
        A(f'v_mfma_f32_16x16x32_bf16 v[{ACC}:{ACC+3}], v[{src}:{src+3}], v[{WO+4*i}:{WO+4*i+3}], {c}')
    combine(ACC, L_YP, L_CNT2, 'L_end')
    A(f'buffer_store_dwordx4 v[{G0}:{G0+3}], v{VY}, s[48:51], s99 offen {ystflags}')
    if not pst: stamp(6)
    if yack:
        A('s_mov_b64 exec, 1')
        A('s_waitcnt vmcnt(0)')
        A(f'ds_add_u32 v2, v{ONE} offset:{L_CNT2 - L_PROG}')
    write_stamps(0)
    A('s_endpgm')

    SEL, HACC, HA0, HA1, XN, XS, XF, VW, VST, BUF, ACC2 = 4, 12, 32, 36, 40, 50, 60, 92, 93, 96, 176
    A('L_helper:')
    common2()
    A('s_cmp_eq_u32 s3, 0'); A('s_cbranch_scc1 L_hq')
    rest_args()
    A('s_cmp_eq_u32 s3, 2'); A('s_cbranch_scc1 L_hp')
    A('s_and_b32 s56, s2, 7'); A('s_lshr_b32 s39, s2, 3'); A('s_and_b32 s39, s39, 8'); A('s_add_u32 s56, s56, s39')
    A('s_cmp_ge_u32 s56, 14'); A('s_cbranch_scc1 L_end')
    A('s_cmp_ge_u32 s2, 128'); A('s_cbranch_scc1 L_hm2')
    A('s_mov_b32 s5, s4')
    A('s_movk_i32 s6, 3456')
    if hco:
        A('s_lshl_b32 s59, s56, 13'); A('s_lshl_b32 s39, s5, 4'); A('s_add_u32 s59, s59, s39'); A(f's_add_u32 s59, s59, {W_H}')
    else:
        A('s_lshl_b32 s59, s56, 3'); A('s_add_u32 s59, s59, s5'); A('s_lshl_b32 s59, s59, 10'); A(f's_add_u32 s59, s59, {W_H}')
    A('s_lshl_b32 s56, s56, 8'); A(f's_mul_i32 s57, s5, {80*3456}'); A('s_add_u32 s56, s56, s57')
    A(f's_sub_u32 s42, {640*3456}, s56')
    A('s_waitcnt lgkmcnt(0)')
    A('s_add_u32 s40, s20, s56'); A('s_addc_u32 s41, s21, 0')
    A('s_branch L_g1')
    A('L_hq:')
    A('s_mov_b32 s5, s4')
    A('s_movk_i32 s6, 8192')
    A('s_lshl_b32 s59, s34, 13'); A('s_lshl_b32 s39, s5, 10'); A('s_add_u32 s59, s59, s39'); A(f's_add_u32 s59, s59, {W_QP}')
    A('s_lshl_b32 s56, s34, 8'); A(f's_mul_i32 s57, s5, {80*8192}'); A('s_add_u32 s56, s56, s57')
    A(f's_sub_u32 s42, {640*8192}, s56')
    A('s_waitcnt lgkmcnt(0)')
    A('s_add_u32 s40, s14, s56'); A('s_addc_u32 s41, s15, 0')
    rest_args()
    A('L_g1:')
    A('s_mov_b32 s44, s8'); A('s_mov_b32 s45, s9'); A('s_mov_b32 s46, 2560'); A('s_mov_b32 s47, 0x20000')
    A('v_bfe_u32 v12, v1, 3, 1'); A('v_mul_u32_u24 v12, 1280, v12')
    A('v_and_b32 v13, 7, v1'); A('v_lshl_add_u32 v13, v2, 3, v13'); A('v_lshl_add_u32 v13, v13, 3, v12')
    for j in range(5):
        A(f'buffer_load_dwordx2 v[{XS+2*j}:{XS+2*j+1}], v13, s[44:47], 0 offen offset:{j*256}')
    A('v_mul_u32_u24 v14, 40, v2'); A('v_add_u32 v14, v14, v12'); A('s_mul_i32 s39, s5, 160')
    for j in range(5):
        A(f'buffer_load_dwordx2 v[{XN+2*j}:{XN+2*j+1}], v14, s[44:47], s39 offen offset:{j*8}')
    A('s_mul_i32 s39, s6, 20'); A('v_mul_lo_u32 v12, v2, s39'); A(f'v_lshl_add_u32 v{VW}, v3, 4, v12')
    if wdum & 1:
        A(f'v_lshlrev_b32 v{VW}, 4, v1'); A('s_movk_i32 s6, 1024')
        A('s_cmp_eq_u32 s3, 0'); A('s_cselect_b32 s40, s14, s20'); A('s_cselect_b32 s41, s15, s21')
        A('s_mul_i32 s57, s2, 19456'); A('s_add_u32 s40, s40, s57'); A('s_addc_u32 s41, s41, 0'); A('s_mov_b32 s42, 20480')
    A('s_mov_b32 s57, 0')
    A('s_cmp_eq_u32 s3, 0'); A('s_cbranch_scc1 L_nb0'); A('s_barrier'); A('L_nb0:')
    for i in range(20):
        r = BUF + 4 * i
        if i % Dm == 0:
            A('s_cmp_eq_u32 s3, 0'); A(f's_cbranch_scc1 L_nt{i}'); A(f's_waitcnt vmcnt({0 if i == 0 else 1})'); A(f'L_nt{i}:')
        A(f'buffer_load_dwordx4 v[{r}:{r+3}], v{VW}, s[40:43], s57 offen {wflags}')
        if i < 19: A('s_add_u32 s57, s57, s6')
    if pst: stamp(5)
    A('s_cmp_lg_u32 s3, 0'); A('s_cbranch_scc1 L_nb1'); A('s_barrier'); A('L_nb1:')
    if pst: stamp(6)
    A('s_waitcnt lgkmcnt(0)')
    load_tag()
    A('s_mov_b32 s48, s32'); A('s_mov_b32 s49, s33')
    A('v_lshrrev_b32 v12, 1, v2'); A('v_lshlrev_b32 v12, 9, v12'); A('v_lshl_add_u32 v12, v3, 5, v12')
    A('v_and_b32 v13, 1, v2'); A(f'v_lshl_add_u32 v{VST}, v13, 4, v12')
    if hco:
        A('s_cmp_eq_u32 s3, 0'); A('s_cbranch_scc1 L_vst')
        A('v_and_b32 v12, 3, v3'); A('v_lshl_add_u32 v12, v12, 1, v13'); A('v_lshlrev_b32 v12, 10, v12')
        A('v_lshrrev_b32 v13, 2, v3'); A('v_lshl_add_u32 v12, v13, 8, v12')
        A('v_lshrrev_b32 v13, 1, v2'); A(f'v_lshl_add_u32 v{VST}, v13, 7, v12')
        A('L_vst:')
    selectors()
    A('v_mov_b32 v20, 0x3f803f80')
    A('s_waitcnt vmcnt(25)')
    if pst: stamp(7)
    if loc:
        A('s_lshl_b32 s60, s3, 1'); A('s_add_u32 s60, s60, s34')
        hdr_load(24, 28, 's60')
    A(f'v_dot2_f32_bf16 v12, v{XS}, v20, 0'); A(f'v_dot2_f32_bf16 v13, v{XS+1}, v20, 0')
    for j in range(2, 10, 2):
        A(f'v_dot2_f32_bf16 v12, v{XS+j}, v20, v12'); A(f'v_dot2_f32_bf16 v13, v{XS+j+1}, v20, v13')
    for j in range(10):
        A(f'v_lshlrev_b32 v{XF+2*j}, 16, v{XS+j}')
        A(f'v_and_b32 v{XF+2*j+1}, 0xffff0000, v{XS+j}')
    A('v_add_f32 v12, v12, v13')
    red8('v_add_f32', [12], [13]); rows_add(12, 13)
    A(f's_mov_b32 s39, {f2u(1.0/640):#x}')
    A('v_mul_f32 v12, s39, v12')
    A('v_mov_b32 v14, 0'); A('v_mov_b32 v15, 0')
    for j in range(0, 20, 2):
        A(f'v_sub_f32 v22, v{XF+j}, v12'); A(f'v_sub_f32 v23, v{XF+j+1}, v12')
        A('v_fmac_f32 v14, v22, v22'); A('v_fmac_f32 v15, v23, v23')
    A('v_add_f32 v14, v14, v15')
    red8('v_add_f32', [14], [15]); rows_add(14, 15)
    A('v_mul_f32 v14, s39, v14')
    bf16r(12, 12)
    bf16r(14, 14)
    A(f'v_add_f32 v14, {f2u(1e-5):#x}, v14')
    bf16r(14, 14)
    A('v_sqrt_f32 v14, v14')
    bf16r(14, 14)
    A('v_rcp_f32 v14, v14')
    A(f's_waitcnt vmcnt({21 if loc else 20})')
    for j in range(10):
        A(f'v_lshlrev_b32 v{XF+2*j}, 16, v{XN+j}'); A(f'v_and_b32 v{XF+2*j+1}, 0xffff0000, v{XN+j}')
        A(f'v_sub_f32 v{XF+2*j}, v{XF+2*j}, v12'); A(f'v_sub_f32 v{XF+2*j+1}, v{XF+2*j+1}, v12')
        A(f'v_cvt_pk_bf16_f32 v{XN+j}, v{XF+2*j}, v{XF+2*j+1}')
    for j in range(10):
        A(f'v_lshlrev_b32 v{XF+2*j}, 16, v{XN+j}'); A(f'v_and_b32 v{XF+2*j+1}, 0xffff0000, v{XN+j}')
        A(f'v_mul_f32 v{XF+2*j}, v14, v{XF+2*j}'); A(f'v_mul_f32 v{XF+2*j+1}, v14, v{XF+2*j+1}')
        A(f'v_cvt_pk_bf16_f32 v{XN+j}, v{XF+2*j}, v{XF+2*j+1}')
    A('s_waitcnt lgkmcnt(0)')
    make_tag()
    stamp(1)
    tagregs(TG)
    def pb(i, src):
        dst = HA0 if i % 2 == 0 else HA1
        for r in range(4):
            A(f'v_perm_b32 v{dst+r}, v{src+(i>>1)}, v{src+(i>>1)}, v{SEL+4*(i&1)+r}')
    pb(0, XN)
    for i in range(20):
        if i < 19: pb(i + 1, XN)
        if i % 4 == 0: A(f's_waitcnt vmcnt({19 - (i + 3) + (1 if loc else 0)})')
        src = HA0 if i % 2 == 0 else HA1
        c = '0' if i == 0 else f'v[{HACC}:{HACC+3}]'
        A(f'v_mfma_f32_16x16x32_bf16 v[{HACC}:{HACC+3}], v[{src}:{src+3}], v[{BUF+4*i}:{BUF+4*i+3}], {c}')
    entag(16, HACC, TG, rnd=True)
    if noex & 1:
        A('s_cmp_eq_u32 s3, 0'); A('s_cbranch_scc1 L_qd')
    if noex & 2:
        A('s_cmp_lg_u32 s3, 0'); A('s_cbranch_scc1 L_end')
    if loc:
        A('s_waitcnt vmcnt(0)')
        hdr_check(24)
        A('s_cselect_b32 s62, 1, 0')
        A('s_cbranch_scc0 L_g1s')
        A(f'buffer_store_dwordx4 v[16:19], v{VST}, s[48:51], s59 offen')
        A('s_branch L_g1t')
        A('L_g1s:')
    A(f'buffer_store_dwordx4 v[16:19], v{VST}, s[48:51], s59 offen sc1')
    A('L_g1t:')
    stamp(2)
    A('s_cmp_eq_u32 s3, 0'); A('s_cbranch_scc1 L_hq2')
    write_stamps(1)
    A('s_endpgm')
    A('L_hq2:')
    A('v_and_b32 v24, 31, v1'); A('v_lshlrev_b32 v24, 4, v24'); A('v_lshrrev_b32 v25, 5, v1'); A('v_lshl_add_u32 v24, v25, 10, v24')
    A('s_lshl_b32 s56, s34, 13'); A('s_lshl_b32 s39, s36, 9'); A('s_add_u32 s56, s56, s39'); A(f's_add_u32 s56, s56, {W_QP}'); A('s_add_u32 s57, s56, 4096')
    if loc and qsl >= 0:
        A('s_cmp_eq_u32 s62, 1'); A('s_cbranch_scc0 L_qa')
        if qsl: A(f's_sleep {qsl}')
        A('s_branch L_qb')
        A('L_qa:')
    A('s_waitcnt vmcnt(0)')
    A('L_qb:')
    stamp(3)
    A(f's_mov_b32 s67, {SPIN}')
    A('s_movk_i32 s62, 0xf')
    A('L_qw:')
    for j in range(4):
        A(f's_bitcmp1_b32 s62, {j}'); A(f's_cbranch_scc0 L_qs{j}')
        A(f'buffer_load_dwordx4 v[{XF+16+4*j}:{XF+16+4*j+3}], v24, s[48:51], s{56 + (j >> 1)} offen offset:{(j&1)*2048} sc1')
        A(f'L_qs{j}:')
    A('s_waitcnt vmcnt(0)')
    A('s_mov_b32 s62, 0')
    for j in range(4):
        b = XF + 4 * j
        for r in range(4): A(f'v_xor_b32 v{b+r}, v{TG+r}, v{b+16+r}')
        A(f'v_or3_b32 v25, v{b}, v{b+1}, v{b+2}'); A(f'v_or_b32 v25, v25, v{b+3}'); A(f'v_and_b32 v25, v{TG+4}, v25')
        A('v_cmp_ne_u32 vcc, 0, v25')
        A('s_nop 0')
        A('s_cmp_lg_u64 vcc, 0'); A(f's_cselect_b32 s39, {1 << j}, 0'); A('s_or_b32 s62, s62, s39')
    A('s_cbranch_scc0 L_qd')
    A('s_sub_u32 s67, s67, 1'); A('s_cmp_lg_u32 s67, 0'); A('s_cbranch_scc1 L_qw')
    A('L_qd:')
    for r in range(4):
        A(f'v_add_f32 v{XF+r}, v{XF+r}, v{XF+4+r}'); A(f'v_add_f32 v{XF+8+r}, v{XF+8+r}, v{XF+12+r}')
    for r in range(4): A(f'v_add_f32 v{XF+r}, v{XF+r}, v{XF+8+r}')
    A(f'v_permlane32_swap_b32 v{XF}, v{XF+2}'); A(f'v_permlane32_swap_b32 v{XF+1}, v{XF+3}')
    A(f'v_add_f32 v{XF}, v{XF}, v{XF+2}'); A(f'v_add_f32 v{XF+1}, v{XF+1}, v{XF+3}')
    A(f'v_cvt_pk_bf16_f32 v{XF}, v{XF}, v{XF+1}')
    A('v_and_b32 v22, 31, v1'); A('v_lshlrev_b32 v22, 3, v22'); A('v_lshrrev_b32 v23, 5, v1'); A('v_lshl_add_u32 v22, v23, 2, v22')
    A(f'ds_write_b32 v22, v{XF} offset:{L_Q}')
    A('v_mov_b32 v28, 1'); A(f'v_mov_b32 v26, {L_QRDY}')
    A('s_waitcnt lgkmcnt(0)')
    A('ds_write_b32 v26, v28')
    stamp(4)
    A(f's_sub_u32 s61, s2, {C0}')
    A('s_cmp_lt_u32 s61, 80'); A('s_cbranch_scc1 L_gate')
    write_stamps(1)
    A('s_endpgm')
    A('L_gate:')
    A('v_lshrrev_b32 v26, 2, v1'); A('v_min_u32 v19, 13, v26'); A('v_mul_u32_u24 v26, 5120, v26'); A('v_mul_u32_u24 v19, 5120, v19')
    A('v_and_b32 v27, 3, v1'); A('v_lshl_add_u32 v26, v27, 4, v26'); A('v_lshl_add_u32 v19, v27, 4, v19')
    A('v_lshlrev_b32 v27, 3, v27')
    A('v_bfe_u32 v18, v1, 2, 2'); A('v_lshl_add_u32 v27, v18, 1, v27')
    A('s_lshl_b32 s60, s61, 5')
    A('buffer_load_ushort v20, v27, s[44:47], s60 offen')
    A('s_cmp_ge_u32 s61, 40'); A('s_cselect_b32 s58, 40, 0'); A('s_sub_u32 s59, s61, s58')
    A('s_lshl_b32 s57, s59, 5')
    A('s_mov_b32 s52, s26'); A('s_mov_b32 s53, s27'); A('s_mov_b32 s54, 1280'); A('s_mov_b32 s55, 0x20000')
    A('buffer_load_ushort v21, v27, s[52:55], s57 offen')
    A('s_mul_i32 s56, s59, 52'); A('s_lshr_b32 s56, s56, 8'); A('s_mul_i32 s56, s56, 320')
    A('s_lshl_b32 s57, s59, 6'); A('s_add_u32 s56, s56, s57'); A('s_lshl_b32 s58, s58, 3'); A('s_add_u32 s56, s56, s58')
    A(f's_add_u32 s8, s56, {W_G}')
    A(f's_add_u32 s56, s56, {W_Y}'); A(f's_add_u32 s57, s56, {16*5120}')
    A('s_mov_b32 s40, s28'); A('s_mov_b32 s41, s29'); A('s_movk_i32 s42, 2560')
    A('v_mov_b32 v28, s74'); A('v_mov_b32 v29, s75'); A('v_lshlrev_b32 v30, 24, v1')
    A('s_lshl_b32 s58, s61, 24'); A(f's_add_u32 s58, s58, {W_EP}')
    wait_lds(L_PROG, pG)
    if not (noex & 2): poll([f'buffer_load_dwordx4 v[{XF}:{XF+3}], v19, s[48:51], s8 offen sc1'], [XF], 18, sleep)
    A('v_cmp_gt_u32 vcc, 56, v1')
    for r in range(4): A(f'v_cndmask_b32 v{XF+r}, 0, v{XF+r}, vcc')
    col_reduce(XF, XF + 4, 18, 19)
    bf16r(18, 18)
    A('v_lshlrev_b32 v21, 16, v21'); A('v_lshlrev_b32 v20, 16, v20')
    A('v_add_f32 v18, v18, v21')
    bf16r(18, 18)
    A(f'v_mul_f32 v19, {f2u(-1.4426950408889634):#x}, v18')
    A('v_exp_f32 v19, v19')
    A('v_add_f32 v19, 1.0, v19')
    A('v_rcp_f32 v19, v19')
    A('v_mul_f32 v18, v18, v19')
    bf16r(22, 18)
    stamp(5)
    if fixdur:
        wait_lds(L_PROG, 5, slp=2); stamp(3)
    wait_lds(L_PROG, 8, slp=2 if fixdur else 8)
    if fixdur: stamp(4)
    wait_lds(L_CNT2, 5 if yack else 4, slp=0)
    if ysl: A(f's_sleep {ysl}')
    poll([f'buffer_load_dwordx4 v[{XF}:{XF+3}], v26, s[48:51], s56 offen {yldflags}', f'buffer_load_dwordx4 v[{XF+4}:{XF+7}], v26, s[48:51], s57 offen {yldflags}'], [XF, XF + 4], 18, ysl2)
    stamp(6)
    for r in range(4): A(f'v_add_f32 v{XF+r}, v{XF+r}, v{XF+4+r}')
    col_reduce(XF, XF + 4, 18, 19)
    bf16r(18, 18)
    A('v_mul_f32 v18, v18, v22')
    bf16r(18, 18)
    A('v_add_f32 v18, v18, v20')
    A('v_cvt_pk_bf16_f32 v18, v18, v18')
    A('buffer_store_short v18, v27, s[40:43], s60 offen')
    A('buffer_store_dwordx2 v[28:29], v30, s[48:51], s58 offen')
    stamp(7)
    if fixdur:
        A('s_waitcnt lgkmcnt(0)')
        A(f's_mov_b32 s92, {fixdur}')
        if amp >= 0:
            A(f's_sub_u32 s93, s{76+2*amp}, s76'); A('s_mul_i32 s93, s93, 10'); A('s_add_u32 s92, s92, s93')
        if amp2 >= 0:
            A(f's_sub_u32 s93, s{76+2*amp2}, s76'); A('s_lshr_b32 s93, s93, 6'); A('s_mul_i32 s93, s93, 20000'); A('s_add_u32 s92, s92, s93')
        A('L_fix:')
        A('s_memrealtime s[94:95]'); A('s_waitcnt lgkmcnt(0)')
        A('s_sub_u32 s94, s94, s76'); A('s_cmp_lt_u32 s94, s92'); A('s_cbranch_scc1 L_fix')
    write_stamps(2)
    A('s_endpgm')

    A('L_hm2:')
    TG2, B1, UU = 240, 224, 40
    A('s_mov_b32 s5, s56')
    A('s_mov_b32 s6, s4')
    A('s_lshl_b32 s59, s5, 3'); A('s_add_u32 s59, s59, s6'); A('s_mul_i32 s59, s59, 640'); A(f's_add_u32 s59, s59, {W_G}')
    A(f's_mul_i32 s56, s5, {128*1280}'); A('s_mul_i32 s57, s6, 160'); A('s_add_u32 s56, s56, s57')
    A(f's_sub_u32 s42, {1728*1280}, s56')
    A('s_waitcnt lgkmcnt(0)')
    A('s_add_u32 s40, s24, s56'); A('s_addc_u32 s41, s25, 0')
    load_tag()
    A('s_barrier')
    A('s_mov_b32 s48, s32'); A('s_mov_b32 s49, s33')
    A(f'v_mul_u32_u24 v16, {32*1280}, v2'); A('v_lshl_add_u32 v16, v3, 4, v16')
    A('v_mov_b32 v18, 0x40000000'); A('v_cmp_gt_u32 vcc, 10, v3'); A(f'v_cndmask_b32 v{VW}, v18, v16, vcc')
    A('v_lshrrev_b32 v16, 1, v2'); A('v_mul_u32_u24 v16, 320, v16'); A('v_lshl_add_u32 v16, v3, 5, v16')
    A('v_and_b32 v17, 1, v2'); A('v_lshl_add_u32 v16, v17, 4, v16'); A(f'v_cndmask_b32 v{VST}, v18, v16, vcc')
    selectors()
    A('v_and_b32 v94, 7, v3'); A('v_lshlrev_b32 v94, 10, v94'); A('v_lshrrev_b32 v95, 3, v3'); A('v_lshl_add_u32 v94, v95, 9, v94'); A('v_lshl_add_u32 v94, v2, 7, v94')
    A('s_mov_b32 s52, s22'); A('s_mov_b32 s53, s23'); A(f's_mov_b32 s54, {1728*2}'); A('s_mov_b32 s55, 0x20000')
    A('s_waitcnt lgkmcnt(0)')
    make_tag()
    tagregs(TG2)
    if wdum & 2:
        A('v_lshlrev_b32 v16, 4, v1'); A('v_mov_b32 v18, 0x40000000'); A('v_cmp_gt_u32 vcc, 40, v1'); A(f'v_cndmask_b32 v{VW}, v18, v16, vcc')
        A('s_lshl_b32 s39, s5, 3'); A('s_add_u32 s39, s39, s6'); A('s_mul_i32 s39, s39, 19456')
        A('s_add_u32 s40, s24, s39'); A('s_addc_u32 s41, s25, 0'); A('s_mov_b32 s42, 20480')
    A('s_mov_b32 s57, 0')
    for i in range(32):
        if i >= Dw: A(f's_waitcnt vmcnt({Dw - 1})')
        r = BUF + 4 * i
        A(f'buffer_load_dwordx4 v[{r}:{r+3}], v{VW}, s[40:43], s57 offen {woflags}')
        if i < 31: A(f's_addk_i32 s57, {640 if wdum & 2 else 1280}')
    A('s_lshl_b32 s57, s5, 8'); A('v_lshlrev_b32 v20, 6, v2')
    for j in range(4): A(f'buffer_load_dwordx4 v[{B1+4*j}:{B1+4*j+3}], v20, s[52:55], s57 offen offset:{16*j}')
    stamp(1)
    if noex & 2: A('s_endpgm')
    wait_lds(L_PROG, pH)
    A('s_lshl_b32 s56, s5, 13'); A(f's_add_u32 s56, s56, {W_H}')
    if hco:
        A('v_lshlrev_b32 v94, 4, v1'); A('s_add_u32 s57, s56, 4096')
        poll([f'buffer_load_dwordx4 v[{XF+4*j}:{XF+4*j+3}], v94, s[48:51], s{56 + (j >> 2)} offen offset:{1024*(j&3)} sc1' for j in range(8)], [XF + 4 * j for j in range(8)], 18, sleep)
    else:
        poll([f'buffer_load_dwordx4 v[{XF+4*j}:{XF+4*j+3}], v94, s[48:51], s56 offen offset:{16*j} sc1' for j in range(8)], [XF + 4 * j for j in range(8)], 18, sleep)
    for j in range(8): red8('v_add_f32', [XF + 4 * j + r for r in range(4)], [20 + r for r in range(4)])
    A('s_cmp_eq_u32 s5, 13'); A('s_cselect_b32 s39, 2, 4'); A('v_cmp_gt_u32 vcc, s39, v2')
    for j in range(32):
        bf16r(XF + j, XF + j)
        if j % 2 == 0: A(f'v_lshlrev_b32 v18, 16, v{B1+j//2}')
        else: A(f'v_and_b32 v18, 0xffff0000, v{B1+j//2}')
        A(f'v_add_f32 v{XF+j}, v{XF+j}, v18')
        bf16r(XF + j, XF + j)
        A(f'v_max_f32 v{XF+j}, 0, v{XF+j}')
        A(f'v_mul_f32 v{XF+j}, v{XF+j}, v{XF+j}')
        if j % 2 == 1:
            A(f'v_cvt_pk_bf16_f32 v{UU+j//2}, v{XF+j-1}, v{XF+j}'); A(f'v_cndmask_b32 v{UU+j//2}, 0, v{UU+j//2}, vcc')
    pb(0, UU)
    for i in range(32):
        if i < 31: pb(i + 1, UU)
        src = HA0 if i % 2 == 0 else HA1
        c = '0' if i == 0 else f'v[{HACC}:{HACC+3}]'
        A(f'v_mfma_f32_16x16x32_bf16 v[{HACC}:{HACC+3}], v[{src}:{src+3}], v[{BUF+4*i}:{BUF+4*i+3}], {c}')
    entag(20, HACC, TG2, rnd=True)
    A(f'buffer_store_dwordx4 v[20:23], v{VST}, s[48:51], s59 offen sc1')
    stamp(5)
    write_stamps(1)
    A('s_endpgm')
    A('L_hp:')
    if cpf:
        A('s_getpc_b64 s[60:61]')
        A('L_pc:')
        A(f's_sub_u32 s60, s60, L_pc-{NAME}_kernel'); A('s_subb_u32 s61, s61, 0')
        A(f's_mov_b32 s62, L_end-{NAME}_kernel'); A('s_mov_b32 s63, 0x20000')
        A('s_lshr_b32 s39, s2, 3'); A('s_lshl_b32 s39, s39, 10'); A('v_lshlrev_b32 v6, 4, v1')
        A('buffer_load_dwordx4 v[8:11], v6, s[60:63], s39 offen')
    A('v_mov_b32 v4, 0'); A('v_lshlrev_b32 v5, 2, v1')
    A(f'ds_write_b32 v5, v4 offset:{L_PROG}')
    if tlb:
        A('s_lshl_b32 s56, s35, 21'); A('s_lshl_b32 s57, s37, 19'); A('s_add_u32 s56, s56, s57')
        A(f's_mul_i32 s58, s34, {128*1280}')
        A('v_mov_b32 v16, s56'); A('v_mov_b32 v17, s58'); A('v_mov_b32 v18, 0'); A(f'v_mov_b32 v19, {W_Y}'); A('v_mov_b32 v20, 0x200000')
    A('s_waitcnt lgkmcnt(0)')
    if tlb:
        A('s_mov_b64 exec, 1')
        A('global_load_dword v24, v17, s[16:17] nt')
        A('global_load_dword v25, v18, s[20:21] nt')
        A('global_load_dword v26, v18, s[24:25] nt')
        A('global_load_dword v27, v20, s[20:21] nt')
        A('global_load_dword v28, v20, s[24:25] nt')
        if tlb > 1:
            A('global_load_dword v29, v16, s[12:13] nt')
            A('global_load_dword v30, v18, s[32:33] nt')
            A('global_load_dword v31, v19, s[32:33] nt')
            A('global_load_dword v32, v18, s[22:23] nt')
            A('global_load_dword v33, v18, s[26:27] nt')
            A('global_load_dword v34, v18, s[28:29] nt')
        A('s_mov_b64 exec, -1')
    load_tag()
    A('s_mov_b32 s48, s32'); A('s_mov_b32 s49, s33')
    A('v_and_b32 v94, 7, v3'); A('v_lshrrev_b32 v95, 3, v3')
    A('s_getreg_b32 s39, hwreg(HW_REG_XCC_ID, 0, 4)')
    A('v_mov_b32 v20, s39'); A('v_mov_b32 v22, 0'); A('v_lshlrev_b32 v24, 24, v1')
    A('s_lshl_b32 s39, s34, 3'); A('s_add_u32 s39, s39, s4'); A('s_lshl_b32 s39, s39, 4'); A(f's_add_u32 s39, s39, {W_HD}')
    A('s_waitcnt lgkmcnt(0)')
    make_tag()
    A('v_mov_b32 v21, s74'); A('v_mov_b32 v23, s75')
    A('buffer_store_dwordx4 v[20:23], v24, s[48:51], s39 offen')
    A('s_barrier')
    wait_lds(L_PROG, 1)
    hdr_load(40, 30, 's34')
    A('s_waitcnt vmcnt(0)')
    hdr_check(40)
    A('s_cselect_b32 s46, 1, 2')
    if ctl:
        wait_lds(L_PROG, 2, slp=2)
        A('s_memrealtime s[8:9]')
        wait_lds(L_PROG, 4, slp=2)
        A('s_memrealtime s[10:11]')
        A('s_waitcnt lgkmcnt(0)')
        A('v_mov_b32 v20, s8'); A('v_mov_b32 v21, s74'); A('v_mov_b32 v22, s10'); A('v_mov_b32 v23, s75')
        A('v_lshlrev_b32 v24, 24, v1')
        if ts64:
            A('s_lshr_b32 s39, s2, 5'); A('s_lshl_b32 s39, s39, 3'); A('s_and_b32 s12, s2, 7'); A('s_add_u32 s39, s39, s12'); A('s_lshl_b32 s39, s39, 4')
            A('s_lshl_b32 s12, s37, 24'); A('s_add_u32 s39, s39, s12')
            A(f's_add_u32 s39, s39, {W_TS}')
        else:
            A('s_lshl_b32 s39, s2, 4'); A(f's_add_u32 s39, s39, {W_TS}')
        A('buffer_store_dwordx4 v[20:23], v24, s[48:51], s39 offen sc1')
        wait_lds(L_PROG, 5, slp=4)
        A('v_lshlrev_b32 v24, 4, v1'); A(f's_mov_b32 s39, {W_TS}')
        NTS = 1 if ts64 else 4
        for j in range(NTS):
            A(f'buffer_load_dwordx4 v[{XF+4*j}:{XF+4*j+3}], v24, s[48:51], s39 offen offset:{j*1024} sc1')
        A('v_mov_b32 v26, 0'); A('v_mov_b32 v27, 0')
        A('s_sub_u32 s12, s8, s10')
        A('v_mov_b32 v28, s12')
        A('s_waitcnt vmcnt(0)')
        for j in range(NTS):
            b = XF + 4 * j
            A(f'v_cmp_eq_u32 vcc, s74, v{b+1}')
            A(f'v_subrev_u32 v{b}, s10, v{b}'); A(f'v_subrev_u32 v{b+2}, s10, v{b+2}')
            A(f'v_cndmask_b32 v{b}, v28, v{b}, vcc'); A(f'v_cndmask_b32 v{b+2}, 0, v{b+2}, vcc')
            A(f'v_add_u32 v26, v26, v{b}'); A(f'v_add_u32 v27, v27, v{b+2}')
        red8('v_add_u32', [26, 27], [29, 30])
        A(f'v_add_u32_dpp v26, v26, v26 row_ror:8 {DPPF}'); A(f'v_add_u32_dpp v27, v27, v27 row_ror:8 {DPPF}')
        rows_add(26, 29, 'v_add_u32'); rows_add(27, 30, 'v_add_u32')
        A('v_readfirstlane_b32 s12, v26'); A('v_readfirstlane_b32 s13, v27')
        A('s_sub_u32 s14, s13, s12')
        A(f's_mul_i32 s14, s14, {cscale}'); A(f's_ashr_i32 s14, s14, {14 if ts64 else 16}')
        A(f's_ashr_i32 s13, s13, {2 if ts64 else 4}')
        A(f's_add_u32 s15, s10, {cmargin}'); A('s_lshl_b32 s15, s15, 4'); A('s_add_u32 s15, s15, s13')
        A('s_lshl_b32 s12, s14, 3'); A('s_add_u32 s15, s15, s12')
        A('v_mov_b32 v26, s15'); A('v_mov_b32 v27, s14'); A(f'v_mov_b32 v28, {L_CTL}')
        A('ds_write_b64 v28, v[26:27]')
    if mlwg:
        wait_lds(L_CNT0, 4, slp=4)
        A('v_and_b32 v16, 3, v1'); A('v_lshlrev_b32 v16, 4, v16')
        A(f'ds_read_b128 v[20:23], v16 offset:{L_ML}')
        A('v_lshrrev_b32 v17, 2, v1'); A('v_lshl_add_u32 v16, v17, 24, v16')
        A('s_lshl_b32 s39, s35, 8'); A('s_lshl_b32 s56, s37, 6'); A('s_add_u32 s39, s39, s56')
        A('s_waitcnt lgkmcnt(0)')
        A('s_cmp_eq_u32 s46, 1'); A('s_cbranch_scc0 L_mls')
        A('buffer_store_dwordx4 v[20:23], v16, s[48:51], s39 offen')
        A('s_branch L_mlt')
        A('L_mls:')
        A('buffer_store_dwordx4 v[20:23], v16, s[48:51], s39 offen sc1')
        A('L_mlt:')
    wait_lds(L_PROG, pML)
    A('v_lshlrev_b32 v16, 4, v3')
    A('s_lshl_b32 s39, s35, 8')
    polltag(['buffer_load_dwordx4 v[20:23], v16, s[48:51], s39 offen sc1'], [20], 18, sleep)
    A('v_mov_b32 v28, v20')
    red8('v_max_f32', [28], [29])
    A(f'v_max_f32_dpp v28, v28, v28 row_ror:8 {DPPF}')
    A('v_sub_f32 v20, v20, v28')
    A('v_exp_f32 v20, v20')
    A('v_mul_f32 v22, v22, v20')
    red8('v_add_f32', [22], [29])
    A(f'v_add_f32_dpp v22, v22, v22 row_ror:8 {DPPF}')
    A('v_rcp_f32 v22, v22')
    A('v_mul_f32 v44, v20, v22')
    A('s_lshl_b32 s56, s37, 2')
    A('v_subrev_u32 v16, s56, v1'); A('v_lshlrev_b32 v16, 2, v16')
    A('s_lshl_b64 exec, 15, s56')
    A(f'ds_write_b32 v16, v44 offset:{L_W4}')
    A('s_mov_b64 exec, -1')
    A('v_mov_b32 v21, s46'); A(f'v_mov_b32 v23, {L_FAST}')
    A('s_waitcnt lgkmcnt(0)')
    A('ds_write_b32 v23, v21')
    if touch:
        A('v_lshlrev_b32 v16, 4, v1'); A('s_lshl_b32 s39, s34, 12'); A(f's_add_u32 s39, s39, {W_O}')
        wait_lds(L_PROG, 7, va=18, vt=19)
        A('s_lshl_b32 s39, s34, 12'); A(f's_add_u32 s39, s39, {W_O}')
        if touch1:
            A('s_lshl_b32 s56, s4, 9'); A('s_add_u32 s39, s39, s56'); A('v_lshlrev_b32 v16, 3, v1')
            A(f'buffer_load_dwordx2 v[{XF}:{XF+1}], v16, s[48:51], s39 offen')
        else:
            for j in range(4): A(f'buffer_load_dwordx4 v[{XF+4*j}:{XF+4*j+3}], v16, s[48:51], s39 offen offset:{j*1024}')
    stamp(2)
    write_stamps(1)
    A('L_end:')
    A('s_endpgm')
    body = a.finalize()
    out = HEADER
    out += f'; @launch grid=(256,1,1) block=(448,1,1) lds={L_TOTAL}\n'
    out += '.amdgcn_target "amdgcn-amd-amdhsa--gfx950"\n.text\n'
    out += f'.globl {NAME}_kernel\n.p2align 8\n.type {NAME}_kernel,@function\n'
    out += body
    out += f'''.section .rodata,"a"
.p2align 6
.amdhsa_kernel {NAME}_kernel
  .amdhsa_next_free_vgpr 256
  .amdhsa_next_free_sgpr 100
  .amdhsa_accum_offset 256
  .amdhsa_group_segment_fixed_size 0
  .amdhsa_kernarg_size 104
  .amdhsa_user_sgpr_count 2
  .amdhsa_user_sgpr_kernarg_segment_ptr 1
  .amdhsa_system_sgpr_workgroup_id_x 1
.end_amdhsa_kernel
'''
    return out

if __name__ == '__main__':
    ap = argparse.ArgumentParser()
    ap.add_argument('out')
    ap.add_argument('opts', nargs='*')
    args = ap.parse_args()
    kw = {}
    for o in args.opts:
        k, v = o.split('=')
        kw[k] = v if k.endswith('flags') else int(v)
    open(args.out, 'w').write(gen(**kw))
```
